```python
import torch

def _softmax(x, axis=-1):
    return torch.softmax(x, dim=axis)

def _gelu(x):
    return torch.nn.functional.gelu(x, approximate='tanh')

def _silu(x):
    return torch.nn.functional.silu(x)

def _sigmoid(x):
    return torch.sigmoid(x)

def _layernorm(x, axis=-1, eps=1e-05):
    m = x.mean(dim=axis, keepdim=True)
    v = x.var(dim=axis, keepdim=True, unbiased=False)
    return (x - m) / torch.sqrt(v + eps)

def _scatter_add(tgt, idx, src, axis=0):
    return tgt.clone().index_add_(axis, idx, src)

def _segment_sum(src, seg, n):
    out = torch.zeros((n,) + src.shape[1:], dtype=src.dtype)
    return out.index_add_(0, seg, src)

def _pad(x, pw):
    flat = tuple((v for pair in reversed(pw) for v in pair))
    return torch.nn.functional.pad(x, flat)
kernel_name = 'adaLN_cond__ssm_conv_h3__moe_arch_mod__prompt'

def setup_inputs():

    _w = lambda a: (lambda t: t.to(torch.bfloat16) if t.is_floating_point() else t)(torch.as_tensor(a))

    def _A_setup():
        B, S, D = (1, 2048, 640)
        ks = 4
        return {'q': _w((lambda *s: torch.randn(*s, dtype=torch.bfloat16) * 0.05)(B, S, D)), 'k': _w((lambda *s: torch.randn(*s, dtype=torch.bfloat16) * 0.4)(B, S, D)), 'v': _w((lambda *s: torch.randn(*s, dtype=torch.bfloat16) * 0.4)(B, S, D)), 'shift_k': _w((lambda *s: torch.randn(*s, dtype=torch.bfloat16) * 0.4)(D, ks) * 0.5), 'ssm_k': _w((lambda *s: torch.randn(*s, dtype=torch.bfloat16) * 0.8)(D, S) * (1.0 / S ** 0.5)), 'ssm_D': _w((lambda *s: torch.randn(*s, dtype=torch.bfloat16) * 0.4)(D))}
    _A_in = _A_setup()

    def _B_setup():
        B, S, D, F, C = (1, 2048, 640, 1728, 1)
        return {'x': _w((lambda *s: torch.randn(*s, dtype=torch.bfloat16) * 0.05)(B, S, D)), 'w_r': _w((lambda *s: torch.randn(*s, dtype=torch.bfloat16) * 0.05)(D)), 'w_gate': _w((lambda *s: torch.randn(*s, dtype=torch.bfloat16) * 0.05)(D, F)), 'w_up': _w((lambda *s: torch.randn(*s, dtype=torch.bfloat16) * 0.05)(D, F)), 'w_down': _w((lambda *s: torch.randn(*s, dtype=torch.bfloat16) * 0.05)(F, D))}
    _B_in = _B_setup()
    return {'A_q': _A_in['q'], 'A_k': _A_in['k'], 'A_v': _A_in['v'], 'A_shift_k': _A_in['shift_k'], 'A_ssm_k': _A_in['ssm_k'], 'A_ssm_D': _A_in['ssm_D'], 'B_x': _B_in['x'], 'B_w_r': _B_in['w_r'], 'B_w_gate': _B_in['w_gate'], 'B_w_up': _B_in['w_up'], 'B_w_down': _B_in['w_down'], 'c': _w((lambda *s: torch.randn(*s, dtype=torch.bfloat16) * 0.2)(1, 640) * 8.0), 'w_mod': _w((lambda *s: torch.randn(*s, dtype=torch.bfloat16) * 0.2)(640, 6 * 640) * 640 ** (-0.5) * 8.0)}

def reference(A_q, A_k, A_v, A_shift_k, A_ssm_k, A_ssm_D, B_x, B_w_r, B_w_gate, B_w_up, B_w_down, c, w_mod):

    def _A_ref(q, k, v, shift_k, ssm_k, ssm_D):
        B, S, D = q.shape
        ks = shift_k.shape[-1]
        k_pad = _pad(k, ((0, 0), (ks - 1, 0), (0, 0)))
        k_shift = torch.zeros_like(k)
        for t in range(ks):
            k_shift = k_shift + k_pad[:, t:t + S, :] * shift_k[:, ks - 1 - t][None, None, :]
        kv = k_shift * v
        L = 2 * S
        kv_pad = _pad(kv, ((0, 0), (0, S), (0, 0)))
        kf_pad = _pad(ssm_k, ((0, 0), (0, S)))
        kv_f = (lambda x, axes=(-2, -1): torch.fft.rfft2(x.float(), dim=axes))(kv_pad[:, None, :, :], axes=(1, 2))
        kf_f = (lambda x, axes=(-2, -1): torch.fft.rfft2(x.float(), dim=axes))(kf_pad[:, None, :], axes=(1, 2))
        kf_f = (lambda x, *d: x.permute(*d))(kf_f, 1, 2, 0)
        y_f = kv_f * kf_f[None, :, :, :]
        y = (lambda x, s, axes=(-2, -1): torch.fft.irfft2(x, s=s, dim=axes).to(torch.bfloat16))(y_f, (1, L), axes=(1, 2))[:, 0, :S, :]
        y = y + kv * ssm_D[None, None, :]
        return q * y

    def _B_ref(x, w_r, w_gate, w_up, w_down):
        B, S, D = x.shape
        C = 1
        r = x @ w_r
        idx = torch.argsort(-r, axis=-1)[:, :C]
        idx_e = (lambda x, n, axis: torch.repeat_interleave(x, n, dim=axis))(idx.reshape(B, C, 1), D, axis=2)
        x_sel = (lambda x, i, axis: torch.take_along_dim(x, i, dim=axis))(x, idx_e, axis=1)
        g = _silu(x_sel @ w_gate)
        u = x_sel @ w_up
        y = g * u @ w_down
        r_sel = _sigmoid((lambda x, i, axis: torch.take_along_dim(x, i, dim=axis))(r, idx, axis=1))
        y = y * r_sel.reshape(B, C, 1)
        b_off = (torch.arange(B) * S).reshape(B, 1)
        flat_idx = (idx + b_off).reshape(B * C)
        zero = (x * 0.0).reshape(B * S, D)
        upd = _scatter_add(zero, flat_idx, y.reshape(B * C, D), axis=0)
        return x + upd.reshape(B, S, D)
    x = A_q
    mod = (_silu(c) @ w_mod).reshape(c.shape[0], 6, 1, -1)
    sa, ca, ga, sb, cb, gb = (mod[:, 0].clone(), mod[:, 1].clone(), mod[:, 2].clone(), mod[:, 3].clone(), mod[:, 4].clone(), mod[:, 5].clone())
    h = _layernorm(x, axis=-1) * (1 + ca) + sa
    x = x + ga * _A_ref(h, A_k, A_v, A_shift_k, A_ssm_k, A_ssm_D)
    h = _layernorm(x, axis=-1) * (1 + cb) + sb
    x = x + gb * _B_ref(h, B_w_r, B_w_gate, B_w_up, B_w_down)
    return x
```

```python
import re

TRANS = ('v_exp_f32', 'v_log_f32', 'v_rcp_f32', 'v_rsq_f32', 'v_sqrt_f32', 'v_sin_f32', 'v_cos_f32',
         'v_rcp_iflag_f32', 'v_exp_f16', 'v_log_f16', 'v_rcp_f16', 'v_rsq_f16', 'v_sqrt_f16')

REG_RE = re.compile(r'^(-?)(?:abs\(|\|)?([vsa])(?:(\d+)|\[(\d+):(\d+)\])\)?\|?$')


def parse_reg(tok):
    tok = tok.strip()
    if tok in ('vcc',):
        return {('s', 'vcc_lo'), ('s', 'vcc_hi')}
    if tok in ('vcc_lo', 'vcc_hi', 'exec_lo', 'exec_hi', 'm0'):
        return {('s', tok)}
    if tok == 'exec':
        return {('s', 'exec_lo'), ('s', 'exec_hi')}
    m = REG_RE.match(tok)
    if not m:
        return set()
    kind = m.group(2)
    if m.group(3) is not None:
        return {(kind, int(m.group(3)))}
    return {(kind, i) for i in range(int(m.group(4)), int(m.group(5)) + 1)}


VCC = {('s', 'vcc_lo'), ('s', 'vcc_hi')}
EXEC = {('s', 'exec_lo'), ('s', 'exec_hi')}
M0 = {('s', 'm0')}


def split_ops(s):
    out, depth, cur = [], 0, ''
    for ch in s:
        if ch in '[(':
            depth += 1
        if ch in '])':
            depth -= 1
        if ch == ',' and depth == 0:
            out.append(cur.strip())
            cur = ''
        else:
            cur += ch
    if cur.strip():
        out.append(cur.strip())
    return out


class Ins:
    def __init__(self, text):
        self.text = text
        body = text.split(';')[0].strip()
        self.label = None
        self.is_ins = False
        self.op = ''
        if not body or body.startswith('.') and not body.endswith(':'):
            return
        if body.endswith(':'):
            self.label = body[:-1]
            return
        self.is_ins = True
        parts = body.split(None, 1)
        op = parts[0]
        for suf in ('_e32', '_e64'):
            if op.endswith(suf):
                op = op[:-len(suf)]
        self.sdwa = op.endswith('_sdwa')
        self.dpp = op.endswith('_dpp')
        if self.sdwa:
            op = op[:-5]
        if self.dpp:
            op = op[:-4]
        self.op = op
        rest = parts[1] if len(parts) > 1 else ''
        ops = split_ops(rest)
        mods = ''
        if ops:
            last = ops[-1].split(None, 1)
            if len(last) > 1:
                ops[-1] = last[0]
                mods = last[1]
        self.ops = ops
        self.mods = mods
        if re.search(r'\b(quad_perm|row_shl|row_shr|row_ror|wave_shl|wave_shr|wave_rol|wave_ror|row_mirror|row_half_mirror|row_bcast|row_newbcast)', mods):
            self.dpp = True
        if re.search(r'\b(dst_sel|src0_sel|src1_sel)', mods):
            self.sdwa = True
        self.classify()

    def classify(self):
        op, ops = self.op, self.ops
        R = [parse_reg(o) for o in ops]
        self.mfma = op.startswith('v_mfma') or op.startswith('v_smfmac')
        self.valu = op.startswith('v_') and not self.mfma
        self.trans = op in TRANS
        self.dot = op.startswith('v_dot')
        self.vmem = op.startswith(('buffer_', 'global_', 'flat_', 'scratch_'))
        self.ds = op.startswith('ds_')
        self.smem = op.startswith(('s_load', 's_buffer_load', 's_memtime', 's_memrealtime', 's_atomic', 's_buffer_atomic'))
        self.salu = op.startswith('s_') and not self.smem
        self.branch = op.startswith('s_cbranch') or op == 's_branch'
        self.defs, self.uses = set(), set()
        self.srcc = set()
        self.srcab = set()
        self.store_data = set()
        self.lanesel = set()
        self.lds_dma = False
        U = lambda idx: set().union(*[R[i] for i in idx if i < len(R)]) if idx else set()
        n = len(ops)
        if self.mfma:
            self.defs = R[0]
            self.srcab = R[1] | R[2]
            self.srcc = R[3]
            self.uses = self.srcab | self.srcc
            m = re.match(r'v_mfma_\w+?_(\d+)x(\d+)x(\d+)', op)
            mm = int(m.group(1))
            self.passes = 8 if mm == 32 else 4
            if op.endswith('_f32') and not op.endswith('bf16'):
                self.passes = 16 if mm == 32 else 8
            self.sgemm = op.endswith('x2_f32') or op.endswith('x4_f32')
        elif self.valu:
            if op.startswith('v_cmpx'):
                self.defs = R[0] | EXEC
                self.uses = U(range(1, n))
            elif op.startswith('v_cmp'):
                self.defs = R[0]
                self.uses = U(range(1, n))
            elif op in ('v_add_co_u32', 'v_sub_co_u32', 'v_subrev_co_u32', 'v_addc_co_u32', 'v_subb_co_u32',
                        'v_subbrev_co_u32', 'v_div_scale_f32', 'v_mad_u64_u32', 'v_mad_i64_i32'):
                self.defs = R[0] | R[1]
                self.uses = U(range(2, n))
            elif op in ('v_permlane32_swap_b32', 'v_permlane16_swap_b32', 'v_swap_b32'):
                self.defs = R[0] | R[1]
                self.uses = R[0] | R[1]
            elif op == 'v_nop':
                pass
            else:
                self.defs = R[0]
                self.uses = U(range(1, n))
                if op.startswith(('v_fmac', 'v_pk_fmac', 'v_dot2c', 'v_dot4c', 'v_dot8c', 'v_writelane')) or \
                        self.dpp or (self.sdwa and 'UNUSED_PRESERVE' in self.mods):
                    self.uses |= R[0]
                if op == 'v_div_fmas_f32':
                    self.uses |= VCC
                if op == 'v_cndmask_b32' and n == 3:
                    self.uses |= VCC
                if op in ('v_readlane_b32', 'v_writelane_b32'):
                    self.lanesel = R[2]
        elif self.vmem:
            lds = bool(re.search(r'\blds\b', self.mods)) or '_lds_' in op
            self.lds_dma = lds
            if op in ('buffer_wbl2', 'buffer_inv'):
                pass
            elif op.startswith('buffer_'):
                if lds:
                    self.uses = U(range(0, n)) | M0
                elif 'load' in op:
                    self.defs = R[0]
                    self.uses = U(range(1, n))
                    if 'd16' in op:
                        self.uses |= R[0]
                else:
                    self.uses = U(range(0, n))
                    self.store_data = R[0]
                    if 'atomic' in op and re.search(r'\bsc0\b', self.mods):
                        self.defs = R[0]
            else:
                if lds:
                    self.uses = U(range(0, n)) | M0
                elif 'load' in op:
                    self.defs = R[0]
                    self.uses = U(range(1, n))
                elif 'atomic' in op and re.search(r'\bsc0\b', self.mods):
                    self.defs = R[0]
                    self.uses = U(range(1, n))
                    self.store_data = R[2]
                else:
                    self.uses = U(range(0, n))
                    self.store_data = R[1]
        elif self.ds:
            if op.startswith(('ds_read', 'ds_bpermute', 'ds_permute', 'ds_swizzle')) or '_rtn' in op:
                self.defs = R[0]
                self.uses = U(range(1, n))
                if 'd16' in op:
                    self.uses |= R[0]
            else:
                self.uses = U(range(0, n))
            if 'addtid' in op:
                self.uses |= M0
        elif self.smem:
            self.defs = R[0]
            self.uses = U(range(1, n))
        elif self.salu:
            if op.startswith(('s_cmp', 's_bitcmp', 's_waitcnt', 's_nop', 's_barrier', 's_endpgm', 's_sleep',
                              's_setprio', 's_cbranch', 's_branch', 's_setreg', 's_sethalt')):
                self.uses = U(range(0, n))
            else:
                self.defs = R[0]
                self.uses = U(range(1, n))
                if 'saveexec' in op:
                    self.defs |= EXEC
                    self.uses |= EXEC
                if op in ('s_addk_i32', 's_mulk_i32'):
                    self.uses |= R[0]

    def states(self):
        if self.op == 's_nop':
            return int(self.ops[0], 0) + 1
        return 1


def vregs(s):
    return {r for r in s if r[0] in 'va'}


def sregs(s):
    return {r for r in s if r[0] == 's'}


def need(p, c):
    w = 0
    if p.valu:
        sd = sregs(p.defs)
        vd = vregs(p.defs)
        if sd:
            if c.vmem and sd & c.uses:
                w = max(w, 5)
            if c.valu and sd & c.uses:
                w = max(w, 2)
            if c.valu and sd & c.lanesel:
                w = max(w, 4)
            if c.op == 'v_div_fmas_f32' and sd & VCC:
                w = max(w, 4)
            if sd & EXEC:
                if c.valu and c.dpp:
                    w = max(w, 5)
                if c.mfma or c.op in ('v_readlane_b32', 'v_readfirstlane_b32', 'v_writelane_b32') or c.op.startswith('v_permlane'):
                    w = max(w, 4)
        if vd:
            if c.valu and c.dpp and vd & c.uses:
                w = max(w, 2)
            if c.op in ('v_readlane_b32', 'v_readfirstlane_b32') and vd & c.uses:
                w = max(w, 1)
            if c.op.startswith('v_permlane') and vd & c.uses:
                w = max(w, 2)
            if c.mfma and vd & c.uses:
                w = max(w, 2)
            if p.trans and (c.valu or c.mfma) and not c.trans and vd & c.uses:
                w = max(w, 1)
            if (p.sdwa or ('op_sel' in p.mods and not p.op.startswith('v_pk_'))) and c.valu and vd & (c.uses | c.defs):
                w = max(w, 1)
            if p.dot and (vd & (c.uses | c.defs)) and (c.valu or c.mfma or c.vmem or c.ds):
                same_c = (c.op == p.op and not (vd & set().union(*[parse_reg(o) for o in c.ops[1:3]])))
                if not same_c:
                    w = max(w, 3)
    if p.salu and (p.defs & M0):
        if c.lds_dma or (c.ds and 'addtid' in c.op) or c.op.startswith(('s_movrel', 's_sendmsg')):
            w = max(w, 1)
    if p.vmem and len(vregs(p.store_data)) >= 3:
        if vregs(p.store_data) & c.defs:
            w = max(w, 2 if (c.valu or c.mfma) else 1)
    if p.mfma:
        ps = p.passes
        idx = {2: 0, 4: 1, 8: 2, 16: 3}[ps]
        d = p.defs
        if c.mfma:
            if d & c.srcc:
                if d == c.srcc and c.passes == ps and c.sgemm == p.sgemm:
                    w = max(w, (2, 0, 0, 0)[idx])
                else:
                    w = max(w, (4, 6, 10, 18)[idx])
            if d & c.srcab:
                w = max(w, (5, 8, 12, 20)[idx])
            if d & c.defs and not (d & c.srcc):
                w = max(w, (5, 8, 12, 20)[idx])
        elif c.valu or c.vmem or c.ds:
            if d & (c.uses | c.defs):
                w = max(w, (5, 8, 12, 20)[idx])
        if c.valu and (p.srcc & c.defs):
            w = max(w, (1, 3, 7, 15)[idx])
    return w


MAXW = 20


def fix_hazards(lines):
    for _ in range(50):
        ins = [Ins(l) for l in lines]
        labels = {x.label: i for i, x in enumerate(ins) if x.label}
        preds = [[] for _ in ins]
        prev = None
        for i, x in enumerate(ins):
            if i > 0:
                p = ins[i - 1]
                if not (p.is_ins and p.op in ('s_branch', 's_endpgm')):
                    preds[i].append(i - 1)
            if x.is_ins and x.branch:
                preds[labels[x.ops[0]]].append(i)
        inserts = {}
        for i, c in enumerate(ins):
            if not c.is_ins:
                continue
            if not (c.valu or c.mfma or c.vmem or c.ds or c.op.startswith(('s_movrel', 's_sendmsg'))):
                continue
            short = 0
            stack = [(j, 0) for j in preds[i]]
            seen = {}
            while stack:
                j, dist = stack.pop()
                if seen.get(j, 99) <= dist:
                    continue
                seen[j] = dist
                p = ins[j]
                nd = dist
                if p.is_ins:
                    short = max(short, need(p, c) - dist)
                    nd = dist + p.states()
                nd += inserts.get(j, 0)
                if nd < MAXW:
                    stack.extend((k, nd) for k in preds[j])
            if short > 0:
                inserts[i] = short
        if not inserts:
            return lines
        out = []
        for i, l in enumerate(lines):
            n = inserts.get(i, 0)
            while n > 0:
                k = min(n, 16)
                out.append('    s_nop %d' % (k - 1))
                n -= k
            out.append(l)
        lines = out
    raise RuntimeError('hazard pass did not converge')


class Asm:
    def __init__(self):
        self.lines = []
        self.uid = 0

    def __call__(self, text):
        for l in text.split('\n'):
            l = l.strip()
            if not l:
                continue
            if l.endswith(':') or l.startswith('.'):
                self.lines.append(l)
            else:
                self.lines.append('    ' + l)

    def label(self, base):
        self.uid += 1
        return 'L_%s_%d' % (base, self.uid)

    def srd(self, sreg, base, nbytes):
        self('s_mov_b32 s%d, s%d' % (sreg, base))
        self('s_and_b32 s%d, s%d, 0xffff' % (sreg + 1, base + 1))
        self('s_mov_b32 s%d, %d' % (sreg + 2, nbytes))
        self('s_mov_b32 s%d, 0x20000' % (sreg + 3))

    def body(self):
        return '\n'.join(fix_hazards(self.lines)) + '\n'


def kernel_text(name, body, vgpr, sgpr=102, accum=None):
    accum = accum if accum is not None else min(256, (vgpr + 3) // 4 * 4)
    code = '.text\n.globl %s\n.p2align 8\n.type %s,@function\n%s:\n%s' % (name, name, name, body)
    desc = ('.section .rodata,"a"\n.p2align 6\n.amdhsa_kernel %s\n  .amdhsa_next_free_vgpr %d\n'
            '  .amdhsa_next_free_sgpr %d\n  .amdhsa_accum_offset %d\n  .amdhsa_group_segment_fixed_size 0\n'
            '  .amdhsa_kernarg_size 128\n  .amdhsa_user_sgpr_count 2\n  .amdhsa_user_sgpr_kernarg_segment_ptr 1\n'
            '  .amdhsa_system_sgpr_workgroup_id_x 1\n  .amdhsa_float_denorm_mode_32 3\n.end_amdhsa_kernel\n') % (name, vgpr, sgpr, accum)
    return code, desc
```

```python
import sys
sys.path.insert(0, 'gen')
from asmlib import *

NAME = 'adaLN_cond__ssm_conv_h3__moe_arch_mod__prompt'
HEADER = open('cdna_kernels/%s.s.ref' % NAME).read().split('; Override launch')[0]

F1, F2, MODG, KEYS = 0x1000, 0x9000, 0x10000, 0x14000
H2G, BASEG, PART = 0x20000, 0x80000, 0x120000
KVX, ZX, DIAG = 0x200000, 0x500000, 0x800000
WS_BYTES = 0x900000
KC, KPITCH = 0, 4160
RV, RPITCH = 66560, 4576
PS = 84864
ZS = 100224
QS, QPITCH = 120704, 1312
PAR = 141696
ACC = 157056
ST2, CS, GU, MODACC, RED, KEYMAX = ACC, ACC + 256, ACC + 320, ACC + 576, ACC + 832, ACC + 960
ST1 = ACC + 1024
LDS_BYTES = ST1 + 128

N_CONV, N_ROW = 160, 128
MOD0, N_MOD = 160, 60
MLP0, N_MLP = 202, 54
RED0, N_RED = 160, 20
SPIN = 1 << 16
GROUPS = [('row', slice(0, 128)), ('conv', slice(128, 160)), ('red', slice(160, 180)), ('mod', slice(180, 202)), ('mm', slice(202, 220)), ('mlp', slice(220, 256))]

sK, sV, sSH, sWS, sSK, sD, sQ, sWR, sWG, sWU, sWD, sC, sWM, sO = [4 + 4 * i for i in range(14)]
SIZES = {sK: 2621440, sV: 2621440, sSH: 5120, sWS: WS_BYTES, sSK: 2621440, sD: 1280, sQ: 2621440, sWR: 1280,
         sWG: 2211840, sWU: 2211840, sWD: 2211840, sC: 1280, sWM: 4915200, sO: 2621440}
SLOT = {sQ: 0, sK: 1, sV: 2, sSH: 3, sSK: 4, sD: 5, sWR: 7, sWG: 8, sWU: 9, sWD: 10, sC: 11, sWM: 12, sO: 13, sWS: 15}
TAG, WV, T64, HI = 60, 61, 62, 63
OOB = '0x7fffffff'
DPP = 'row_mask:0xf bank_mask:0xf'


def srd(s):
    return 's[%d:%d]' % (s, s + 3)


def vr(a, n):
    return 'v[%d:%d]' % (a, a + n - 1)


class Gen:
    def __init__(self, diag=False):
        self.a = Asm()
        self.diag = diag

    def stamp(self, i):
        if self.diag:
            a = self.a
            a('s_memrealtime s[100:101]')
            a('s_waitcnt lgkmcnt(0)')
            a('s_mov_b32 s%d, s100' % (84 + i))

    def unpack(self, dst_lo, dst_hi, src):
        self.a('v_lshlrev_b32 v%d, 16, v%d' % (dst_lo, src))
        self.a('v_and_b32 v%d, s%d, v%d' % (dst_hi, HI, src))

    def spin_head(self, name):
        a = self.a
        l, d = a.label(name), a.label(name + '_done')
        a('s_mov_b32 s79, 0')
        a('%s:' % l)
        return l, d

    def spin_bound(self, d):
        a = self.a
        a('s_add_u32 s79, s79, 1')
        a('s_cmp_gt_u32 s79, %d' % SPIN)
        a('s_cbranch_scc1 %s' % d)

    def poll16(self, name, vaddr, vtmp):
        a = self.a
        a('s_mov_b64 exec, 0xffff')
        l, d = self.spin_head(name)
        a('buffer_load_dword v%d, v%d, %s, 0 offen sc1' % (vtmp, vaddr, srd(sWS)))
        self.spin_bound(d)
        a('s_waitcnt vmcnt(0)')
        a('v_cmp_ne_u32 vcc, s%d, v%d' % (TAG, vtmp))
        a('s_cbranch_vccnz %s' % l)
        a('%s:' % d)
        a('s_mov_b64 exec, -1')

    def set_flag(self, s_off):
        a = self.a
        l = a.label('noflag')
        a('s_cmp_lg_u32 s%d, 9' % WV)
        a('s_cbranch_scc1 %s' % l)
        a('v_mov_b32 v166, s%d' % s_off)
        a('v_mov_b32 v167, s%d' % TAG)
        a('s_mov_b64 exec, 1')
        a('buffer_store_dword v167, v166, %s, 0 offen sc1' % srd(sWS))
        a('s_mov_b64 exec, -1')
        a('%s:' % l)

    def silu(self, x, t):
        a = self.a
        a('v_mul_f32 v%d, 0xbfb8aa3b, v%d' % (t, x))
        a('v_exp_f32 v%d, v%d' % (t, t))
        a('v_add_f32 v%d, 1.0, v%d' % (t, t))
        a('v_rcp_f32 v%d, v%d' % (t, t))
        a('v_mul_f32 v%d, v%d, v%d' % (x, x, t))

    def row_allreduce16(self, regs):
        for sh in (1, 2, 4, 8):
            for r in regs:
                self.a('v_add_f32_dpp v%d, v%d, v%d row_ror:%d %s' % (r, r, r, sh, DPP))

    def reduce4x4(self, r):
        a = self.a
        a('v_permlane32_swap_b32 v%d, v%d' % (r, r + 2))
        a('v_permlane32_swap_b32 v%d, v%d' % (r + 1, r + 3))
        a('v_add_f32 v%d, v%d, v%d' % (r, r, r + 2))
        a('v_add_f32 v%d, v%d, v%d' % (r + 1, r + 1, r + 3))
        a('v_permlane16_swap_b32 v%d, v%d' % (r, r + 1))
        a('v_add_f32 v%d, v%d, v%d' % (r, r, r + 1))

    def pair_rows(self, dst, x, y):
        self.a('v_perm_b32 v%d, v%d, v%d, s64' % (dst, y, x))
        self.a('v_perm_b32 v%d, v%d, v%d, s65' % (dst + 1, y, x))

    def prologue(self):
        a = self.a
        a('s_getpc_b64 s[66:67]')
        if self.diag:
            for i in range(16):
                a('s_mov_b32 s%d, 0' % (84 + i))
        self.stamp(0)
        a('s_cmp_ge_u32 s2, 256')
        a('s_cbranch_scc1 L_exit')
        for s in (sK, sV, sSH, sWS, sSK, sD):
            a('s_load_dwordx2 s[%d:%d], s[0:1], %d' % (s, s + 1, 8 * SLOT[s]))
        a('v_readfirstlane_b32 s%d, v0' % T64)
        a('v_and_b32 v1, 63, v0')
        a('s_lshr_b32 s%d, s%d, 6' % (WV, T64))
        a('s_cmp_lt_u32 s%d, 8' % WV)
        a('s_cbranch_scc1 L_nopf')
        a('v_subrev_u32 v2, 512, v0')
        a('v_lshlrev_b32 v2, 7, v2')
        a('v_min_u32 v2, CODE_LIMIT, v2')
        a('v_mov_b32 v165, s67')
        a('v_add_co_u32 v164, vcc, s66, v2')
        a('v_addc_co_u32 v165, vcc, 0, v165, vcc')
        a('global_load_dword v163, v[164:165], off')
        a('L_nopf:')
        for s, n in SIZES.items():
            a('s_mov_b32 s%d, %d' % (s + 2, n))
            a('s_mov_b32 s%d, 0x20000' % (s + 3))
        a('s_mov_b32 s%d, 0xffff0000' % HI)
        a('s_lshr_b32 s70, s2, 1')
        a('s_and_b32 s71, s2, 1')
        a('v_bfe_u32 v40, v0, 4, 2')
        a('v_and_b32 v41, 15, v0')
        a('v_mul_u32_u24 v2, 5120, v40')
        a('v_lshl_add_u32 v2, v41, 2, v2')
        a('s_mul_i32 s72, s70, 20480')
        a('s_mul_i32 s73, s71, 640')
        a('s_add_u32 s72, s72, s73')
        a('s_add_u32 s72, s72, s%d' % T64)
        a('v_add_u32 v2, s72, v2')
        a('v_subrev_u32 v3, 3840, v2')
        a('s_add_u32 s73, s73, s%d' % T64)
        a('s_lshl_b32 s73, s73, 2')
        a('v_lshl_add_u32 v4, v41, 4, s73')
        a('s_cmp_ge_u32 s%d, 5' % WV)
        a('s_cselect_b32 s74, 1, 0')
        a('s_mul_i32 s75, s74, 320')
        a('v_subrev_u32 v5, s75, v0')
        a('s_lshl_b32 s75, s2, 2')
        a('s_add_u32 s75, s75, s74')
        a('s_lshl_b32 s76, s75, 12')
        a('s_sub_u32 s76, s76, 32')
        a('v_lshl_add_u32 v6, v5, 4, s76')
        a('v_add_u32 v7, 16, v6')
        a('v_mov_b32 v42, %s' % OOB)
        a('v_subrev_u32 v43, 2, v5')
        a('v_cmp_gt_u32 vcc, 256, v43')
        a('v_cndmask_b32 v6, v42, v6, vcc')
        a('v_subrev_u32 v43, 1, v5')
        a('v_cmp_gt_u32 vcc, 256, v43')
        a('v_cndmask_b32 v7, v42, v7, vcc')
        a('s_lshl_b32 s75, s75, 1')
        a('v_mov_b32 v19, s75')
        a('s_movk_i32 s77, 0x2000')
        a('s_waitcnt lgkmcnt(0)')
        a('s_load_dword s%d, s[%d:%d], 0' % (TAG, sWS, sWS + 1))
        a('buffer_load_dwordx4 v[20:23], v4, %s, 0 offen' % srd(sSH))
        for i in range(3):
            a('buffer_load_dword v%d, v3, %s, 0 offen offset:%d' % (8 + i, srd(sK), 1280 * i))
        for i in range(4):
            a('buffer_load_dword v%d, v2, %s, 0 offen offset:%d' % (11 + i, srd(sK), 1280 * i))
        for i in range(4):
            a('buffer_load_dword v%d, v2, %s, 0 offen offset:%d' % (15 + i, srd(sV), 1280 * i))
        a('buffer_load_dwordx4 v[24:27], v6, %s, 0 offen' % srd(sSK))
        a('buffer_load_dwordx2 v[28:29], v7, %s, 0 offen' % srd(sSK))
        a('buffer_load_dwordx4 v[32:35], v6, %s, s77 offen' % srd(sSK))
        a('buffer_load_dwordx2 v[36:37], v7, %s, s77 offen' % srd(sSK))
        a('buffer_load_ushort v30, v19, %s, 0 offen' % srd(sD))
        a('buffer_load_ushort v38, v19, %s, 0 offen offset:4' % srd(sD))
        for s in (sQ, sWR, sWG, sWU, sWD, sC):
            a('s_load_dwordx2 s[%d:%d], s[0:1], %d' % (s, s + 1, 8 * SLOT[s]))
        a('v_lshlrev_b32 v42, 2, v0')
        a('v_min_u32 v42, 1020, v42')
        a('v_add_u32 v42, %d, v42' % ACC)
        a('v_mov_b32 v43, 0')
        a('ds_write_b32 v42, v43')
        a('s_mul_i32 s72, s%d, 1536' % WV)
        a('s_add_u32 s72, s72, %d' % PS)
        a('v_mul_u32_u24 v84, 384, v40')
        a('v_lshl_add_u32 v84, v41, 4, v84')
        a('v_add_u32 v84, s72, v84')
        a('v_bfe_u32 v42, v0, 1, 2')
        a('v_mul_u32_u24 v85, 384, v42')
        a('v_lshrrev_b32 v42, 3, v1')
        a('v_lshl_add_u32 v85, v42, 5, v85')
        a('v_and_b32 v43, 1, v0')
        a('v_lshl_add_u32 v85, v43, 4, v85')
        a('v_add_u32 v85, s72, v85')
        a('s_mul_i32 s72, s71, %d' % (80 * 16384))
        a('s_lshl_b32 s73, s70, 7')
        a('s_add_u32 s72, s72, s73')
        a('s_add_u32 s72, s72, %d' % KVX)
        a('v_lshrrev_b32 v86, 3, v0')
        a('v_lshlrev_b32 v86, 14, v86')
        a('v_and_b32 v87, 7, v0')
        a('v_lshl_add_u32 v86, v87, 4, v86')
        a('v_add_u32 v86, s72, v86')
        a('s_lshl_b32 s72, s71, 14')
        a('s_add_u32 s72, s72, s73')
        a('s_add_u32 s78, s72, %d' % F1)
        a('s_waitcnt lgkmcnt(0)')
        for s in (sWM, sO):
            a('s_load_dwordx2 s[%d:%d], s[0:1], %d' % (s, s + 1, 8 * SLOT[s]))
        a('s_mul_i32 s%d, s%d, 0x9e3779b1' % (TAG, TAG))
        a('s_add_u32 s%d, s%d, 0x7f4a7c15' % (TAG, TAG))
        a('s_waitcnt vmcnt(17)')
        for j in range(4):
            src0, src1 = 20 + j // 2, 22 + j // 2
            for dst, src in ((40 + 2 * j, src0), (41 + 2 * j, src1)):
                if j % 2 == 0:
                    a('v_lshlrev_b32 v%d, 16, v%d' % (dst, src))
                else:
                    a('v_and_b32 v%d, s%d, v%d' % (dst, HI, src))
        a('s_waitcnt vmcnt(10)')
        for i in range(7):
            self.unpack(48 + 2 * i, 49 + 2 * i, 8 + i)
        for j in range(4):
            for r in range(4):
                kp = 48 + 2 * (r + 3 - j)
                if j == 0:
                    a('v_pk_mul_f32 %s, %s, %s' % (vr(70 + 2 * r, 2), vr(40, 2), vr(kp, 2)))
                else:
                    a('v_pk_fma_f32 %s, %s, %s, %s' % (vr(70 + 2 * r, 2), vr(40 + 2 * j, 2), vr(kp, 2), vr(70 + 2 * r, 2)))
        a('s_waitcnt vmcnt(6)')
        for i in range(4):
            self.unpack(62 + 2 * i, 63 + 2 * i, 15 + i)
        for r in range(4):
            a('v_pk_mul_f32 %s, %s, %s' % (vr(70 + 2 * r, 2), vr(70 + 2 * r, 2), vr(62 + 2 * r, 2)))
        a('v_cvt_pk_bf16_f32 v80, v76, v74')
        a('v_cvt_pk_bf16_f32 v81, v72, v70')
        a('v_cvt_pk_bf16_f32 v82, v77, v75')
        a('v_cvt_pk_bf16_f32 v83, v73, v71')
        a('ds_write_b128 v84, v[80:83]')
        a('ds_read_b128 v[80:83], v85')
        a('s_waitcnt lgkmcnt(0)')
        a('buffer_store_dwordx4 v[80:83], v86, %s, 0 offen sc1' % srd(sWS))
        self.stamp(1)
        a('s_waitcnt vmcnt(0)')
        a('s_barrier')
        self.set_flag(78)
        self.stamp(2)
        a('s_cmp_ge_u32 s2, %d' % N_CONV)
        a('s_cbranch_scc1 L_nonconv')

    def conv(self):
        a = self.a
        a('v_cmp_eq_u32 s[64:65], 2, v5')
        a('v_cmp_eq_u32 s[66:67], 1, v5')
        a('s_mov_b32 s68, 0xffff')
        a('s_mul_i32 s72, s74, %d' % (4 * KPITCH))
        a('v_lshl_add_u32 v39, v5, 4, s72')
        a('v_cmp_gt_u32 vcc, 258, v5')
        a('s_mov_b64 exec, vcc')
        for rho, (d, dd) in enumerate(((24, 30), (32, 38))):
            a('v_cndmask_b32 v40, v%d, v%d, s[64:65]' % (d + 4, d))
            a('v_lshlrev_b32 v41, 16, v40')
            a('v_lshlrev_b32 v42, 16, v%d' % dd)
            a('v_add_f32 v41, v41, v42')
            a('v_cvt_pk_bf16_f32 v41, v41, v41')
            a('v_bfi_b32 v40, s68, v41, v40')
            a('v_cndmask_b32 v%d, v%d, v40, s[64:65]' % (d, d))
            a('v_cndmask_b32 v%d, v%d, v40, s[66:67]' % (d + 4, d + 4))
            t = 44 + 12 * rho
            for i in range(4):
                a('v_alignbit_b32 v%d, v%d, v%d, 16' % (t + i, d + i + 1, d + i))
                a('v_mov_b32 v%d, v%d' % (t + 4 + i, d + i + 1))
                a('v_alignbit_b32 v%d, v%d, v%d, 16' % (t + 8 + i, d + i + 2, d + i + 1))
            for s, r in enumerate((d, t, t + 4, t + 8)):
                a('ds_write_b128 v39, %s offset:%d' % (vr(r, 4), KC + (8 * rho + s) * KPITCH))
        a('s_mov_b64 exec, -1')
        a('v_lshrrev_b32 v40, 5, v0')
        a('v_min_u32 v40, 3, v40')
        a('v_mul_u32_u24 v40, %d, v40' % RPITCH)
        a('v_and_b32 v41, 31, v0')
        a('v_min_u32 v41, 29, v41')
        a('v_lshl_add_u32 v40, v41, 4, v40')
        a('v_add_u32 v40, %d, v40' % (RV + 4096))
        for i in range(4):
            a('v_mov_b32 v%d, 0' % (68 + i))
        a('s_cmp_ge_u32 s%d, 2' % WV)
        a('s_cbranch_scc1 L_nozero')
        a('ds_write_b128 v40, v[68:71]')
        a('L_nozero:')
        a('v_and_b32 v40, 15, v1')
        a('v_lshrrev_b32 v41, 4, v1')
        a('v_lshl_add_u32 v42, v41, 3, v40')
        a('v_add_u32 v42, 1, v42')
        a('v_and_b32 v43, 3, v42')
        a('v_sub_u32 v42, v42, v43')
        a('v_mul_u32_u24 v43, %d, v43' % KPITCH)
        a('v_lshl_add_u32 v160, v42, 1, v43')
        a('s_mul_i32 s72, s%d, %d' % (WV, 4 * KPITCH))
        a('v_add_u32 v160, s72, v160')
        a('s_mul_i32 s72, s%d, %d' % (WV, RPITCH))
        a('s_add_u32 s72, s72, %d' % (RV + 480))
        a('v_lshl_add_u32 v161, v41, 4, s72')
        a('v_lshlrev_b32 v42, 5, v40')
        a('v_sub_u32 v161, v161, v42')
        a('s_mul_i32 s72, s%d, 5120' % WV)
        a('s_add_u32 s72, s72, %d' % ZS)
        a('v_mul_u32_u24 v162, 160, v41')
        a('v_lshl_add_u32 v162, v40, 3, v162')
        a('v_add_u32 v162, s72, v162')
        a('s_cmp_ge_u32 s2, 80')
        a('s_cselect_b32 s72, 128, 0')
        a('s_lshl_b32 s73, s%d, 4' % WV)
        a('s_add_u32 s72, s72, s73')
        a('v_add_u32 v8, s72, v40')
        a('v_lshlrev_b32 v8, 7, v8')
        a('v_add_u32 v8, %d, v8' % F1)
        a('s_lshl_b32 s72, s2, 14')
        a('s_lshl_b32 s73, s%d, 11' % WV)
        a('s_add_u32 s72, s72, s73')
        a('s_add_u32 s72, s72, %d' % KVX)
        a('v_lshl_add_u32 v9, v1, 4, s72')
        a('s_lshl_b32 s73, s%d, 9' % WV)
        a('s_sub_u32 s72, %d, s73' % (RV + 3832))
        a('v_and_b32 v42, 1, v1')
        a('v_mul_u32_u24 v10, %d, v42' % (2 * RPITCH))
        a('v_add_u32 v10, s72, v10')
        a('v_lshrrev_b32 v42, 1, v1')
        a('v_lshlrev_b32 v42, 3, v42')
        a('v_sub_u32 v10, v10, v42')
        for i in range(32):
            a('v_mov_b32 v%d, 0' % (64 + i))
        a('s_waitcnt lgkmcnt(0)')
        a('s_barrier')
        self.stamp(3)
        A = lambda i: 96 + 4 * i
        B = lambda j: 128 + 4 * j

        def ldA(i, nxt):
            o = 512 * i + (64 if nxt else 0)
            return ['ds_read_b64 %s, v160 offset:%d' % (vr(A(i), 2), o),
                    'ds_read_b64 %s, v160 offset:%d' % (vr(A(i) + 2, 2), o + 8)]

        def ldB(j, nxt):
            return ['ds_read_b128 %s, v161 offset:%d' % (vr(B(j), 4), 512 * (7 - j) + (64 if nxt else 0))]

        a('s_cmp_ge_u32 s%d, 4' % WV)
        a('s_cbranch_scc1 L_noA')
        for i in range(7, 0, -1):
            for l in ldA(i, False):
                a(l)
        a('L_noA:')
        a('s_cmp_ge_u32 s%d, 8' % WV)
        a('s_cbranch_scc1 L_kvdone')
        self.poll16('f1', 8, 11)
        self.stamp(4)
        a('buffer_load_dwordx4 v[12:15], v9, %s, 0 offen sc1' % srd(sWS))
        a('buffer_load_dwordx4 v[16:19], v9, %s, 0 offen offset:1024 sc1' % srd(sWS))
        a('s_waitcnt vmcnt(1)')
        a('ds_write_b64 v10, v[12:13] offset:256')
        a('ds_write_b64 v10, v[14:15] offset:%d' % (256 + RPITCH))
        a('s_waitcnt vmcnt(0)')
        a('ds_write_b64 v10, v[16:17]')
        a('ds_write_b64 v10, v[18:19] offset:%d' % RPITCH)
        a('L_kvdone:')
        a('s_waitcnt lgkmcnt(0)')
        a('s_barrier')
        self.stamp(5)
        a('s_cmp_ge_u32 s%d, 4' % WV)
        a('s_cbranch_scc1 L_helper')
        for j in range(4):
            a(ldB(j, False)[0])
        order = [(7, 0), (6, 0), (5, 0), (4, 0), (6, 1), (5, 1), (4, 1), (5, 2), (4, 2), (4, 3)]
        order += [(i, j) for j in range(4) for i in (3, 2, 1, 0)]
        order += [(3, 4), (2, 4), (2, 5), (1, 4), (1, 5), (1, 6), (0, 4), (0, 5), (0, 6), (0, 7)]
        after = {}

        def place(slot, key, lines):
            for k, l in enumerate(lines):
                after.setdefault(slot + k, []).append((key, l))
        place(1, 'A0', ldA(0, False))
        place(3, 'A7', ldA(7, True))
        place(5, 'A6', ldA(6, True))
        place(7, 'B4', ldB(4, False))
        place(8, 'A5', ldA(5, True))
        place(10, 'A4', ldA(4, True))
        place(12, 'B5', ldB(5, False))
        place(13, 'B6', ldB(6, False))
        place(14, 'B0', ldB(0, True))
        place(15, 'B7', ldB(7, False))
        place(18, 'B1', ldB(1, True))
        place(22, 'B2', ldB(2, True))
        place(26, 'B3', ldB(3, True))
        place(27, 'A3', ldA(3, True))
        place(29, 'A2', ldA(2, True))
        place(32, 'A1', ldA(1, True))
        issued, last, done = 0, {}, 0
        waits, hist = {}, []
        for it in range(4):
            for slot, (i, j) in enumerate(order, 1):
                needed = max(last.get('A%d' % i, 0), last.get('B%d' % j, 0))
                if needed > done:
                    n = min(issued - needed, sum(hist[-8:]))
                    done = issued - n
                    waits.setdefault(it, {})[slot] = n
                hist.append(len(after.get(slot, [])))
                for key, l in after.get(slot, []):
                    issued += 1
                    last[key] = issued
        assert waits[2] == waits[3]
        waits = waits[3]
        a('s_mov_b32 s72, 0')
        a('s_waitcnt lgkmcnt(0)')
        a('.p2align 3')
        a('L_mfma:')
        for slot, (i, j) in enumerate(order, 1):
            if slot in waits:
                a('s_waitcnt lgkmcnt(%d)' % waits[slot])
            g = 64 + 4 * (i + j)
            a('v_mfma_f32_16x16x32_bf16 %s, %s, %s, %s' % (vr(g, 4), vr(A(i), 4), vr(B(j), 4), vr(g, 4)))
            for key, l in after.get(slot, []):
                a(l)
            if slot == 34:
                a('v_add_u32 v160, 64, v160')
                a('v_add_u32 v161, 64, v161')
            if slot == 35:
                a('s_add_u32 s72, s72, 1')
                a('s_cmp_lt_u32 s72, 8')
        a('s_cbranch_scc1 L_mfma')
        a('s_waitcnt lgkmcnt(0)')
        self.stamp(6)
        for g in range(8):
            r = 64 + 4 * g
            a('v_cvt_pk_bf16_f32 v%d, v%d, v%d' % (96 + 2 * g, r, r + 1))
            a('v_cvt_pk_bf16_f32 v%d, v%d, v%d' % (97 + 2 * g, r + 2, r + 3))
            a('ds_write_b64 v162, %s offset:%d' % (vr(96 + 2 * g, 2), 640 * g))
        a('s_branch L_zjoin')
        a('L_helper:')
        a('s_cmp_ge_u32 s2, %d' % N_ROW)
        a('s_cbranch_scc1 L_zjoin')
        self.helper()
        a('L_zjoin:')
        a('v_lshrrev_b32 v40, 3, v1')
        a('v_and_b32 v41, 7, v1')
        a('v_lshrrev_b32 v42, 1, v41')
        a('v_mul_u32_u24 v8, 160, v42')
        a('v_lshl_add_u32 v8, v40, 3, v8')
        a('v_and_b32 v42, 1, v41')
        a('v_lshl_add_u32 v8, v42, 2, v8')
        a('s_mul_i32 s72, s%d, 640' % WV)
        a('s_add_u32 s72, s72, %d' % ZS)
        a('v_add_u32 v8, s72, v8')
        a('v_add_u32 v9, 64, v8')
        a('s_mul_i32 s72, s%d, %d' % (WV, 16 * 20480))
        a('s_lshl_b32 s73, s2, 7')
        a('s_add_u32 s72, s72, s73')
        a('s_add_u32 s72, s72, %d' % ZX)
        a('v_mul_u32_u24 v10, 20480, v40')
        a('v_lshl_add_u32 v10, v41, 4, v10')
        a('v_add_u32 v10, s72, v10')
        a('s_add_u32 s78, s73, %d' % F2)
        a('s_mov_b32 s77, %d' % (8 * 20480))
        a('s_waitcnt lgkmcnt(0)')
        a('s_barrier')
        self.stamp(7)
        a('s_cmp_ge_u32 s%d, 8' % WV)
        a('s_cbranch_scc1 L_zdone')
        a('ds_read2st64_b32 v[12:13], v8 offset0:0 offset1:20')
        a('ds_read2st64_b32 v[14:15], v8 offset0:40 offset1:60')
        a('ds_read2st64_b32 v[16:17], v9 offset0:0 offset1:20')
        a('ds_read2st64_b32 v[18:19], v9 offset0:40 offset1:60')
        a('s_waitcnt lgkmcnt(2)')
        a('buffer_store_dwordx4 v[12:15], v10, %s, 0 offen sc1' % srd(sWS))
        a('s_waitcnt lgkmcnt(0)')
        a('buffer_store_dwordx4 v[16:19], v10, %s, s77 offen sc1' % srd(sWS))
        a('s_waitcnt vmcnt(0)')
        a('L_zdone:')
        a('s_barrier')
        self.set_flag(78)
        self.stamp(8)
        a('s_cmp_ge_u32 s2, %d' % N_ROW)
        a('s_cbranch_scc1 L_end')

    def helper(self):
        a = self.a
        a('s_cmp_ge_u32 s%d, 8' % WV)
        a('s_cbranch_scc1 L_hmod')
        a('v_lshrrev_b32 v40, 4, v1')
        a('v_and_b32 v41, 15, v1')
        a('s_sub_u32 s72, s%d, 4' % WV)
        a('s_lshl_b32 s72, s72, 2')
        a('v_add_u32 v40, s72, v40')
        a('s_mul_i32 s73, s2, 20480')
        a('v_mul_u32_u24 v2, 1280, v40')
        a('v_lshl_add_u32 v2, v41, 4, v2')
        a('v_add_u32 v2, s73, v2')
        for i in range(5):
            a('buffer_load_dwordx4 %s, v2, %s, 0 offen offset:%d' % (vr(8 + 4 * i, 4), srd(sQ), 256 * i))
        a('v_mul_u32_u24 v3, %d, v40' % QPITCH)
        a('v_lshl_add_u32 v3, v41, 4, v3')
        a('v_add_u32 v3, %d, v3' % QS)
        a('v_lshrrev_b32 v4, 1, v40')
        a('v_lshlrev_b32 v4, 4, v4')
        a('v_and_b32 v42, 1, v40')
        a('v_lshl_add_u32 v4, v42, 2, v4')
        a('v_add_u32 v4, %d, v4' % ST1)
        a('s_waitcnt vmcnt(0)')
        for i in range(5):
            a('ds_write_b128 v3, %s offset:%d' % (vr(8 + 4 * i, 4), 256 * i))
        for i in range(20):
            self.unpack(44 + 2 * i, 45 + 2 * i, 8 + i)
        a('v_pk_add_f32 v[28:29], v[44:45], v[46:47]')
        for i in range(2, 20):
            a('v_pk_add_f32 v[28:29], v[28:29], %s' % vr(44 + 2 * i, 2))
        a('v_add_f32 v28, v28, v29')
        self.row_allreduce16([28])
        a('v_mul_f32 v28, 0xbacccccd, v28')
        for i in range(20):
            a('v_pk_add_f32 %s, %s, v[28:29] op_sel_hi:[1,0]' % (vr(44 + 2 * i, 2), vr(44 + 2 * i, 2)))
        a('v_pk_mul_f32 v[30:31], v[44:45], v[44:45]')
        for i in range(1, 20):
            a('v_pk_fma_f32 v[30:31], %s, %s, v[30:31]' % (vr(44 + 2 * i, 2), vr(44 + 2 * i, 2)))
        a('v_add_f32 v30, v30, v31')
        self.row_allreduce16([30])
        a('v_mov_b32 v31, 0x3727c5ac')
        a('v_fmac_f32 v31, 0x3acccccd, v30')
        a('v_rsq_f32 v31, v31')
        a('v_mul_f32 v28, v28, v31')
        a('ds_write2_b32 v4, v31, v28 offset0:0 offset1:2')
        a('L_hmod:')
        a('s_cmp_ge_u32 s%d, 9' % WV)
        a('s_cbranch_scc1 L_zjoin')
        a('v_subrev_u32 v40, 256, v0')
        a('v_lshlrev_b32 v2, 2, v40')
        a('buffer_load_dword v20, v2, %s, 0 offen' % srd(sWR))
        a('v_lshlrev_b32 v3, 3, v40')
        a('v_add_u32 v4, %d, v3' % PAR)
        a('v_add_u32 v3, %d, v3' % MODG)
        a('s_movk_i32 s72, 5120')
        a('s_movk_i32 s73, 10240')
        l, d = self.spin_head('mod')
        for v in range(6):
            a('buffer_load_dwordx2 %s, v3, %s, %s offen offset:%d sc1' % (vr(8 + 2 * v, 2), srd(sWS), ('0', 's72', 's73')[v // 2], 2560 * (v % 2)))
        self.spin_bound(d)
        a('s_waitcnt vmcnt(0)')
        for v in range(6):
            a('v_xor_b32 v%d, s%d, v%d' % (9 + 2 * v, TAG, 9 + 2 * v))
        a('v_or3_b32 v9, v9, v11, v13')
        a('v_or3_b32 v15, v15, v17, v19')
        a('v_or_b32 v9, v9, v15')
        a('v_cmp_ne_u32 vcc, 0, v9')
        a('s_cbranch_vccnz %s' % l)
        a('%s:' % d)
        a('s_waitcnt vmcnt(0)')
        for v in range(7):
            self.unpack(24 + 2 * v, 25 + 2 * v, 8 + 2 * v)
        for r in (26, 27, 32, 33):
            a('v_add_f32 v%d, 1.0, v%d' % (r, r))
            a('v_cvt_pk_bf16_f32 v%d, 0, v%d' % (r, r))
        a('v_pk_mul_f32 v[26:27], v[26:27], v[28:29]')
        a('v_pk_mul_f32 v[24:25], v[24:25], v[28:29]')
        a('v_pk_mul_f32 v[38:39], v[30:31], v[36:37]')
        a('v_pk_mul_f32 v[36:37], v[32:33], v[36:37]')
        for v, r in enumerate((26, 24, 32, 30, 34, 36)):
            a('ds_write_b64 v4, %s offset:%d' % (vr(r, 2), 2560 * v))
        a('v_add_f32 v40, v36, v37')
        a('v_add_f32 v41, v38, v39')
        self.row_allreduce16([40, 41])
        a('v_mov_b32 v42, %d' % CS)
        a('s_mov_b32 exec_lo, 0x00010001')
        a('s_mov_b32 exec_hi, 0x00010001')
        a('ds_add_f32 v42, v40')
        a('ds_add_f32 v42, v41 offset:4')
        a('s_mov_b64 exec, -1')

    def rows(self):
        a = self.a
        Q, P, Z = 80, 96, 120
        sel = lambda s: 'op_sel:[0,%d,%d] op_sel_hi:[1,%d,%d]' % (s, s, s, s)
        a('v_mul_u32_u24 v2, %d, v41' % (2 * QPITCH))
        a('v_lshl_add_u32 v2, v40, 4, v2')
        a('s_lshl_b32 s72, s%d, 7' % WV)
        a('s_add_u32 s73, s72, %d' % QS)
        a('v_add_u32 v2, s73, v2')
        a('ds_read_b128 v[8:11], v2')
        a('ds_read_b128 v[12:15], v2 offset:%d' % QPITCH)
        a('v_lshlrev_b32 v3, 4, v41')
        a('v_add_u32 v3, %d, v3' % ST1)
        a('ds_read_b128 v[16:19], v3')
        a('s_lshl_b32 s74, s%d, 8' % WV)
        a('s_add_u32 s75, s74, %d' % PAR)
        a('v_lshl_add_u32 v4, v40, 5, s75')
        par = (24, 32, 44, 52, 60, 68)
        for v in range(6):
            a('ds_read_b128 %s, v4 offset:%d' % (vr(par[v], 4), 2560 * v))
            a('ds_read_b128 %s, v4 offset:%d' % (vr(par[v] + 4, 4), 2560 * v + 16))
        A1, A2, B1, B2, G, W = par
        a('v_mov_b32 v5, %d' % CS)
        a('s_waitcnt lgkmcnt(8)')
        a('ds_read_b64 v[76:77], v5')
        for c in range(8):
            for rho in range(2):
                src = 8 + 4 * rho + c // 2
                if c % 2 == 0:
                    a('v_lshlrev_b32 v%d, 16, v%d' % (Q + 2 * c + rho, src))
                else:
                    a('v_and_b32 v%d, s%d, v%d' % (Q + 2 * c + rho, HI, src))
        for c in range(8):
            a('v_pk_fma_f32 %s, %s, v[16:17], v[18:19]' % (vr(P + 2 * c, 2), vr(Q + 2 * c, 2)))
        for c in range(8):
            e = c & ~1
            a('v_pk_fma_f32 %s, %s, %s, %s %s' % (vr(P + 2 * c, 2), vr(P + 2 * c, 2), vr(A1 + e, 2), vr(A2 + e, 2), sel(c & 1)))
        a('v_and_b32 v42, 15, v1')
        a('s_lshl_b32 s75, s%d, 11' % WV)
        a('s_add_u32 s76, s75, %d' % F2)
        a('v_lshl_add_u32 v6, v42, 7, s76')
        a('s_mul_i32 s76, s2, 20480')
        a('s_add_u32 s75, s75, s76')
        a('s_add_u32 s75, s75, %d' % ZX)
        a('v_lshlrev_b32 v7, 8, v40')
        a('v_lshl_add_u32 v7, v41, 4, v7')
        a('v_add_u32 v7, s75, v7')
        a('v_bfe_u32 v42, v1, 4, 1')
        a('v_bfe_u32 v43, v1, 3, 1')
        a('v_lshl_add_u32 v42, v43, 1, v42')
        a('v_min_u32 v42, 2, v42')
        a('v_lshlrev_b32 v20, 5, v41')
        a('v_add_u32 v21, %d, v20' % ST2)
        a('v_lshl_add_u32 v20, v42, 3, v21')
        a('v_lshrrev_b32 v42, 5, v1')
        a('v_lshl_add_u32 v20, v42, 2, v20')
        a('s_lshl_b32 s75, s2, 4')
        a('s_sub_u32 s75, 2047, s75')
        a('v_lshlrev_b32 v22, 1, v41')
        a('v_sub_u32 v22, s75, v22')
        a('v_subrev_u32 v23, 1, v22')
        a('s_mov_b32 s64, 0x3acccccd')
        a('s_mov_b32 s65, 0x3acccccd')
        a('s_mov_b32 s66, 0xff00ff00')
        a('s_mov_b32 s67, 0xff00ff00')
        a('s_mov_b32 s68, 0xfffff800')
        a('s_mov_b32 s69, 0x3727c5ac')
        a('s_mul_i32 s75, s2, 2560')
        a('s_add_u32 s75, s75, s74')
        a('s_add_u32 s70, s75, %d' % H2G)
        a('v_lshl_add_u32 v24, v40, 5, s70')
        a('s_lshl_b32 s75, s75, 1')
        a('s_add_u32 s75, s75, %d' % BASEG)
        a('v_lshl_add_u32 v25, v40, 6, s75')
        a('v_mul_u32_u24 v26, %d, v40' % QPITCH)
        a('v_lshl_add_u32 v26, v41, 4, v26')
        a('v_add_u32 v26, s73, v26')
        a('s_add_u32 s76, s76, s72')
        a('v_mul_u32_u24 v27, 1280, v40')
        a('v_lshl_add_u32 v27, v41, 4, v27')
        a('v_add_u32 v27, s76, v27')
        a('s_lshl_b32 s75, s2, 7')
        a('s_add_u32 s75, s75, %d' % KEYS)
        a('v_mov_b32 v28, s75')
        a('v_mov_b32 v31, s%d' % TAG)
        for i in range(8):
            a('v_mov_b32 v%d, s%d' % (145 + 2 * i, TAG))
        a('s_movk_i32 s77, 10240')
        a('s_waitcnt lgkmcnt(0)')
        self.stamp(9)
        self.poll16('f2', 6, 29)
        self.stamp(10)
        a('buffer_load_dwordx4 v[112:115], v7, %s, 0 offen sc1' % srd(sWS))
        a('buffer_load_dwordx4 v[116:119], v7, %s, 0 offen offset:128 sc1' % srd(sWS))
        for c in range(8):
            if c % 4 == 0:
                a('s_waitcnt vmcnt(%d)' % (1 - c // 4))
            self.unpack(Z + 2 * c, Z + 2 * c + 1, 112 + c)
            a('v_pk_fma_f32 %s, %s, %s, %s' % (vr(Q + 2 * c, 2), vr(P + 2 * c, 2), vr(Z + 2 * c, 2), vr(Q + 2 * c, 2)))
        S1, S2, S3 = 136, 138, 140
        for c in range(8):
            x = vr(Q + 2 * c, 2)
            s, e = c & 1, c & ~1
            if c == 0:
                a('v_pk_mul_f32 %s, %s, %s' % (vr(S2, 2), x, x))
                a('v_pk_mul_f32 %s, %s, %s op_sel:[0,0] op_sel_hi:[1,0]' % (vr(S3, 2), x, vr(W, 2)))
            else:
                a('v_pk_add_f32 %s, %s, %s' % (vr(S1, 2), vr(Q, 2) if c == 1 else vr(S1, 2), x))
                a('v_pk_fma_f32 %s, %s, %s, %s' % (vr(S2, 2), x, x, vr(S2, 2)))
                a('v_pk_fma_f32 %s, %s, %s, %s op_sel:[0,%d,0] op_sel_hi:[1,%d,1]' % (vr(S3, 2), x, vr(W + e, 2), vr(S3, 2), s, s))
        for s in (S1, S2, S3):
            a('v_permlane32_swap_b32 v%d, v%d' % (s, s + 1))
        for s in (S1, S2, S3):
            a('v_add_f32 v%d, v%d, v%d' % (s, s, s + 1))
        a('v_permlane16_swap_b32 v%d, v%d' % (S1, S2))
        a('v_add_f32_dpp v%d, v%d, v%d row_ror:8 %s' % (S3, S3, S3, DPP))
        a('v_add_f32 v%d, v%d, v%d' % (S1, S1, S2))
        a('v_add_f32_dpp v%d, v%d, v%d row_ror:8 %s' % (S1, S1, S1, DPP))
        a('v_cndmask_b32 v%d, v%d, v%d, s[66:67]' % (S1, S1, S3))
        a('ds_add_f32 v20, v%d' % S1)
        a('s_waitcnt lgkmcnt(0)')
        a('s_barrier')
        a('ds_read_b128 v[8:11], v21')
        a('ds_read_b64 v[12:13], v21 offset:16')
        a('s_waitcnt lgkmcnt(1)')
        a('v_pk_mul_f32 v[8:9], v[8:9], s[64:65]')
        a('v_pk_mul_f32 v[10:11], v[10:11], s[64:65]')
        a('v_pk_fma_f32 v[10:11], v[8:9], v[8:9], v[10:11] neg_lo:[1,0,0] neg_hi:[1,0,0]')
        a('v_max_f32 v10, 0, v10')
        a('v_max_f32 v11, 0, v11')
        a('v_add_f32 v10, s69, v10')
        a('v_add_f32 v11, s69, v11')
        a('v_rsq_f32 v10, v10')
        a('v_rsq_f32 v11, v11')
        a('s_waitcnt lgkmcnt(0)')
        a('v_pk_fma_f32 v[12:13], v[8:9], v[76:77], v[12:13] op_sel_hi:[1,0,1] neg_lo:[1,0,0] neg_hi:[1,0,0]')
        a('v_pk_fma_f32 v[12:13], v[12:13], v[10:11], v[76:77] op_sel:[0,0,1] op_sel_hi:[1,1,1]')
        for r, t, ix in ((12, 14, 22), (13, 15, 23)):
            a('v_ashrrev_i32 v%d, 31, v%d' % (t, r))
            a('v_or_b32 v%d, 0x80000000, v%d' % (t, t))
            a('v_xor_b32 v%d, v%d, v%d' % (r, r, t))
            a('v_and_or_b32 v%d, v%d, s68, v%d' % (r, r, ix))
        a('v_max_u32 v30, v12, v13')
        a('v_max_u32_dpp v30, v30, v30 quad_perm:[1,0,3,2] %s' % DPP)
        a('v_max_u32_dpp v30, v30, v30 quad_perm:[2,3,0,1] %s' % DPP)
        a('v_max_u32_dpp v30, v30, v30 row_half_mirror %s' % DPP)
        a('s_cmp_lg_u32 s%d, 0' % WV)
        a('s_cbranch_scc1 L_nokey')
        a('s_mov_b64 exec, 1')
        a('buffer_store_dwordx2 v[30:31], v28, %s, 0 offen sc1' % srd(sWS))
        a('s_mov_b64 exec, -1')
        a('L_nokey:')
        self.stamp(11)
        a('v_readfirstlane_b32 s72, v30')
        a('v_pk_mul_f32 v[8:9], v[8:9], v[10:11] neg_lo:[1,0] neg_hi:[1,0]')
        for c in range(8):
            a('v_pk_fma_f32 %s, %s, v[10:11], v[8:9]' % (vr(Z + 2 * c, 2), vr(Q + 2 * c, 2)))
        for c in range(8):
            e = c & ~1
            a('v_pk_fma_f32 %s, %s, %s, %s %s' % (vr(Z + 2 * c, 2), vr(Z + 2 * c, 2), vr(B1 + e, 2), vr(B2 + e, 2), sel(c & 1)))
        a('s_not_b32 s72, s72')
        a('s_bfe_u32 s73, s72, 0x30001')
        a('s_mov_b32 s70, 0x01010101')
        a('s_mov_b32 s71, 0x01010101')
        a('s_lshl_b64 s[70:71], s[70:71], s73')
        a('s_bitcmp1_b32 s72, 0')
        a('s_cbranch_scc1 L_h2odd')
        for k in range(4):
            a('v_cvt_pk_bf16_f32 v%d, v%d, v%d' % (144 + 2 * k, Z + 4 * k, Z + 4 * k + 2))
        a('s_branch L_h2st')
        a('L_h2odd:')
        for k in range(4):
            a('v_cvt_pk_bf16_f32 v%d, v%d, v%d' % (144 + 2 * k, Z + 4 * k + 1, Z + 4 * k + 3))
        a('L_h2st:')
        a('s_mov_b64 exec, s[70:71]')
        a('buffer_store_dwordx4 v[144:147], v24, %s, 0 offen sc1' % srd(sWS))
        a('buffer_store_dwordx4 v[148:151], v24, %s, 0 offen offset:16 sc1' % srd(sWS))
        a('s_mov_b64 exec, -1')
        self.stamp(12)
        for c in range(8):
            e, s = c & ~1, c & 1
            a('v_pk_fma_f32 %s, %s, %s, %s op_sel:[0,%d,0] op_sel_hi:[1,%d,1]' % (vr(P + 2 * c, 2), vr(Z + 2 * c, 2), vr(G + e, 2), vr(Q + 2 * c, 2), s, s))
        for rho in range(2):
            for k in range(4):
                a('v_cvt_pk_bf16_f32 v%d, v%d, v%d' % (8 + 4 * rho + k, P + 4 * k + rho, P + 4 * k + 2 + rho))
        a('ds_write_b128 v2, v[8:11]')
        a('ds_write_b128 v2, v[12:15] offset:%d' % QPITCH)
        a('ds_read_b128 v[16:19], v26')
        a('ds_read_b128 v[20:23], v26 offset:%d' % (8 * QPITCH))
        a('s_waitcnt lgkmcnt(1)')
        a('buffer_store_dwordx4 v[16:19], v27, %s, 0 offen sc1' % srd(sO))
        a('s_waitcnt lgkmcnt(0)')
        a('buffer_store_dwordx4 v[20:23], v27, %s, s77 offen sc1' % srd(sO))
        a('s_bitcmp1_b32 s72, 0')
        a('s_cselect_b64 vcc, -1, 0')
        a('s_waitcnt vmcnt(0)')
        for c in range(8):
            a('v_cndmask_b32 v%d, v%d, v%d, vcc' % (144 + 2 * c, P + 2 * c, P + 2 * c + 1))
        a('s_mov_b64 exec, s[70:71]')
        for k in range(4):
            a('buffer_store_dwordx4 %s, v25, %s, 0 offen offset:%d sc1' % (vr(144 + 4 * k, 4), srd(sWS), 16 * k))
        a('s_mov_b64 exec, -1')
        self.stamp(13)
        a('s_branch L_end')

    def nonconv(self):
        a = self.a
        a('L_nonconv:')
        a('s_mov_b32 s64, 0x05040100')
        a('s_mov_b32 s65, 0x07060302')
        a('v_lshrrev_b32 v2, 4, v1')
        a('v_and_b32 v3, 15, v1')
        a('v_mov_b32 v114, %s' % OOB)
        a('v_mov_b32 v115, %s' % OOB)
        a('s_waitcnt lgkmcnt(0)')
        a('s_cmp_ge_u32 s2, %d' % (MOD0 + N_MOD))
        a('s_cbranch_scc1 L_mlp')
        a('s_sub_u32 s70, s2, %d' % MOD0)
        a('v_lshlrev_b32 v4, 1, v0')
        a('buffer_load_ushort v6, v4, %s, 0 offen' % srd(sC))
        a('s_mul_i32 s72, s%d, %d' % (WV, 64 * 7680))
        a('s_lshl_b32 s73, s70, 7')
        a('s_add_u32 s72, s72, s73')
        a('v_mul_u32_u24 v4, %d, v2' % (16 * 7680))
        a('v_lshl_add_u32 v4, v3, 3, v4')
        for i in range(16):
            a('buffer_load_dwordx2 %s, v4, %s, s72 offen' % (vr(8 + 2 * i, 2), srd(sWM)))
            if i < 15:
                a('s_add_u32 s72, s72, 7680')
        a('s_waitcnt vmcnt(16)')
        a('v_lshlrev_b32 v6, 16, v6')
        self.silu(6, 7)
        a('v_mov_b32_dpp v7, v6 quad_perm:[1,0,3,2] %s' % DPP)
        a('v_cvt_pk_bf16_f32 v6, v6, v7')
        for i in range(4):
            a('v_mov_b32 v%d, 0' % (72 + i))
        for t in range(8):
            a('s_waitcnt vmcnt(%d)' % (14 - 2 * t))
            self.pair_rows(40 + 4 * t, 8 + 4 * t, 10 + 4 * t)
            self.pair_rows(42 + 4 * t, 9 + 4 * t, 11 + 4 * t)
        for t in range(8):
            for c in range(4):
                a('v_dot2c_f32_bf16_dpp v%d, v6, v%d row_newbcast:%d %s' % (72 + c, 40 + 4 * t + c, 2 * t, DPP))
        self.reduce4x4(72)
        a('v_lshl_add_u32 v4, v3, 2, v2')
        a('v_lshlrev_b32 v4, 2, v4')
        a('v_add_u32 v4, %d, v4' % MODACC)
        a('ds_add_f32 v4, v72')
        a('s_waitcnt lgkmcnt(0)')
        a('s_barrier')
        a('s_cmp_lg_u32 s%d, 0' % WV)
        a('s_cbranch_scc1 L_modpub')
        a('v_lshlrev_b32 v4, 3, v1')
        a('v_add_u32 v5, %d, v4' % MODACC)
        a('s_lshl_b32 s72, s70, 8')
        a('s_add_u32 s72, s72, %d' % MODG)
        a('v_add_u32 v4, s72, v4')
        a('s_mov_b32 exec_hi, 0')
        a('ds_read_b64 v[8:9], v5')
        a('s_waitcnt lgkmcnt(0)')
        a('v_cvt_pk_bf16_f32 v8, v8, v9')
        a('v_mov_b32 v9, s%d' % TAG)
        a('buffer_store_dwordx2 v[8:9], v4, %s, 0 offen sc1' % srd(sWS))
        a('s_mov_b64 exec, -1')
        a('L_modpub:')
        self.stamp(3)
        a('s_cmp_lt_u32 s2, %d' % (RED0 + N_RED))
        a('s_cbranch_scc1 L_keys')
        a('s_cmp_lt_u32 s2, %d' % MLP0)
        a('s_cbranch_scc1 L_end')
        a('L_mlp:')
        a('s_sub_u32 s70, s2, %d' % MLP0)
        a('s_bitcmp1_b32 s%d, 0' % WV)
        a('s_cselect_b64 s[%d:%d], s[%d:%d], s[%d:%d]' % (sWG, sWG + 1, sWU, sWU + 1, sWG, sWG + 1))
        a('s_lshr_b32 s71, s%d, 1' % WV)
        a('s_mul_i32 s72, s71, %d' % (128 * 3456))
        a('s_lshl_b32 s73, s70, 6')
        a('s_add_u32 s72, s72, s73')
        a('v_mul_u32_u24 v4, %d, v2' % (32 * 3456))
        a('v_lshl_add_u32 v4, v3, 2, v4')
        for t in range(16):
            a('buffer_load_dword v%d, v4, %s, s72 offen' % (8 + 2 * t, srd(sWG)))
            a('buffer_load_dword v%d, v4, %s, s72 offen offset:3456' % (9 + 2 * t, srd(sWG)))
            if t < 15:
                a('s_add_u32 s72, s72, 6912')
        a('s_mul_i32 s72, s70, %d' % (32 * 1280))
        a('s_lshl_b32 s73, s%d, 7' % WV)
        a('s_add_u32 s72, s72, s73')
        a('s_add_u32 s73, s72, 5120')
        a('v_mul_u32_u24 v4, %d, v2' % (8 * 1280))
        a('v_lshl_add_u32 v4, v3, 3, v4')
        for i in range(8):
            a('buffer_load_dwordx2 %s, v4, %s, s%d offen offset:%d' % (vr(72 + 2 * i, 2), srd(sWD), 72 + i // 4, 1280 * (i % 4)))
        for t in range(16):
            a('s_waitcnt vmcnt(%d)' % (38 - 2 * t))
            self.pair_rows(40 + 2 * t, 8 + 2 * t, 9 + 2 * t)
        for t in range(4):
            a('s_waitcnt vmcnt(%d)' % (6 - 2 * t))
            self.pair_rows(88 + 4 * t, 72 + 4 * t, 74 + 4 * t)
            self.pair_rows(90 + 4 * t, 73 + 4 * t, 75 + 4 * t)
        for i in range(8):
            a('v_mov_b32 v%d, 0' % (104 + i))
        a('s_and_b32 s72, s%d, 1' % WV)
        a('s_lshl_b32 s72, s72, 2')
        a('s_add_u32 s72, s72, %d' % GU)
        a('v_lshl_add_u32 v112, v3, 4, s72')
        a('v_and_b32 v4, 7, v1')
        a('v_lshl_add_u32 v113, v2, 3, v4')
        a('v_lshlrev_b32 v113, 3, v113')
        a('v_add_u32 v113, %d, v113' % GU)
        a('s_lshl_b32 s72, s71, 9')
        a('s_add_u32 s72, s72, %d' % H2G)
        a('v_lshl_add_u32 v114, v1, 3, s72')
        a('s_mul_i32 s72, s70, 5120')
        a('s_lshl_b32 s73, s%d, 9' % WV)
        a('s_add_u32 s72, s72, s73')
        a('s_add_u32 s72, s72, %d' % PART)
        a('v_lshrrev_b32 v5, 3, v3')
        a('v_lshlrev_b32 v115, 8, v5')
        a('v_lshl_add_u32 v115, v2, 6, v115')
        a('v_lshl_add_u32 v115, v4, 3, v115')
        a('v_add_u32 v115, s72, v115')
        self.stamp(4)
        a('L_keys:')
        a('v_mov_b32 v116, %d' % KEYMAX)
        a('s_cmp_ge_u32 s%d, 8' % WV)
        a('s_cbranch_scc1 L_keyjoin')
        a('s_lshl_b32 s72, s%d, 11' % WV)
        a('s_add_u32 s72, s72, %d' % KEYS)
        a('v_lshl_add_u32 v4, v3, 7, s72')
        a('s_mov_b64 exec, 0xffff')
        l, d = self.spin_head('keys')
        a('buffer_load_dwordx2 v[6:7], v4, %s, 0 offen sc1' % srd(sWS))
        self.spin_bound(d)
        a('s_waitcnt vmcnt(0)')
        a('v_cmp_ne_u32 vcc, s%d, v7' % TAG)
        a('s_cbranch_vccnz %s' % l)
        a('%s:' % d)
        a('s_waitcnt vmcnt(0)')
        a('ds_max_u32 v116, v6')
        a('s_mov_b64 exec, -1')
        a('s_waitcnt lgkmcnt(0)')
        a('L_keyjoin:')
        a('s_barrier')
        a('ds_read_b32 v6, v116')
        a('s_waitcnt lgkmcnt(0)')
        a('v_readfirstlane_b32 s74, v6')
        a('s_not_b32 s75, s74')
        a('s_and_b32 s75, s75, 0x7ff')
        a('s_lshr_b32 s76, s75, 4')
        self.stamp(5)
        a('s_cmp_lt_u32 s2, %d' % MLP0)
        a('s_cbranch_scc1 L_red')
        a('s_mul_i32 s77, s76, 2560')
        l, d = self.spin_head('xsel')
        a('buffer_load_dwordx2 v[6:7], v114, %s, s77 offen sc1' % srd(sWS))
        self.spin_bound(d)
        a('s_waitcnt vmcnt(0)')
        a('v_cmp_ne_u32 vcc, s%d, v7' % TAG)
        a('s_cbranch_vccnz %s' % l)
        a('%s:' % d)
        a('s_waitcnt vmcnt(0)')
        self.stamp(6)
        for t in range(16):
            for c in range(2):
                a('v_dot2c_f32_bf16_dpp v%d, v6, v%d row_newbcast:%d %s' % (104 + 2 * (t & 1) + c, 40 + 2 * t + c, t, DPP))
        a('v_add_f32 v104, v104, v106')
        a('v_add_f32 v105, v105, v107')
        a('ds_add_f32 v112, v104')
        a('ds_add_f32 v112, v105 offset:8')
        a('s_waitcnt lgkmcnt(0)')
        a('s_barrier')
        a('ds_read_b64 v[6:7], v113')
        a('s_waitcnt lgkmcnt(0)')
        self.silu(6, 8)
        a('v_mul_f32 v6, v6, v7')
        a('v_mov_b32_dpp v7, v6 quad_perm:[1,0,3,2] %s' % DPP)
        a('v_cvt_pk_bf16_f32 v6, v6, v7')
        for t in range(4):
            for c in range(4):
                a('v_dot2c_f32_bf16_dpp v%d, v6, v%d row_newbcast:%d %s' % (108 + c, 88 + 4 * t + c, 2 * t, DPP))
        self.reduce4x4(108)
        a('v_mov_b32 v109, s%d' % TAG)
        a('buffer_store_dwordx2 v[108:109], v115, %s, 0 offen sc1' % srd(sWS))
        self.stamp(7)
        a('s_branch L_end')
        a('L_red:')
        a('s_sub_u32 s70, s2, %d' % RED0)
        a('s_cmp_ge_u32 s%d, 7' % WV)
        a('s_cbranch_scc1 L_fin')
        a('s_lshl_b32 s72, s%d, 3' % WV)
        a('v_add_u32 v4, s72, v2')
        a('v_add_u32 v5, 4, v4')
        a('v_cmp_gt_u32 s[66:67], %d, v5' % N_MLP)
        a('v_min_u32 v5, %d, v5' % (N_MLP - 1))
        a('s_lshl_b32 s72, s70, 8')
        a('s_add_u32 s72, s72, %d' % PART)
        a('v_lshl_add_u32 v6, v3, 4, s72')
        a('v_mul_u32_u24 v4, 5120, v4')
        a('v_mul_u32_u24 v5, 5120, v5')
        a('v_add_u32 v4, v4, v6')
        a('v_add_u32 v5, v5, v6')
        a('v_and_b32 v6, 3, v3')
        a('v_lshrrev_b32 v7, 2, v3')
        a('v_lshl_add_u32 v6, v6, 3, v7')
        a('v_lshlrev_b32 v6, 2, v6')
        a('v_add_u32 v6, %d, v6' % RED)
        l, d = self.spin_head('part')
        a('buffer_load_dwordx4 v[8:11], v4, %s, 0 offen sc1' % srd(sWS))
        a('buffer_load_dwordx4 v[12:15], v5, %s, 0 offen sc1' % srd(sWS))
        self.spin_bound(d)
        a('s_waitcnt vmcnt(0)')
        for r in (9, 11, 13, 15):
            a('v_xor_b32 v%d, s%d, v%d' % (r, TAG, r))
        a('v_or3_b32 v9, v9, v11, v13')
        a('v_or_b32 v9, v9, v15')
        a('v_cmp_ne_u32 vcc, 0, v9')
        a('s_cbranch_vccnz %s' % l)
        a('%s:' % d)
        a('s_waitcnt vmcnt(0)')
        self.stamp(6)
        a('v_cndmask_b32 v12, 0, v12, s[66:67]')
        a('v_cndmask_b32 v14, 0, v14, s[66:67]')
        a('v_add_f32 v8, v8, v12')
        a('v_add_f32 v10, v10, v14')
        a('ds_add_f32 v6, v8')
        a('ds_add_f32 v6, v10 offset:16')
        a('s_waitcnt lgkmcnt(0)')
        a('s_barrier')
        a('s_branch L_end')
        a('L_fin:')
        a('s_cmp_lg_u32 s%d, 9' % WV)
        a('s_cbranch_scc1 L_end')
        a('s_mul_i32 s72, s76, 5120')
        a('s_lshl_b32 s73, s70, 8')
        a('s_add_u32 s72, s72, s73')
        a('s_add_u32 s72, s72, %d' % BASEG)
        a('v_lshl_add_u32 v4, v3, 4, s72')
        a('s_lshl_b32 s73, s70, 7')
        a('s_add_u32 s73, s73, %d' % (MODG + 5 * 2560))
        a('v_lshl_add_u32 v5, v3, 3, s73')
        a('v_lshlrev_b32 v6, 3, v3')
        a('v_add_u32 v6, %d, v6' % RED)
        a('s_mul_i32 s72, s75, 1280')
        a('s_lshl_b32 s73, s70, 6')
        a('s_add_u32 s72, s72, s73')
        a('v_lshl_add_u32 v7, v3, 2, s72')
        a('s_and_b32 s72, s74, 0xfffff800')
        a('s_or_b32 s72, s72, 0x400')
        a('s_not_b32 s73, s72')
        a('s_xor_b32 s77, s72, 0x80000000')
        a('s_bitcmp1_b32 s72, 31')
        a('s_cselect_b32 s72, s77, s73')
        a('v_mov_b32 v16, s72')
        a('v_mul_f32 v16, 0xbfb8aa3b, v16')
        a('v_exp_f32 v16, v16')
        a('v_add_f32 v16, 1.0, v16')
        a('v_rcp_f32 v16, v16')
        a('s_mov_b64 exec, 0xffff')
        l, d = self.spin_head('base')
        a('buffer_load_dwordx4 v[8:11], v4, %s, 0 offen sc1' % srd(sWS))
        a('buffer_load_dwordx2 v[12:13], v5, %s, 0 offen sc1' % srd(sWS))
        self.spin_bound(d)
        a('s_waitcnt vmcnt(0)')
        for r in (9, 11, 13):
            a('v_xor_b32 v%d, s%d, v%d' % (r, TAG, r))
        a('v_or3_b32 v9, v9, v11, v13')
        a('v_cmp_ne_u32 vcc, 0, v9')
        a('s_cbranch_vccnz %s' % l)
        a('%s:' % d)
        a('s_waitcnt vmcnt(0)')
        self.unpack(14, 15, 12)
        a('v_mul_f32 v14, v14, v16')
        a('v_mul_f32 v15, v15, v16')
        a('s_cmp_lg_u32 s70, 0')
        a('s_cbranch_scc1 L_noepoch')
        a('v_mov_b32 v17, 0')
        a('v_mov_b32 v18, s%d' % TAG)
        a('buffer_store_dword v18, v17, %s, 0 offen' % srd(sWS))
        a('L_noepoch:')
        self.stamp(6)
        a('s_barrier')
        a('ds_read_b64 v[12:13], v6')
        a('s_waitcnt lgkmcnt(0)')
        a('v_fmac_f32 v8, v14, v12')
        a('v_fmac_f32 v10, v15, v13')
        a('v_cvt_pk_bf16_f32 v8, v8, v10')
        a('buffer_store_dword v8, v7, %s, 0 offen' % srd(sO))
        a('s_mov_b64 exec, -1')
        self.stamp(7)

    def finish(self):
        a = self.a
        a('L_end:')
        if self.diag:
            self.stamp(15)
            a('s_mov_b64 exec, -1')
            a('s_mul_i32 s72, s2, 640')
            a('s_add_u32 s72, s72, s%d' % T64)
            a('s_add_u32 s72, s72, %d' % DIAG)
            a('v_mov_b32 v2, s72')
            for i in range(16):
                a('v_mov_b32 v%d, s%d' % (8 + i, 84 + i))
            a('s_mov_b64 exec, 1')
            for i in range(4):
                a('buffer_store_dwordx4 %s, v2, %s, 0 offen offset:%d' % (vr(8 + 4 * i, 4), srd(sWS), 16 * i))
        a('L_exit:')
        a('s_endpgm')
        a('L_code_end:')

    def text(self):
        self.prologue()
        self.conv()
        self.rows()
        self.nonconv()
        self.finish()
        body = self.a.body().replace('CODE_LIMIT', 'L_code_end-%s_kernel-8' % NAME)
        code, desc = kernel_text(NAME + '_kernel', body, 168)
        return (HEADER + '; @launch grid=(256,1,1) block=(640,1,1) lds=%d\n' % LDS_BYTES +
                '.amdgcn_target "amdgcn-amd-amdhsa--gfx950"\n' + code + desc)


if __name__ == '__main__':
    out = sys.argv[1]
    open(out, 'w').write(Gen(diag='diag' in sys.argv[2:]).text())
```

```python
import sys
sys.path.insert(0, 'gen')
from asmlib import *

NAME = 'adaLN_cond__ssm_conv_h3__moe_arch_mod__prompt'
HEADER = open('cdna_kernels/%s.s.ref' % NAME).read().split('; Override launch')[0]

F1, F2, MODG, KEYS = 0x1000, 0x9000, 0x10000, 0x14000
H2G, BASEG, PART = 0x20000, 0x80000, 0x120000
KVX, ZX, DIAG = 0x200000, 0x500000, 0x800000
WS_BYTES = 0x900000
KC, KPITCH = 0, 4160
RV, RPITCH = 66560, 4576
PS = 84864
ZS = 100224
QS, QPITCH = 120704, 1312
PAR = 141696
ACC = 157056
ST2, CS, GU, MODACC, RED, KEYMAX = ACC, ACC + 256, ACC + 320, ACC + 576, ACC + 832, ACC + 960
ST1 = ACC + 1024
LDS_BYTES = ST1 + 128

N_CONV, N_ROW = 160, 128
MOD0, N_MOD = 160, 60
MLP0, N_MLP = 202, 54
RED0, N_RED = 160, 20
SPIN = 1 << 16
GROUPS = [('row', slice(0, 128)), ('conv', slice(128, 160)), ('red', slice(160, 180)), ('mod', slice(180, 202)), ('mm', slice(202, 220)), ('mlp', slice(220, 256))]

sK, sV, sSH, sWS, sSK, sD, sQ, sWR, sWG, sWU, sWD, sC, sWM, sO = [4 + 4 * i for i in range(14)]
SIZES = {sK: 2621440, sV: 2621440, sSH: 5120, sWS: WS_BYTES, sSK: 2621440, sD: 1280, sQ: 2621440, sWR: 1280,
         sWG: 2211840, sWU: 2211840, sWD: 2211840, sC: 1280, sWM: 4915200, sO: 2621440}
SLOT = {sQ: 0, sK: 1, sV: 2, sSH: 3, sSK: 4, sD: 5, sWR: 7, sWG: 8, sWU: 9, sWD: 10, sC: 11, sWM: 12, sO: 13, sWS: 15}
TAG, WV, T64, HI = 60, 61, 62, 63
OOB = '0x7fffffff'
DPP = 'row_mask:0xf bank_mask:0xf'


def srd(s):
    return 's[%d:%d]' % (s, s + 3)


def vr(a, n):
    return 'v[%d:%d]' % (a, a + n - 1)


class Gen:
    def __init__(self, diag=False, amp=None):
        self.a = Asm()
        self.diag = diag
        self.amp = amp

    def stamp(self, i):
        if self.diag or (self.amp and i in (0, self.amp[2])):
            a = self.a
            a('s_memrealtime s[100:101]')
            a('s_waitcnt lgkmcnt(0)')
            a('s_mov_b32 s%d, s100' % (84 + i))

    def unpack(self, dst_lo, dst_hi, src):
        self.a('v_lshlrev_b32 v%d, 16, v%d' % (dst_lo, src))
        self.a('v_and_b32 v%d, s%d, v%d' % (dst_hi, HI, src))

    def spin_head(self, name):
        a = self.a
        l, d = a.label(name), a.label(name + '_done')
        a('s_mov_b32 s79, 0')
        a('%s:' % l)
        return l, d

    def spin_bound(self, d):
        a = self.a
        a('s_add_u32 s79, s79, 1')
        a('s_cmp_gt_u32 s79, %d' % SPIN)
        a('s_cbranch_scc1 %s' % d)

    def poll16(self, name, vaddr, vtmp):
        a = self.a
        a('s_mov_b64 exec, 0xffff')
        l, d = self.spin_head(name)
        a('buffer_load_dword v%d, v%d, %s, 0 offen sc1' % (vtmp, vaddr, srd(sWS)))
        self.spin_bound(d)
        a('s_waitcnt vmcnt(0)')
        a('v_cmp_ne_u32 vcc, s%d, v%d' % (TAG, vtmp))
        a('s_cbranch_vccnz %s' % l)
        a('%s:' % d)
        a('s_mov_b64 exec, -1')

    def set_flag(self, s_off):
        a = self.a
        l = a.label('noflag')
        a('s_cmp_lg_u32 s%d, 9' % WV)
        a('s_cbranch_scc1 %s' % l)
        a('v_mov_b32 v166, s%d' % s_off)
        a('v_mov_b32 v167, s%d' % TAG)
        a('s_mov_b64 exec, 1')
        a('buffer_store_dword v167, v166, %s, 0 offen sc1' % srd(sWS))
        a('s_mov_b64 exec, -1')
        a('%s:' % l)

    def silu(self, x, t):
        a = self.a
        a('v_mul_f32 v%d, 0xbfb8aa3b, v%d' % (t, x))
        a('v_exp_f32 v%d, v%d' % (t, t))
        a('v_add_f32 v%d, 1.0, v%d' % (t, t))
        a('v_rcp_f32 v%d, v%d' % (t, t))
        a('v_mul_f32 v%d, v%d, v%d' % (x, x, t))

    def row_allreduce16(self, regs):
        for sh in (1, 2, 4, 8):
            for r in regs:
                self.a('v_add_f32_dpp v%d, v%d, v%d row_ror:%d %s' % (r, r, r, sh, DPP))

    def reduce4x4(self, r):
        a = self.a
        a('v_permlane32_swap_b32 v%d, v%d' % (r, r + 2))
        a('v_permlane32_swap_b32 v%d, v%d' % (r + 1, r + 3))
        a('v_add_f32 v%d, v%d, v%d' % (r, r, r + 2))
        a('v_add_f32 v%d, v%d, v%d' % (r + 1, r + 1, r + 3))
        a('v_permlane16_swap_b32 v%d, v%d' % (r, r + 1))
        a('v_add_f32 v%d, v%d, v%d' % (r, r, r + 1))

    def pair_rows(self, dst, x, y):
        self.a('v_perm_b32 v%d, v%d, v%d, s64' % (dst, y, x))
        self.a('v_perm_b32 v%d, v%d, v%d, s65' % (dst + 1, y, x))

    def prologue(self):
        a = self.a
        a('s_getpc_b64 s[66:67]')
        if self.diag:
            for i in range(16):
                a('s_mov_b32 s%d, 0' % (84 + i))
        self.stamp(0)
        a('s_cmp_ge_u32 s2, 256')
        a('s_cbranch_scc1 L_exit')
        for s in (sK, sV, sSH, sWS, sSK, sD):
            a('s_load_dwordx2 s[%d:%d], s[0:1], %d' % (s, s + 1, 8 * SLOT[s]))
        a('v_readfirstlane_b32 s%d, v0' % T64)
        a('v_and_b32 v1, 63, v0')
        a('s_lshr_b32 s%d, s%d, 6' % (WV, T64))
        a('s_cmp_lt_u32 s%d, 8' % WV)
        a('s_cbranch_scc1 L_nopf')
        a('v_subrev_u32 v2, 512, v0')
        a('v_lshlrev_b32 v2, 7, v2')
        a('v_min_u32 v2, CODE_LIMIT, v2')
        a('v_mov_b32 v165, s67')
        a('v_add_co_u32 v164, vcc, s66, v2')
        a('v_addc_co_u32 v165, vcc, 0, v165, vcc')
        a('global_load_dword v163, v[164:165], off')
        a('L_nopf:')
        for s, n in SIZES.items():
            a('s_mov_b32 s%d, %d' % (s + 2, n))
            a('s_mov_b32 s%d, 0x20000' % (s + 3))
        a('s_mov_b32 s%d, 0xffff0000' % HI)
        a('s_lshr_b32 s70, s2, 1')
        a('s_and_b32 s71, s2, 1')
        a('v_bfe_u32 v40, v0, 4, 2')
        a('v_and_b32 v41, 15, v0')
        a('v_mul_u32_u24 v2, 5120, v40')
        a('v_lshl_add_u32 v2, v41, 2, v2')
        a('s_mul_i32 s72, s70, 20480')
        a('s_mul_i32 s73, s71, 640')
        a('s_add_u32 s72, s72, s73')
        a('s_add_u32 s72, s72, s%d' % T64)
        a('v_add_u32 v2, s72, v2')
        a('v_subrev_u32 v3, 3840, v2')
        a('s_add_u32 s73, s73, s%d' % T64)
        a('s_lshl_b32 s73, s73, 2')
        a('v_lshl_add_u32 v4, v41, 4, s73')
        a('s_cmp_ge_u32 s%d, 5' % WV)
        a('s_cselect_b32 s74, 1, 0')
        a('s_mul_i32 s75, s74, 320')
        a('v_subrev_u32 v5, s75, v0')
        a('s_lshl_b32 s75, s2, 2')
        a('s_add_u32 s75, s75, s74')
        a('s_lshl_b32 s76, s75, 12')
        a('s_sub_u32 s76, s76, 32')
        a('v_lshl_add_u32 v6, v5, 4, s76')
        a('v_add_u32 v7, 16, v6')
        a('v_mov_b32 v42, %s' % OOB)
        a('v_subrev_u32 v43, 2, v5')
        a('v_cmp_gt_u32 vcc, 256, v43')
        a('v_cndmask_b32 v6, v42, v6, vcc')
        a('v_subrev_u32 v43, 1, v5')
        a('v_cmp_gt_u32 vcc, 256, v43')
        a('v_cndmask_b32 v7, v42, v7, vcc')
        a('s_lshl_b32 s75, s75, 1')
        a('v_mov_b32 v19, s75')
        a('s_movk_i32 s77, 0x2000')
        a('s_waitcnt lgkmcnt(0)')
        a('s_load_dword s%d, s[%d:%d], 0' % (TAG, sWS, sWS + 1))
        a('buffer_load_dwordx4 v[20:23], v4, %s, 0 offen' % srd(sSH))
        for i in range(3):
            a('buffer_load_dword v%d, v3, %s, 0 offen offset:%d' % (8 + i, srd(sK), 1280 * i))
        for i in range(4):
            a('buffer_load_dword v%d, v2, %s, 0 offen offset:%d' % (11 + i, srd(sK), 1280 * i))
        for i in range(4):
            a('buffer_load_dword v%d, v2, %s, 0 offen offset:%d' % (15 + i, srd(sV), 1280 * i))
        a('buffer_load_dwordx4 v[24:27], v6, %s, 0 offen' % srd(sSK))
        a('buffer_load_dwordx2 v[28:29], v7, %s, 0 offen' % srd(sSK))
        a('buffer_load_dwordx4 v[32:35], v6, %s, s77 offen' % srd(sSK))
        a('buffer_load_dwordx2 v[36:37], v7, %s, s77 offen' % srd(sSK))
        a('buffer_load_ushort v30, v19, %s, 0 offen' % srd(sD))
        a('buffer_load_ushort v38, v19, %s, 0 offen offset:4' % srd(sD))
        for s in (sQ, sWR, sWG, sWU, sWD, sC):
            a('s_load_dwordx2 s[%d:%d], s[0:1], %d' % (s, s + 1, 8 * SLOT[s]))
        a('v_lshlrev_b32 v42, 2, v0')
        a('v_min_u32 v42, 1020, v42')
        a('v_add_u32 v42, %d, v42' % ACC)
        a('v_mov_b32 v43, 0')
        a('ds_write_b32 v42, v43')
        a('s_mul_i32 s72, s%d, 1536' % WV)
        a('s_add_u32 s72, s72, %d' % PS)
        a('v_mul_u32_u24 v84, 384, v40')
        a('v_lshl_add_u32 v84, v41, 4, v84')
        a('v_add_u32 v84, s72, v84')
        a('v_bfe_u32 v42, v0, 1, 2')
        a('v_mul_u32_u24 v85, 384, v42')
        a('v_lshrrev_b32 v42, 3, v1')
        a('v_lshl_add_u32 v85, v42, 5, v85')
        a('v_and_b32 v43, 1, v0')
        a('v_lshl_add_u32 v85, v43, 4, v85')
        a('v_add_u32 v85, s72, v85')
        a('s_mul_i32 s72, s71, %d' % (80 * 16384))
        a('s_lshl_b32 s73, s70, 7')
        a('s_add_u32 s72, s72, s73')
        a('s_add_u32 s72, s72, %d' % KVX)
        a('v_lshrrev_b32 v86, 3, v0')
        a('v_lshlrev_b32 v86, 14, v86')
        a('v_and_b32 v87, 7, v0')
        a('v_lshl_add_u32 v86, v87, 4, v86')
        a('v_add_u32 v86, s72, v86')
        a('s_lshl_b32 s72, s71, 14')
        a('s_add_u32 s72, s72, s73')
        a('s_add_u32 s78, s72, %d' % F1)
        a('s_waitcnt lgkmcnt(0)')
        for s in (sWM, sO):
            a('s_load_dwordx2 s[%d:%d], s[0:1], %d' % (s, s + 1, 8 * SLOT[s]))
        a('s_mul_i32 s%d, s%d, 0x9e3779b1' % (TAG, TAG))
        a('s_add_u32 s%d, s%d, 0x7f4a7c15' % (TAG, TAG))
        a('s_waitcnt vmcnt(17)')
        for j in range(4):
            src0, src1 = 20 + j // 2, 22 + j // 2
            for dst, src in ((40 + 2 * j, src0), (41 + 2 * j, src1)):
                if j % 2 == 0:
                    a('v_lshlrev_b32 v%d, 16, v%d' % (dst, src))
                else:
                    a('v_and_b32 v%d, s%d, v%d' % (dst, HI, src))
        a('s_waitcnt vmcnt(10)')
        for i in range(7):
            self.unpack(48 + 2 * i, 49 + 2 * i, 8 + i)
        for j in range(4):
            for r in range(4):
                kp = 48 + 2 * (r + 3 - j)
                if j == 0:
                    a('v_pk_mul_f32 %s, %s, %s' % (vr(70 + 2 * r, 2), vr(40, 2), vr(kp, 2)))
                else:
                    a('v_pk_fma_f32 %s, %s, %s, %s' % (vr(70 + 2 * r, 2), vr(40 + 2 * j, 2), vr(kp, 2), vr(70 + 2 * r, 2)))
        a('s_waitcnt vmcnt(6)')
        for i in range(4):
            self.unpack(62 + 2 * i, 63 + 2 * i, 15 + i)
        for r in range(4):
            a('v_pk_mul_f32 %s, %s, %s' % (vr(70 + 2 * r, 2), vr(70 + 2 * r, 2), vr(62 + 2 * r, 2)))
        a('v_cvt_pk_bf16_f32 v80, v76, v74')
        a('v_cvt_pk_bf16_f32 v81, v72, v70')
        a('v_cvt_pk_bf16_f32 v82, v77, v75')
        a('v_cvt_pk_bf16_f32 v83, v73, v71')
        a('ds_write_b128 v84, v[80:83]')
        a('ds_read_b128 v[80:83], v85')
        a('s_waitcnt lgkmcnt(0)')
        a('buffer_store_dwordx4 v[80:83], v86, %s, 0 offen sc1' % srd(sWS))
        self.stamp(1)
        a('s_waitcnt vmcnt(0)')
        a('s_barrier')
        self.set_flag(78)
        self.stamp(2)
        a('s_cmp_ge_u32 s2, %d' % N_CONV)
        a('s_cbranch_scc1 L_nonconv')

    def conv(self):
        a = self.a
        a('v_cmp_eq_u32 s[64:65], 2, v5')
        a('v_cmp_eq_u32 s[66:67], 1, v5')
        a('s_mov_b32 s68, 0xffff')
        a('s_mul_i32 s72, s74, %d' % (4 * KPITCH))
        a('v_lshl_add_u32 v39, v5, 4, s72')
        a('v_cmp_gt_u32 vcc, 258, v5')
        a('s_mov_b64 exec, vcc')
        for rho, (d, dd) in enumerate(((24, 30), (32, 38))):
            a('v_cndmask_b32 v40, v%d, v%d, s[64:65]' % (d + 4, d))
            a('v_lshlrev_b32 v41, 16, v40')
            a('v_lshlrev_b32 v42, 16, v%d' % dd)
            a('v_add_f32 v41, v41, v42')
            a('v_cvt_pk_bf16_f32 v41, v41, v41')
            a('v_bfi_b32 v40, s68, v41, v40')
            a('v_cndmask_b32 v%d, v%d, v40, s[64:65]' % (d, d))
            a('v_cndmask_b32 v%d, v%d, v40, s[66:67]' % (d + 4, d + 4))
            t = 44 + 12 * rho
            for i in range(4):
                a('v_alignbit_b32 v%d, v%d, v%d, 16' % (t + i, d + i + 1, d + i))
                a('v_mov_b32 v%d, v%d' % (t + 4 + i, d + i + 1))
                a('v_alignbit_b32 v%d, v%d, v%d, 16' % (t + 8 + i, d + i + 2, d + i + 1))
            for s, r in enumerate((d, t, t + 4, t + 8)):
                a('ds_write_b128 v39, %s offset:%d' % (vr(r, 4), KC + (8 * rho + s) * KPITCH))
        a('s_mov_b64 exec, -1')
        a('v_lshrrev_b32 v40, 5, v0')
        a('v_min_u32 v40, 3, v40')
        a('v_mul_u32_u24 v40, %d, v40' % RPITCH)
        a('v_and_b32 v41, 31, v0')
        a('v_min_u32 v41, 29, v41')
        a('v_lshl_add_u32 v40, v41, 4, v40')
        a('v_add_u32 v40, %d, v40' % (RV + 4096))
        for i in range(4):
            a('v_mov_b32 v%d, 0' % (68 + i))
        a('s_cmp_ge_u32 s%d, 2' % WV)
        a('s_cbranch_scc1 L_nozero')
        a('ds_write_b128 v40, v[68:71]')
        a('L_nozero:')
        a('v_and_b32 v40, 15, v1')
        a('v_lshrrev_b32 v41, 4, v1')
        a('v_lshl_add_u32 v42, v41, 3, v40')
        a('v_add_u32 v42, 1, v42')
        a('v_and_b32 v43, 3, v42')
        a('v_sub_u32 v42, v42, v43')
        a('v_mul_u32_u24 v43, %d, v43' % KPITCH)
        a('v_lshl_add_u32 v160, v42, 1, v43')
        a('s_mul_i32 s72, s%d, %d' % (WV, 4 * KPITCH))
        a('v_add_u32 v160, s72, v160')
        a('s_mul_i32 s72, s%d, %d' % (WV, RPITCH))
        a('s_add_u32 s72, s72, %d' % (RV + 480))
        a('v_lshl_add_u32 v161, v41, 4, s72')
        a('v_lshlrev_b32 v42, 5, v40')
        a('v_sub_u32 v161, v161, v42')
        a('s_mul_i32 s72, s%d, 5120' % WV)
        a('s_add_u32 s72, s72, %d' % ZS)
        a('v_mul_u32_u24 v162, 160, v41')
        a('v_lshl_add_u32 v162, v40, 3, v162')
        a('v_add_u32 v162, s72, v162')
        a('s_cmp_ge_u32 s2, 80')
        a('s_cselect_b32 s72, 128, 0')
        a('s_lshl_b32 s73, s%d, 4' % WV)
        a('s_add_u32 s72, s72, s73')
        a('v_add_u32 v8, s72, v40')
        a('v_lshlrev_b32 v8, 7, v8')
        a('v_add_u32 v8, %d, v8' % F1)
        a('s_lshl_b32 s72, s2, 14')
        a('s_lshl_b32 s73, s%d, 11' % WV)
        a('s_add_u32 s72, s72, s73')
        a('s_add_u32 s72, s72, %d' % KVX)
        a('v_lshl_add_u32 v9, v1, 4, s72')
        a('s_lshl_b32 s73, s%d, 9' % WV)
        a('s_sub_u32 s72, %d, s73' % (RV + 3832))
        a('v_and_b32 v42, 1, v1')
        a('v_mul_u32_u24 v10, %d, v42' % (2 * RPITCH))
        a('v_add_u32 v10, s72, v10')
        a('v_lshrrev_b32 v42, 1, v1')
        a('v_lshlrev_b32 v42, 3, v42')
        a('v_sub_u32 v10, v10, v42')
        for i in range(32):
            a('v_mov_b32 v%d, 0' % (64 + i))
        a('s_waitcnt lgkmcnt(0)')
        a('s_barrier')
        self.stamp(3)
        A = lambda i: 96 + 4 * i
        B = lambda j: 128 + 4 * j

        def ldA(i, nxt):
            o = 512 * i + (64 if nxt else 0)
            return ['ds_read_b64 %s, v160 offset:%d' % (vr(A(i), 2), o),
                    'ds_read_b64 %s, v160 offset:%d' % (vr(A(i) + 2, 2), o + 8)]

        def ldB(j, nxt):
            return ['ds_read_b128 %s, v161 offset:%d' % (vr(B(j), 4), 512 * (7 - j) + (64 if nxt else 0))]

        a('s_cmp_ge_u32 s%d, 4' % WV)
        a('s_cbranch_scc1 L_noA')
        for i in range(7, 0, -1):
            for l in ldA(i, False):
                a(l)
        a('L_noA:')
        a('s_cmp_ge_u32 s%d, 8' % WV)
        a('s_cbranch_scc1 L_kvdone')
        self.poll16('f1', 8, 11)
        self.stamp(4)
        a('buffer_load_dwordx4 v[12:15], v9, %s, 0 offen sc1' % srd(sWS))
        a('buffer_load_dwordx4 v[16:19], v9, %s, 0 offen offset:1024 sc1' % srd(sWS))
        a('s_waitcnt vmcnt(1)')
        a('ds_write_b64 v10, v[12:13] offset:256')
        a('ds_write_b64 v10, v[14:15] offset:%d' % (256 + RPITCH))
        a('s_waitcnt vmcnt(0)')
        a('ds_write_b64 v10, v[16:17]')
        a('ds_write_b64 v10, v[18:19] offset:%d' % RPITCH)
        a('L_kvdone:')
        a('s_waitcnt lgkmcnt(0)')
        a('s_barrier')
        self.stamp(5)
        a('s_cmp_ge_u32 s%d, 4' % WV)
        a('s_cbranch_scc1 L_helper')
        for j in range(4):
            a(ldB(j, False)[0])
        order = [(7, 0), (6, 0), (5, 0), (4, 0), (6, 1), (5, 1), (4, 1), (5, 2), (4, 2), (4, 3)]
        order += [(i, j) for j in range(4) for i in (3, 2, 1, 0)]
        order += [(3, 4), (2, 4), (2, 5), (1, 4), (1, 5), (1, 6), (0, 4), (0, 5), (0, 6), (0, 7)]
        after = {}

        def place(slot, key, lines):
            for k, l in enumerate(lines):
                after.setdefault(slot + k, []).append((key, l))
        place(1, 'A0', ldA(0, False))
        place(3, 'A7', ldA(7, True))
        place(5, 'A6', ldA(6, True))
        place(7, 'B4', ldB(4, False))
        place(8, 'A5', ldA(5, True))
        place(10, 'A4', ldA(4, True))
        place(12, 'B5', ldB(5, False))
        place(13, 'B6', ldB(6, False))
        place(14, 'B0', ldB(0, True))
        place(15, 'B7', ldB(7, False))
        place(18, 'B1', ldB(1, True))
        place(22, 'B2', ldB(2, True))
        place(26, 'B3', ldB(3, True))
        place(27, 'A3', ldA(3, True))
        place(29, 'A2', ldA(2, True))
        place(32, 'A1', ldA(1, True))
        issued, last, done = 0, {}, 0
        waits, hist = {}, []
        for it in range(4):
            for slot, (i, j) in enumerate(order, 1):
                needed = max(last.get('A%d' % i, 0), last.get('B%d' % j, 0))
                if needed > done:
                    n = min(issued - needed, sum(hist[-8:]))
                    done = issued - n
                    waits.setdefault(it, {})[slot] = n
                hist.append(len(after.get(slot, [])))
                for key, l in after.get(slot, []):
                    issued += 1
                    last[key] = issued
        assert waits[2] == waits[3]
        waits = waits[3]
        a('s_mov_b32 s72, 0')
        a('s_waitcnt lgkmcnt(0)')
        a('.p2align 3')
        a('L_mfma:')
        for slot, (i, j) in enumerate(order, 1):
            if slot in waits:
                a('s_waitcnt lgkmcnt(%d)' % waits[slot])
            g = 64 + 4 * (i + j)
            a('v_mfma_f32_16x16x32_bf16 %s, %s, %s, %s' % (vr(g, 4), vr(A(i), 4), vr(B(j), 4), vr(g, 4)))
            for key, l in after.get(slot, []):
                a(l)
            if slot == 34:
                a('v_add_u32 v160, 64, v160')
                a('v_add_u32 v161, 64, v161')
            if slot == 35:
                a('s_add_u32 s72, s72, 1')
                a('s_cmp_lt_u32 s72, 8')
        a('s_cbranch_scc1 L_mfma')
        a('s_waitcnt lgkmcnt(0)')
        self.stamp(6)
        for g in range(8):
            r = 64 + 4 * g
            a('v_cvt_pk_bf16_f32 v%d, v%d, v%d' % (96 + 2 * g, r, r + 1))
            a('v_cvt_pk_bf16_f32 v%d, v%d, v%d' % (97 + 2 * g, r + 2, r + 3))
            a('ds_write_b64 v162, %s offset:%d' % (vr(96 + 2 * g, 2), 640 * g))
        a('s_branch L_zjoin')
        a('L_helper:')
        a('s_cmp_ge_u32 s2, %d' % N_ROW)
        a('s_cbranch_scc1 L_zjoin')
        self.helper()
        a('L_zjoin:')
        a('v_lshrrev_b32 v40, 3, v1')
        a('v_and_b32 v41, 7, v1')
        a('v_lshrrev_b32 v42, 1, v41')
        a('v_mul_u32_u24 v8, 160, v42')
        a('v_lshl_add_u32 v8, v40, 3, v8')
        a('v_and_b32 v42, 1, v41')
        a('v_lshl_add_u32 v8, v42, 2, v8')
        a('s_mul_i32 s72, s%d, 640' % WV)
        a('s_add_u32 s72, s72, %d' % ZS)
        a('v_add_u32 v8, s72, v8')
        a('v_add_u32 v9, 64, v8')
        a('s_mul_i32 s72, s%d, %d' % (WV, 16 * 20480))
        a('s_lshl_b32 s73, s2, 7')
        a('s_add_u32 s72, s72, s73')
        a('s_add_u32 s72, s72, %d' % ZX)
        a('v_mul_u32_u24 v10, 20480, v40')
        a('v_lshl_add_u32 v10, v41, 4, v10')
        a('v_add_u32 v10, s72, v10')
        a('s_add_u32 s78, s73, %d' % F2)
        a('s_mov_b32 s77, %d' % (8 * 20480))
        a('s_waitcnt lgkmcnt(0)')
        a('s_barrier')
        self.stamp(7)
        a('s_cmp_ge_u32 s%d, 8' % WV)
        a('s_cbranch_scc1 L_zdone')
        a('ds_read2st64_b32 v[12:13], v8 offset0:0 offset1:20')
        a('ds_read2st64_b32 v[14:15], v8 offset0:40 offset1:60')
        a('ds_read2st64_b32 v[16:17], v9 offset0:0 offset1:20')
        a('ds_read2st64_b32 v[18:19], v9 offset0:40 offset1:60')
        a('s_waitcnt lgkmcnt(2)')
        a('buffer_store_dwordx4 v[12:15], v10, %s, 0 offen sc1' % srd(sWS))
        a('s_waitcnt lgkmcnt(0)')
        a('buffer_store_dwordx4 v[16:19], v10, %s, s77 offen sc1' % srd(sWS))
        a('s_waitcnt vmcnt(0)')
        a('L_zdone:')
        a('s_barrier')
        self.set_flag(78)
        self.stamp(8)
        a('s_cmp_ge_u32 s2, %d' % N_ROW)
        a('s_cbranch_scc1 L_end')

    def helper(self):
        a = self.a
        a('s_cmp_ge_u32 s%d, 8' % WV)
        a('s_cbranch_scc1 L_hmod')
        a('v_lshrrev_b32 v40, 4, v1')
        a('v_and_b32 v41, 15, v1')
        a('s_sub_u32 s72, s%d, 4' % WV)
        a('s_lshl_b32 s72, s72, 2')
        a('v_add_u32 v40, s72, v40')
        a('s_mul_i32 s73, s2, 20480')
        a('v_mul_u32_u24 v2, 1280, v40')
        a('v_lshl_add_u32 v2, v41, 4, v2')
        a('v_add_u32 v2, s73, v2')
        for i in range(5):
            a('buffer_load_dwordx4 %s, v2, %s, 0 offen offset:%d' % (vr(8 + 4 * i, 4), srd(sQ), 256 * i))
        a('v_mul_u32_u24 v3, %d, v40' % QPITCH)
        a('v_lshl_add_u32 v3, v41, 4, v3')
        a('v_add_u32 v3, %d, v3' % QS)
        a('v_lshrrev_b32 v4, 1, v40')
        a('v_lshlrev_b32 v4, 4, v4')
        a('v_and_b32 v42, 1, v40')
        a('v_lshl_add_u32 v4, v42, 2, v4')
        a('v_add_u32 v4, %d, v4' % ST1)
        a('s_waitcnt vmcnt(0)')
        for i in range(5):
            a('ds_write_b128 v3, %s offset:%d' % (vr(8 + 4 * i, 4), 256 * i))
        for i in range(20):
            self.unpack(44 + 2 * i, 45 + 2 * i, 8 + i)
        a('v_pk_add_f32 v[28:29], v[44:45], v[46:47]')
        for i in range(2, 20):
            a('v_pk_add_f32 v[28:29], v[28:29], %s' % vr(44 + 2 * i, 2))
        a('v_add_f32 v28, v28, v29')
        self.row_allreduce16([28])
        a('v_mul_f32 v28, 0xbacccccd, v28')
        for i in range(20):
            a('v_pk_add_f32 %s, %s, v[28:29] op_sel_hi:[1,0]' % (vr(44 + 2 * i, 2), vr(44 + 2 * i, 2)))
        a('v_pk_mul_f32 v[30:31], v[44:45], v[44:45]')
        for i in range(1, 20):
            a('v_pk_fma_f32 v[30:31], %s, %s, v[30:31]' % (vr(44 + 2 * i, 2), vr(44 + 2 * i, 2)))
        a('v_add_f32 v30, v30, v31')
        self.row_allreduce16([30])
        a('v_mov_b32 v31, 0x3727c5ac')
        a('v_fmac_f32 v31, 0x3acccccd, v30')
        a('v_rsq_f32 v31, v31')
        a('v_mul_f32 v28, v28, v31')
        a('ds_write2_b32 v4, v31, v28 offset0:0 offset1:2')
        a('L_hmod:')
        a('s_cmp_ge_u32 s%d, 9' % WV)
        a('s_cbranch_scc1 L_zjoin')
        a('v_subrev_u32 v40, 256, v0')
        a('v_lshlrev_b32 v2, 2, v40')
        a('buffer_load_dword v20, v2, %s, 0 offen' % srd(sWR))
        a('v_lshlrev_b32 v3, 3, v40')
        a('v_add_u32 v4, %d, v3' % PAR)
        a('v_add_u32 v3, %d, v3' % MODG)
        a('s_movk_i32 s72, 5120')
        a('s_movk_i32 s73, 10240')
        l, d = self.spin_head('mod')
        for v in range(6):
            a('buffer_load_dwordx2 %s, v3, %s, %s offen offset:%d sc1' % (vr(8 + 2 * v, 2), srd(sWS), ('0', 's72', 's73')[v // 2], 2560 * (v % 2)))
        self.spin_bound(d)
        a('s_waitcnt vmcnt(0)')
        for v in range(6):
            a('v_xor_b32 v%d, s%d, v%d' % (9 + 2 * v, TAG, 9 + 2 * v))
        a('v_or3_b32 v9, v9, v11, v13')
        a('v_or3_b32 v15, v15, v17, v19')
        a('v_or_b32 v9, v9, v15')
        a('v_cmp_ne_u32 vcc, 0, v9')
        a('s_cbranch_vccnz %s' % l)
        a('%s:' % d)
        a('s_waitcnt vmcnt(0)')
        for v in range(7):
            self.unpack(24 + 2 * v, 25 + 2 * v, 8 + 2 * v)
        for r in (26, 27, 32, 33):
            a('v_add_f32 v%d, 1.0, v%d' % (r, r))
            a('v_cvt_pk_bf16_f32 v%d, 0, v%d' % (r, r))
        a('v_pk_mul_f32 v[26:27], v[26:27], v[28:29]')
        a('v_pk_mul_f32 v[24:25], v[24:25], v[28:29]')
        a('v_pk_mul_f32 v[38:39], v[30:31], v[36:37]')
        a('v_pk_mul_f32 v[36:37], v[32:33], v[36:37]')
        for v, r in enumerate((26, 24, 32, 30, 34, 36)):
            a('ds_write_b64 v4, %s offset:%d' % (vr(r, 2), 2560 * v))
        a('v_add_f32 v40, v36, v37')
        a('v_add_f32 v41, v38, v39')
        self.row_allreduce16([40, 41])
        a('v_mov_b32 v42, %d' % CS)
        a('s_mov_b32 exec_lo, 0x00010001')
        a('s_mov_b32 exec_hi, 0x00010001')
        a('ds_add_f32 v42, v40')
        a('ds_add_f32 v42, v41 offset:4')
        a('s_mov_b64 exec, -1')

    def rows(self):
        a = self.a
        Q, P, Z = 80, 96, 120
        sel = lambda s: 'op_sel:[0,%d,%d] op_sel_hi:[1,%d,%d]' % (s, s, s, s)
        a('v_mul_u32_u24 v2, %d, v41' % (2 * QPITCH))
        a('v_lshl_add_u32 v2, v40, 4, v2')
        a('s_lshl_b32 s72, s%d, 7' % WV)
        a('s_add_u32 s73, s72, %d' % QS)
        a('v_add_u32 v2, s73, v2')
        a('ds_read_b128 v[8:11], v2')
        a('ds_read_b128 v[12:15], v2 offset:%d' % QPITCH)
        a('v_lshlrev_b32 v3, 4, v41')
        a('v_add_u32 v3, %d, v3' % ST1)
        a('ds_read_b128 v[16:19], v3')
        a('s_lshl_b32 s74, s%d, 8' % WV)
        a('s_add_u32 s75, s74, %d' % PAR)
        a('v_lshl_add_u32 v4, v40, 5, s75')
        par = (24, 32, 44, 52, 60, 68)
        for v in range(6):
            a('ds_read_b128 %s, v4 offset:%d' % (vr(par[v], 4), 2560 * v))
            a('ds_read_b128 %s, v4 offset:%d' % (vr(par[v] + 4, 4), 2560 * v + 16))
        A1, A2, B1, B2, G, W = par
        a('v_mov_b32 v5, %d' % CS)
        a('s_waitcnt lgkmcnt(8)')
        a('ds_read_b64 v[76:77], v5')
        for c in range(8):
            for rho in range(2):
                src = 8 + 4 * rho + c // 2
                if c % 2 == 0:
                    a('v_lshlrev_b32 v%d, 16, v%d' % (Q + 2 * c + rho, src))
                else:
                    a('v_and_b32 v%d, s%d, v%d' % (Q + 2 * c + rho, HI, src))
        for c in range(8):
            a('v_pk_fma_f32 %s, %s, v[16:17], v[18:19]' % (vr(P + 2 * c, 2), vr(Q + 2 * c, 2)))
        for c in range(8):
            e = c & ~1
            a('v_pk_fma_f32 %s, %s, %s, %s %s' % (vr(P + 2 * c, 2), vr(P + 2 * c, 2), vr(A1 + e, 2), vr(A2 + e, 2), sel(c & 1)))
        a('v_and_b32 v42, 15, v1')
        a('s_lshl_b32 s75, s%d, 11' % WV)
        a('s_add_u32 s76, s75, %d' % F2)
        a('v_lshl_add_u32 v6, v42, 7, s76')
        a('s_mul_i32 s76, s2, 20480')
        a('s_add_u32 s75, s75, s76')
        a('s_add_u32 s75, s75, %d' % ZX)
        a('v_lshlrev_b32 v7, 8, v40')
        a('v_lshl_add_u32 v7, v41, 4, v7')
        a('v_add_u32 v7, s75, v7')
        a('v_bfe_u32 v42, v1, 4, 1')
        a('v_bfe_u32 v43, v1, 3, 1')
        a('v_lshl_add_u32 v42, v43, 1, v42')
        a('v_min_u32 v42, 2, v42')
        a('v_lshlrev_b32 v20, 5, v41')
        a('v_add_u32 v21, %d, v20' % ST2)
        a('v_lshl_add_u32 v20, v42, 3, v21')
        a('v_lshrrev_b32 v42, 5, v1')
        a('v_lshl_add_u32 v20, v42, 2, v20')
        a('s_lshl_b32 s75, s2, 4')
        a('s_sub_u32 s75, 2047, s75')
        a('v_lshlrev_b32 v22, 1, v41')
        a('v_sub_u32 v22, s75, v22')
        a('v_subrev_u32 v23, 1, v22')
        a('s_mov_b32 s64, 0x3acccccd')
        a('s_mov_b32 s65, 0x3acccccd')
        a('s_mov_b32 s66, 0xff00ff00')
        a('s_mov_b32 s67, 0xff00ff00')
        a('s_mov_b32 s68, 0xfffff800')
        a('s_mov_b32 s69, 0x3727c5ac')
        a('s_mul_i32 s75, s2, 2560')
        a('s_add_u32 s75, s75, s74')
        a('s_add_u32 s70, s75, %d' % H2G)
        a('v_lshl_add_u32 v24, v40, 5, s70')
        a('s_lshl_b32 s75, s75, 1')
        a('s_add_u32 s75, s75, %d' % BASEG)
        a('v_lshl_add_u32 v25, v40, 6, s75')
        a('v_mul_u32_u24 v26, %d, v40' % QPITCH)
        a('v_lshl_add_u32 v26, v41, 4, v26')
        a('v_add_u32 v26, s73, v26')
        a('s_add_u32 s76, s76, s72')
        a('v_mul_u32_u24 v27, 1280, v40')
        a('v_lshl_add_u32 v27, v41, 4, v27')
        a('v_add_u32 v27, s76, v27')
        a('s_lshl_b32 s75, s2, 7')
        a('s_add_u32 s75, s75, %d' % KEYS)
        a('v_mov_b32 v28, s75')
        a('v_mov_b32 v31, s%d' % TAG)
        for i in range(8):
            a('v_mov_b32 v%d, s%d' % (145 + 2 * i, TAG))
        a('s_movk_i32 s77, 10240')
        a('s_waitcnt lgkmcnt(0)')
        self.stamp(9)
        self.poll16('f2', 6, 29)
        self.stamp(10)
        a('buffer_load_dwordx4 v[112:115], v7, %s, 0 offen sc1' % srd(sWS))
        a('buffer_load_dwordx4 v[116:119], v7, %s, 0 offen offset:128 sc1' % srd(sWS))
        for c in range(8):
            if c % 4 == 0:
                a('s_waitcnt vmcnt(%d)' % (1 - c // 4))
            self.unpack(Z + 2 * c, Z + 2 * c + 1, 112 + c)
            a('v_pk_fma_f32 %s, %s, %s, %s' % (vr(Q + 2 * c, 2), vr(P + 2 * c, 2), vr(Z + 2 * c, 2), vr(Q + 2 * c, 2)))
        S1, S2, S3 = 136, 138, 140
        for c in range(8):
            x = vr(Q + 2 * c, 2)
            s, e = c & 1, c & ~1
            if c == 0:
                a('v_pk_mul_f32 %s, %s, %s' % (vr(S2, 2), x, x))
                a('v_pk_mul_f32 %s, %s, %s op_sel:[0,0] op_sel_hi:[1,0]' % (vr(S3, 2), x, vr(W, 2)))
            else:
                a('v_pk_add_f32 %s, %s, %s' % (vr(S1, 2), vr(Q, 2) if c == 1 else vr(S1, 2), x))
                a('v_pk_fma_f32 %s, %s, %s, %s' % (vr(S2, 2), x, x, vr(S2, 2)))
                a('v_pk_fma_f32 %s, %s, %s, %s op_sel:[0,%d,0] op_sel_hi:[1,%d,1]' % (vr(S3, 2), x, vr(W + e, 2), vr(S3, 2), s, s))
        for s in (S1, S2, S3):
            a('v_permlane32_swap_b32 v%d, v%d' % (s, s + 1))
        for s in (S1, S2, S3):
            a('v_add_f32 v%d, v%d, v%d' % (s, s, s + 1))
        a('v_permlane16_swap_b32 v%d, v%d' % (S1, S2))
        a('v_add_f32_dpp v%d, v%d, v%d row_ror:8 %s' % (S3, S3, S3, DPP))
        a('v_add_f32 v%d, v%d, v%d' % (S1, S1, S2))
        a('v_add_f32_dpp v%d, v%d, v%d row_ror:8 %s' % (S1, S1, S1, DPP))
        a('v_cndmask_b32 v%d, v%d, v%d, s[66:67]' % (S1, S1, S3))
        a('ds_add_f32 v20, v%d' % S1)
        a('s_waitcnt lgkmcnt(0)')
        a('s_barrier')
        a('ds_read_b128 v[8:11], v21')
        a('ds_read_b64 v[12:13], v21 offset:16')
        a('s_waitcnt lgkmcnt(1)')
        a('v_pk_mul_f32 v[8:9], v[8:9], s[64:65]')
        a('v_pk_mul_f32 v[10:11], v[10:11], s[64:65]')
        a('v_pk_fma_f32 v[10:11], v[8:9], v[8:9], v[10:11] neg_lo:[1,0,0] neg_hi:[1,0,0]')
        a('v_max_f32 v10, 0, v10')
        a('v_max_f32 v11, 0, v11')
        a('v_add_f32 v10, s69, v10')
        a('v_add_f32 v11, s69, v11')
        a('v_rsq_f32 v10, v10')
        a('v_rsq_f32 v11, v11')
        a('s_waitcnt lgkmcnt(0)')
        a('v_pk_fma_f32 v[12:13], v[8:9], v[76:77], v[12:13] op_sel_hi:[1,0,1] neg_lo:[1,0,0] neg_hi:[1,0,0]')
        a('v_pk_fma_f32 v[12:13], v[12:13], v[10:11], v[76:77] op_sel:[0,0,1] op_sel_hi:[1,1,1]')
        for r, t, ix in ((12, 14, 22), (13, 15, 23)):
            a('v_ashrrev_i32 v%d, 31, v%d' % (t, r))
            a('v_or_b32 v%d, 0x80000000, v%d' % (t, t))
            a('v_xor_b32 v%d, v%d, v%d' % (r, r, t))
            a('v_and_or_b32 v%d, v%d, s68, v%d' % (r, r, ix))
        a('v_max_u32 v30, v12, v13')
        a('v_max_u32_dpp v30, v30, v30 quad_perm:[1,0,3,2] %s' % DPP)
        a('v_max_u32_dpp v30, v30, v30 quad_perm:[2,3,0,1] %s' % DPP)
        a('v_max_u32_dpp v30, v30, v30 row_half_mirror %s' % DPP)
        a('s_cmp_lg_u32 s%d, 0' % WV)
        a('s_cbranch_scc1 L_nokey')
        a('s_mov_b64 exec, 1')
        a('buffer_store_dwordx2 v[30:31], v28, %s, 0 offen sc1' % srd(sWS))
        a('s_mov_b64 exec, -1')
        a('L_nokey:')
        self.stamp(11)
        a('v_readfirstlane_b32 s72, v30')
        a('v_pk_mul_f32 v[8:9], v[8:9], v[10:11] neg_lo:[1,0] neg_hi:[1,0]')
        for c in range(8):
            a('v_pk_fma_f32 %s, %s, v[10:11], v[8:9]' % (vr(Z + 2 * c, 2), vr(Q + 2 * c, 2)))
        for c in range(8):
            e = c & ~1
            a('v_pk_fma_f32 %s, %s, %s, %s %s' % (vr(Z + 2 * c, 2), vr(Z + 2 * c, 2), vr(B1 + e, 2), vr(B2 + e, 2), sel(c & 1)))
        a('s_not_b32 s72, s72')
        a('s_bfe_u32 s73, s72, 0x30001')
        a('s_mov_b32 s70, 0x01010101')
        a('s_mov_b32 s71, 0x01010101')
        a('s_lshl_b64 s[70:71], s[70:71], s73')
        a('s_bitcmp1_b32 s72, 0')
        a('s_cbranch_scc1 L_h2odd')
        for k in range(4):
            a('v_cvt_pk_bf16_f32 v%d, v%d, v%d' % (144 + 2 * k, Z + 4 * k, Z + 4 * k + 2))
        a('s_branch L_h2st')
        a('L_h2odd:')
        for k in range(4):
            a('v_cvt_pk_bf16_f32 v%d, v%d, v%d' % (144 + 2 * k, Z + 4 * k + 1, Z + 4 * k + 3))
        a('L_h2st:')
        a('s_mov_b64 exec, s[70:71]')
        a('buffer_store_dwordx4 v[144:147], v24, %s, 0 offen sc1' % srd(sWS))
        a('buffer_store_dwordx4 v[148:151], v24, %s, 0 offen offset:16 sc1' % srd(sWS))
        a('s_mov_b64 exec, -1')
        self.stamp(12)
        for c in range(8):
            e, s = c & ~1, c & 1
            a('v_pk_fma_f32 %s, %s, %s, %s op_sel:[0,%d,0] op_sel_hi:[1,%d,1]' % (vr(P + 2 * c, 2), vr(Z + 2 * c, 2), vr(G + e, 2), vr(Q + 2 * c, 2), s, s))
        for rho in range(2):
            for k in range(4):
                a('v_cvt_pk_bf16_f32 v%d, v%d, v%d' % (8 + 4 * rho + k, P + 4 * k + rho, P + 4 * k + 2 + rho))
        a('ds_write_b128 v2, v[8:11]')
        a('ds_write_b128 v2, v[12:15] offset:%d' % QPITCH)
        a('ds_read_b128 v[16:19], v26')
        a('ds_read_b128 v[20:23], v26 offset:%d' % (8 * QPITCH))
        a('s_waitcnt lgkmcnt(1)')
        a('buffer_store_dwordx4 v[16:19], v27, %s, 0 offen sc1' % srd(sO))
        a('s_waitcnt lgkmcnt(0)')
        a('buffer_store_dwordx4 v[20:23], v27, %s, s77 offen sc1' % srd(sO))
        a('s_bitcmp1_b32 s72, 0')
        a('s_cselect_b64 vcc, -1, 0')
        a('s_waitcnt vmcnt(0)')
        for c in range(8):
            a('v_cndmask_b32 v%d, v%d, v%d, vcc' % (144 + 2 * c, P + 2 * c, P + 2 * c + 1))
        a('s_mov_b64 exec, s[70:71]')
        for k in range(4):
            a('buffer_store_dwordx4 %s, v25, %s, 0 offen offset:%d sc1' % (vr(144 + 4 * k, 4), srd(sWS), 16 * k))
        a('s_mov_b64 exec, -1')
        self.stamp(13)
        a('s_branch L_end')

    def nonconv(self):
        a = self.a
        a('L_nonconv:')
        a('s_mov_b32 s64, 0x05040100')
        a('s_mov_b32 s65, 0x07060302')
        a('v_lshrrev_b32 v2, 4, v1')
        a('v_and_b32 v3, 15, v1')
        a('v_mov_b32 v114, %s' % OOB)
        a('v_mov_b32 v115, %s' % OOB)
        a('s_waitcnt lgkmcnt(0)')
        a('s_cmp_ge_u32 s2, %d' % (MOD0 + N_MOD))
        a('s_cbranch_scc1 L_mlp')
        a('s_sub_u32 s70, s2, %d' % MOD0)
        a('v_lshlrev_b32 v4, 1, v0')
        a('buffer_load_ushort v6, v4, %s, 0 offen' % srd(sC))
        a('s_mul_i32 s72, s%d, %d' % (WV, 64 * 7680))
        a('s_lshl_b32 s73, s70, 7')
        a('s_add_u32 s72, s72, s73')
        a('v_mul_u32_u24 v4, %d, v2' % (16 * 7680))
        a('v_lshl_add_u32 v4, v3, 3, v4')
        for i in range(16):
            a('buffer_load_dwordx2 %s, v4, %s, s72 offen' % (vr(8 + 2 * i, 2), srd(sWM)))
            if i < 15:
                a('s_add_u32 s72, s72, 7680')
        a('s_waitcnt vmcnt(16)')
        a('v_lshlrev_b32 v6, 16, v6')
        self.silu(6, 7)
        a('v_mov_b32_dpp v7, v6 quad_perm:[1,0,3,2] %s' % DPP)
        a('v_cvt_pk_bf16_f32 v6, v6, v7')
        for i in range(4):
            a('v_mov_b32 v%d, 0' % (72 + i))
        for t in range(8):
            a('s_waitcnt vmcnt(%d)' % (14 - 2 * t))
            self.pair_rows(40 + 4 * t, 8 + 4 * t, 10 + 4 * t)
            self.pair_rows(42 + 4 * t, 9 + 4 * t, 11 + 4 * t)
        for t in range(8):
            for c in range(4):
                a('v_dot2c_f32_bf16_dpp v%d, v6, v%d row_newbcast:%d %s' % (72 + c, 40 + 4 * t + c, 2 * t, DPP))
        self.reduce4x4(72)
        a('v_lshl_add_u32 v4, v3, 2, v2')
        a('v_lshlrev_b32 v4, 2, v4')
        a('v_add_u32 v4, %d, v4' % MODACC)
        a('ds_add_f32 v4, v72')
        a('s_waitcnt lgkmcnt(0)')
        a('s_barrier')
        a('s_cmp_lg_u32 s%d, 0' % WV)
        a('s_cbranch_scc1 L_modpub')
        a('v_lshlrev_b32 v4, 3, v1')
        a('v_add_u32 v5, %d, v4' % MODACC)
        a('s_lshl_b32 s72, s70, 8')
        a('s_add_u32 s72, s72, %d' % MODG)
        a('v_add_u32 v4, s72, v4')
        a('s_mov_b32 exec_hi, 0')
        a('ds_read_b64 v[8:9], v5')
        a('s_waitcnt lgkmcnt(0)')
        a('v_cvt_pk_bf16_f32 v8, v8, v9')
        a('v_mov_b32 v9, s%d' % TAG)
        a('buffer_store_dwordx2 v[8:9], v4, %s, 0 offen sc1' % srd(sWS))
        a('s_mov_b64 exec, -1')
        a('L_modpub:')
        self.stamp(3)
        a('s_cmp_lt_u32 s2, %d' % (RED0 + N_RED))
        a('s_cbranch_scc1 L_keys')
        a('s_cmp_lt_u32 s2, %d' % MLP0)
        a('s_cbranch_scc1 L_end')
        a('L_mlp:')
        a('s_sub_u32 s70, s2, %d' % MLP0)
        a('s_bitcmp1_b32 s%d, 0' % WV)
        a('s_cselect_b64 s[%d:%d], s[%d:%d], s[%d:%d]' % (sWG, sWG + 1, sWU, sWU + 1, sWG, sWG + 1))
        a('s_lshr_b32 s71, s%d, 1' % WV)
        a('s_mul_i32 s72, s71, %d' % (128 * 3456))
        a('s_lshl_b32 s73, s70, 6')
        a('s_add_u32 s72, s72, s73')
        a('v_mul_u32_u24 v4, %d, v2' % (32 * 3456))
        a('v_lshl_add_u32 v4, v3, 2, v4')
        for t in range(16):
            a('buffer_load_dword v%d, v4, %s, s72 offen' % (8 + 2 * t, srd(sWG)))
            a('buffer_load_dword v%d, v4, %s, s72 offen offset:3456' % (9 + 2 * t, srd(sWG)))
            if t < 15:
                a('s_add_u32 s72, s72, 6912')
        a('s_mul_i32 s72, s70, %d' % (32 * 1280))
        a('s_lshl_b32 s73, s%d, 7' % WV)
        a('s_add_u32 s72, s72, s73')
        a('s_add_u32 s73, s72, 5120')
        a('v_mul_u32_u24 v4, %d, v2' % (8 * 1280))
        a('v_lshl_add_u32 v4, v3, 3, v4')
        for i in range(8):
            a('buffer_load_dwordx2 %s, v4, %s, s%d offen offset:%d' % (vr(72 + 2 * i, 2), srd(sWD), 72 + i // 4, 1280 * (i % 4)))
        for t in range(16):
            a('s_waitcnt vmcnt(%d)' % (38 - 2 * t))
            self.pair_rows(40 + 2 * t, 8 + 2 * t, 9 + 2 * t)
        for t in range(4):
            a('s_waitcnt vmcnt(%d)' % (6 - 2 * t))
            self.pair_rows(88 + 4 * t, 72 + 4 * t, 74 + 4 * t)
            self.pair_rows(90 + 4 * t, 73 + 4 * t, 75 + 4 * t)
        for i in range(8):
            a('v_mov_b32 v%d, 0' % (104 + i))
        a('s_and_b32 s72, s%d, 1' % WV)
        a('s_lshl_b32 s72, s72, 2')
        a('s_add_u32 s72, s72, %d' % GU)
        a('v_lshl_add_u32 v112, v3, 4, s72')
        a('v_and_b32 v4, 7, v1')
        a('v_lshl_add_u32 v113, v2, 3, v4')
        a('v_lshlrev_b32 v113, 3, v113')
        a('v_add_u32 v113, %d, v113' % GU)
        a('s_lshl_b32 s72, s71, 9')
        a('s_add_u32 s72, s72, %d' % H2G)
        a('v_lshl_add_u32 v114, v1, 3, s72')
        a('s_mul_i32 s72, s70, 5120')
        a('s_lshl_b32 s73, s%d, 9' % WV)
        a('s_add_u32 s72, s72, s73')
        a('s_add_u32 s72, s72, %d' % PART)
        a('v_lshrrev_b32 v5, 3, v3')
        a('v_lshlrev_b32 v115, 8, v5')
        a('v_lshl_add_u32 v115, v2, 6, v115')
        a('v_lshl_add_u32 v115, v4, 3, v115')
        a('v_add_u32 v115, s72, v115')
        self.stamp(4)
        a('L_keys:')
        a('v_mov_b32 v116, %d' % KEYMAX)
        a('s_cmp_ge_u32 s%d, 8' % WV)
        a('s_cbranch_scc1 L_keyjoin')
        a('s_lshl_b32 s72, s%d, 11' % WV)
        a('s_add_u32 s72, s72, %d' % KEYS)
        a('v_lshl_add_u32 v4, v3, 7, s72')
        a('s_mov_b64 exec, 0xffff')
        l, d = self.spin_head('keys')
        a('buffer_load_dwordx2 v[6:7], v4, %s, 0 offen sc1' % srd(sWS))
        self.spin_bound(d)
        a('s_waitcnt vmcnt(0)')
        a('v_cmp_ne_u32 vcc, s%d, v7' % TAG)
        a('s_cbranch_vccnz %s' % l)
        a('%s:' % d)
        a('s_waitcnt vmcnt(0)')
        a('ds_max_u32 v116, v6')
        a('s_mov_b64 exec, -1')
        a('s_waitcnt lgkmcnt(0)')
        a('L_keyjoin:')
        a('s_barrier')
        a('ds_read_b32 v6, v116')
        a('s_waitcnt lgkmcnt(0)')
        a('v_readfirstlane_b32 s74, v6')
        a('s_not_b32 s75, s74')
        a('s_and_b32 s75, s75, 0x7ff')
        a('s_lshr_b32 s76, s75, 4')
        self.stamp(5)
        a('s_cmp_lt_u32 s2, %d' % MLP0)
        a('s_cbranch_scc1 L_red')
        a('s_mul_i32 s77, s76, 2560')
        l, d = self.spin_head('xsel')
        a('buffer_load_dwordx2 v[6:7], v114, %s, s77 offen sc1' % srd(sWS))
        self.spin_bound(d)
        a('s_waitcnt vmcnt(0)')
        a('v_cmp_ne_u32 vcc, s%d, v7' % TAG)
        a('s_cbranch_vccnz %s' % l)
        a('%s:' % d)
        a('s_waitcnt vmcnt(0)')
        self.stamp(6)
        for t in range(16):
            for c in range(2):
                a('v_dot2c_f32_bf16_dpp v%d, v6, v%d row_newbcast:%d %s' % (104 + 2 * (t & 1) + c, 40 + 2 * t + c, t, DPP))
        a('v_add_f32 v104, v104, v106')
        a('v_add_f32 v105, v105, v107')
        a('ds_add_f32 v112, v104')
        a('ds_add_f32 v112, v105 offset:8')
        a('s_waitcnt lgkmcnt(0)')
        a('s_barrier')
        a('ds_read_b64 v[6:7], v113')
        a('s_waitcnt lgkmcnt(0)')
        self.silu(6, 8)
        a('v_mul_f32 v6, v6, v7')
        a('v_mov_b32_dpp v7, v6 quad_perm:[1,0,3,2] %s' % DPP)
        a('v_cvt_pk_bf16_f32 v6, v6, v7')
        for t in range(4):
            for c in range(4):
                a('v_dot2c_f32_bf16_dpp v%d, v6, v%d row_newbcast:%d %s' % (108 + c, 88 + 4 * t + c, 2 * t, DPP))
        self.reduce4x4(108)
        a('v_mov_b32 v109, s%d' % TAG)
        a('buffer_store_dwordx2 v[108:109], v115, %s, 0 offen sc1' % srd(sWS))
        self.stamp(7)
        a('s_branch L_end')
        a('L_red:')
        a('s_sub_u32 s70, s2, %d' % RED0)
        a('s_cmp_ge_u32 s%d, 7' % WV)
        a('s_cbranch_scc1 L_fin')
        a('s_lshl_b32 s72, s%d, 3' % WV)
        a('v_add_u32 v4, s72, v2')
        a('v_add_u32 v5, 4, v4')
        a('v_cmp_gt_u32 s[66:67], %d, v5' % N_MLP)
        a('v_min_u32 v5, %d, v5' % (N_MLP - 1))
        a('s_lshl_b32 s72, s70, 8')
        a('s_add_u32 s72, s72, %d' % PART)
        a('v_lshl_add_u32 v6, v3, 4, s72')
        a('v_mul_u32_u24 v4, 5120, v4')
        a('v_mul_u32_u24 v5, 5120, v5')
        a('v_add_u32 v4, v4, v6')
        a('v_add_u32 v5, v5, v6')
        a('v_and_b32 v6, 3, v3')
        a('v_lshrrev_b32 v7, 2, v3')
        a('v_lshl_add_u32 v6, v6, 3, v7')
        a('v_lshlrev_b32 v6, 2, v6')
        a('v_add_u32 v6, %d, v6' % RED)
        l, d = self.spin_head('part')
        a('buffer_load_dwordx4 v[8:11], v4, %s, 0 offen sc1' % srd(sWS))
        a('buffer_load_dwordx4 v[12:15], v5, %s, 0 offen sc1' % srd(sWS))
        self.spin_bound(d)
        a('s_waitcnt vmcnt(0)')
        for r in (9, 11, 13, 15):
            a('v_xor_b32 v%d, s%d, v%d' % (r, TAG, r))
        a('v_or3_b32 v9, v9, v11, v13')
        a('v_or_b32 v9, v9, v15')
        a('v_cmp_ne_u32 vcc, 0, v9')
        a('s_cbranch_vccnz %s' % l)
        a('%s:' % d)
        a('s_waitcnt vmcnt(0)')
        self.stamp(6)
        a('v_cndmask_b32 v12, 0, v12, s[66:67]')
        a('v_cndmask_b32 v14, 0, v14, s[66:67]')
        a('v_add_f32 v8, v8, v12')
        a('v_add_f32 v10, v10, v14')
        a('ds_add_f32 v6, v8')
        a('ds_add_f32 v6, v10 offset:16')
        a('s_waitcnt lgkmcnt(0)')
        a('s_barrier')
        a('s_branch L_end')
        a('L_fin:')
        a('s_cmp_lg_u32 s%d, 9' % WV)
        a('s_cbranch_scc1 L_end')
        a('s_mul_i32 s72, s76, 5120')
        a('s_lshl_b32 s73, s70, 8')
        a('s_add_u32 s72, s72, s73')
        a('s_add_u32 s72, s72, %d' % BASEG)
        a('v_lshl_add_u32 v4, v3, 4, s72')
        a('s_lshl_b32 s73, s70, 7')
        a('s_add_u32 s73, s73, %d' % (MODG + 5 * 2560))
        a('v_lshl_add_u32 v5, v3, 3, s73')
        a('v_lshlrev_b32 v6, 3, v3')
        a('v_add_u32 v6, %d, v6' % RED)
        a('s_mul_i32 s72, s75, 1280')
        a('s_lshl_b32 s73, s70, 6')
        a('s_add_u32 s72, s72, s73')
        a('v_lshl_add_u32 v7, v3, 2, s72')
        a('s_and_b32 s72, s74, 0xfffff800')
        a('s_or_b32 s72, s72, 0x400')
        a('s_not_b32 s73, s72')
        a('s_xor_b32 s77, s72, 0x80000000')
        a('s_bitcmp1_b32 s72, 31')
        a('s_cselect_b32 s72, s77, s73')
        a('v_mov_b32 v16, s72')
        a('v_mul_f32 v16, 0xbfb8aa3b, v16')
        a('v_exp_f32 v16, v16')
        a('v_add_f32 v16, 1.0, v16')
        a('v_rcp_f32 v16, v16')
        a('s_mov_b64 exec, 0xffff')
        l, d = self.spin_head('base')
        a('buffer_load_dwordx4 v[8:11], v4, %s, 0 offen sc1' % srd(sWS))
        a('buffer_load_dwordx2 v[12:13], v5, %s, 0 offen sc1' % srd(sWS))
        self.spin_bound(d)
        a('s_waitcnt vmcnt(0)')
        for r in (9, 11, 13):
            a('v_xor_b32 v%d, s%d, v%d' % (r, TAG, r))
        a('v_or3_b32 v9, v9, v11, v13')
        a('v_cmp_ne_u32 vcc, 0, v9')
        a('s_cbranch_vccnz %s' % l)
        a('%s:' % d)
        a('s_waitcnt vmcnt(0)')
        self.unpack(14, 15, 12)
        a('v_mul_f32 v14, v14, v16')
        a('v_mul_f32 v15, v15, v16')
        a('s_cmp_lg_u32 s70, 0')
        a('s_cbranch_scc1 L_noepoch')
        a('v_mov_b32 v17, 0')
        a('v_mov_b32 v18, s%d' % TAG)
        a('buffer_store_dword v18, v17, %s, 0 offen' % srd(sWS))
        a('L_noepoch:')
        self.stamp(6)
        a('s_barrier')
        a('ds_read_b64 v[12:13], v6')
        a('s_waitcnt lgkmcnt(0)')
        a('v_fmac_f32 v8, v14, v12')
        a('v_fmac_f32 v10, v15, v13')
        a('v_cvt_pk_bf16_f32 v8, v8, v10')
        a('buffer_store_dword v8, v7, %s, 0 offen' % srd(sO))
        a('s_mov_b64 exec, -1')
        self.stamp(7)

    def finish(self):
        a = self.a
        a('L_end:')
        if self.amp:
            wg, wave, j = self.amp
            self.stamp(15)
            a('s_cmp_lg_u32 s2, %d' % wg)
            a('s_cbranch_scc1 L_exit')
            a('s_cmp_lg_u32 s%d, %d' % (WV, wave))
            a('s_cbranch_scc1 L_exit')
            a('s_sub_u32 s72, s%d, s84' % (84 + j))
            a('s_min_u32 s72, s72, 10000')
            a('s_add_u32 s72, s72, 3000')
            a('L_amp:')
            a('s_memrealtime s[100:101]')
            a('s_waitcnt lgkmcnt(0)')
            a('s_sub_u32 s73, s100, s84')
            a('s_cmp_lt_u32 s73, s72')
            a('s_cbranch_scc1 L_amp')
        if self.diag:
            self.stamp(15)
            a('s_mov_b64 exec, -1')
            a('s_mul_i32 s72, s2, 640')
            a('s_add_u32 s72, s72, s%d' % T64)
            a('s_add_u32 s72, s72, %d' % DIAG)
            a('v_mov_b32 v2, s72')
            for i in range(16):
                a('v_mov_b32 v%d, s%d' % (8 + i, 84 + i))
            a('s_mov_b64 exec, 1')
            for i in range(4):
                a('buffer_store_dwordx4 %s, v2, %s, 0 offen offset:%d' % (vr(8 + 4 * i, 4), srd(sWS), 16 * i))
        a('L_exit:')
        a('s_endpgm')
        a('L_code_end:')

    def text(self):
        self.prologue()
        self.conv()
        self.rows()
        self.nonconv()
        self.finish()
        body = self.a.body().replace('CODE_LIMIT', 'L_code_end-%s_kernel-8' % NAME)
        code, desc = kernel_text(NAME + '_kernel', body, 168)
        return (HEADER + '; @launch grid=(256,1,1) block=(640,1,1) lds=%d\n' % LDS_BYTES +
                '.amdgcn_target "amdgcn-amd-amdhsa--gfx950"\n' + code + desc)


if __name__ == '__main__':
    out = sys.argv[1]
    amp = [tuple(int(x) for x in a[4:].split(',')) for a in sys.argv[2:] if a.startswith('amp=')]
    open(out, 'w').write(Gen(diag='diag' in sys.argv[2:], amp=amp[0] if amp else None).text())
```

```python
import sys
sys.path.insert(0, 'gen')
import gen1
from asmlib import kernel_text
N = gen1.NAME
def mk(path, order, grid, block, lds, vg):
    t = gen1.Gen().text()
    real = '; @launch kernel=%s_kernel grid=(256,1,1) block=(640,1,1) lds=%d\n' % (N, gen1.LDS_BYTES)
    emp = '; @launch kernel=empty_kernel grid=(%d,1,1) block=(%d,1,1) lds=%d\n' % (grid, block, lds)
    lines = ''.join(real if o == 'R' else emp for o in order)
    import re
    t = re.sub(r'; @launch grid.*\n', lines, t)
    code, desc = kernel_text('empty_kernel', '    s_endpgm\n', vg)
    open(path, 'w').write(t + code + desc)
mk('l1.s', 'RE', 1, 64, 0, 8)
mk('l2.s', 'ER', 1, 64, 0, 8)
mk('l3.s', 'RE', 256, 640, 158208, 168)
mk('l4.s', 'REEEE', 256, 256, 0, 8)
mk('l5.s', 'R', 256, 256, 0, 8)
```

```python
import sys
sys.path.insert(0, 'gen')
from asmlib import *

NAME = 'adaLN_cond__ssm_conv_h3__moe_arch_mod__prompt'
HEADER = open('cdna_kernels/%s.s.ref' % NAME).read().split('; Override launch')[0]

MODG, KEYS = 0x1000, 0x8000
H2G, BASEG, PART = 0x10000, 0x60000, 0x100000
F1, F2, GO = 0x150000, 0x1a0000, 0x1d0000
KVX, ZX, DIAG = 0x200000, 0x480000, 0x700000
WS_BYTES = 0x800000
KC, KPITCH = 0, 4160
RV, RPITCH = 66560, 4576
PS = 84864
ZS = 100224
QS, QPITCH = 120704, 1312
PAR = 141696
ACC = 157056
ST2, CS, GU, MODACC, RED, KEYMAX = ACC, ACC + 384, ACC + 512, ACC + 1024, ACC + 1536, ACC + 1792
ZCNT = ACC + 1824
ST1 = ACC + 2560
LDS_BYTES = ST1 + 128

N_CONV, N_ROW = 160, 128
MOD0, N_MOD = 160, 60
MLP0, N_MLP = 200, 54
RED0, N_RED = 160, 20
SPIN = 1 << 16
GROUPS = [('row', slice(0, 128)), ('conv', slice(128, 160)), ('red', slice(160, 180)), ('mod', slice(180, 200)),
          ('mm', slice(200, 220)), ('mlp', slice(220, 254))]

sK, sV, sSH, sWS, sSK, sO, sQ, sWR, sWG, sWU, sWD, sC, sWM, sD = [4 + 4 * i for i in range(14)]
SIZES = {sK: 2621440, sV: 2621440, sSH: 5120, sWS: WS_BYTES, sSK: 2621440, sQ: 2621440, sWR: 1280,
         sWG: 2211840, sWU: 2211840, sWD: 2211840, sC: 1280, sWM: 4915200, sO: 2621440}
SLOT = {sQ: 0, sK: 1, sV: 2, sSH: 3, sSK: 4, sD: 5, sWR: 7, sWG: 8, sWU: 9, sWD: 10, sC: 11, sWM: 12, sO: 13, sWS: 15}
TAG, WV, T64, HI = 60, 61, 62, 63
CG, RW = 3, 59
OOB = '0x7ffffff0'
MARK = '0x7f817f81'
DPP = 'row_mask:0xf bank_mask:0xf'

LANE, R4, C16, L8, P8, P16 = 1, 2, 3, 4, 5, 6
vPW, vPR, vKVST, vC128, vL16 = 7, 8, 9, 10, 11
vKI, vKW, vKVL, vZG0, vZG1, vZST = 12, 13, 14, 15, 16, 17
vQS, vST1, vPAR, vZLD, vSADD, vSRD, vIDX, vH2, vBASE, vORD, vOST = 18, 19, 20, 21, 22, 23, 24, 25, 26, 27, 28
vA, vB, vZW, vL4 = 160, 161, 162, 164


def srd(s):
    return 's[%d:%d]' % (s, s + 3)


def vr(a, n):
    return 'v[%d:%d]' % (a, a + n - 1)


class Gen:
    def __init__(self, diag=False, amp=None, **opt):
        self.a = Asm()
        self.diag = diag
        self.amp = amp
        self.opt = dict(prio=1, h2wait=0, pf=1, depth=1, keyprio=1, zwait=1, bg=1, klate=0, kstride=256, qwait=0, noq=0, full=1, wsoff=0, kp=0, early=0, l2pf=1, ksleep=0, msleep=4, gsleep=2, fsleep=8, modpf=0)
        self.opt.update(opt)

    def stamp(self, i):
        if self.diag is True or (self.diag and (i in (0, 15) or i in self.diag)) or (self.amp and i in (0, self.amp[2])):
            a = self.a
            a('s_memrealtime s[100:101]')
            a('s_waitcnt lgkmcnt(0)')
            a('s_mov_b32 s%d, s100' % (84 + i))

    def srd_tail(self, regs):
        for s in regs:
            self.a('s_mov_b32 s%d, %d' % (s + 2, SIZES[s]))
            self.a('s_mov_b32 s%d, 0x20000' % (s + 3))

    def ptrs(self, regs):
        for s in regs:
            self.a('s_load_dwordx2 s[%d:%d], s[0:1], %d' % (s, s + 1, 8 * SLOT[s]))

    def mad(self, dst, src, const, add):
        self.a('s_mov_b32 s83, %d' % const)
        self.a('v_mad_u32_u24 v%d, v%d, s83, v%d' % (dst, src, add))

    def unpack(self, dst_lo, dst_hi, src):
        self.a('v_lshlrev_b32 v%d, 16, v%d' % (dst_lo, src))
        self.a('v_and_b32 v%d, s%d, v%d' % (dst_hi, HI, src))

    def spin_head(self, name):
        a = self.a
        l, d = a.label(name), a.label(name + '_done')
        a('s_mov_b32 s79, 0')
        a('%s:' % l)
        return l, d

    def spin_bound(self, d):
        a = self.a
        a('s_add_u32 s79, s79, 1')
        a('s_cmp_gt_u32 s79, %d' % SPIN)
        a('s_cbranch_scc1 %s' % d)

    def poll16(self, name, soff, vtmp, width=1, sleep=0, vaddr=vC128, mask='0xffff'):
        a = self.a
        depth = self.opt['depth']
        op = 'buffer_load_dword' if width == 1 else 'buffer_load_dwordx2'
        reg = lambda k: ('v%d' % (vtmp + k)) if width == 1 else vr(vtmp + 2 * k, 2)
        ld = lambda k: a('%s %s, v%d, %s, s%d offen sc1' % (op, reg(k), vaddr, srd(sWS), soff))
        a('s_mov_b64 exec, %s' % mask)
        for k in range(depth - 1):
            ld(k)
        l, d = self.spin_head(name)
        for k in range(depth):
            ld((k + depth - 1) % depth)
            if sleep:
                a('s_sleep %d' % sleep)
            a('s_waitcnt vmcnt(%d)' % (depth - 1))
            if width == 2:
                a('v_mov_b32 v%d, v%d' % (vtmp + 2 * depth, vtmp + 2 * k))
            a('v_cmp_ne_u32 vcc, s%d, v%d' % (TAG, vtmp + k if width == 1 else vtmp + 2 * k + 1))
            a('s_and_b64 exec, vcc, vcc')
            a('s_cbranch_scc0 %s' % d)
        self.spin_bound(d)
        a('s_branch %s' % l)
        a('%s:' % d)
        a('s_mov_b64 exec, %s' % ('-1' if width == 1 else '0xffff'))

    def barrier_flag(self, soff, wait):
        a = self.a
        l, e = a.label('flagwave'), a.label('flagged')
        a('s_cmp_eq_u32 s%d, 9' % WV)
        a('s_cbranch_scc1 %s' % l)
        a(wait)
        a('s_barrier')
        a('s_branch %s' % e)
        a('%s:' % l)
        a('s_mov_b64 exec, 1')
        a(wait)
        a('s_barrier')
        a('buffer_store_dword v167, v%d, %s, s%d offen sc1' % (vC128, srd(sWS), soff))
        a('s_mov_b64 exec, -1')
        a('%s:' % e)

    def silu(self, x, t):
        a = self.a
        a('v_mul_f32 v%d, 0xbfb8aa3b, v%d' % (t, x))
        a('v_exp_f32 v%d, v%d' % (t, t))
        a('v_add_f32 v%d, 1.0, v%d' % (t, t))
        a('v_rcp_f32 v%d, v%d' % (t, t))
        a('v_mul_f32 v%d, v%d, v%d' % (x, x, t))

    def row_allreduce16(self, regs):
        for sh in (1, 2, 4, 8):
            for r in regs:
                self.a('v_add_f32_dpp v%d, v%d, v%d row_ror:%d %s' % (r, r, r, sh, DPP))

    def reduce4x4(self, r):
        a = self.a
        a('v_permlane32_swap_b32 v%d, v%d' % (r, r + 2))
        a('v_permlane32_swap_b32 v%d, v%d' % (r + 1, r + 3))
        a('v_add_f32 v%d, v%d, v%d' % (r, r, r + 2))
        a('v_add_f32 v%d, v%d, v%d' % (r + 1, r + 1, r + 3))
        a('v_permlane16_swap_b32 v%d, v%d' % (r, r + 1))
        a('v_add_f32 v%d, v%d, v%d' % (r, r, r + 1))

    def pair_rows(self, dst, x, y):
        self.a('v_perm_b32 v%d, v%d, v%d, s64' % (dst, y, x))
        self.a('v_perm_b32 v%d, v%d, v%d, s65' % (dst + 1, y, x))

    def prologue(self):
        a, o = self.a, self.opt
        KR, VR, SR, W, KP, VP, AC, OUT = 96, 103, 108, 112, 120, 134, 142, 152
        a('s_getpc_b64 s[66:67]')
        self.ptrs((sK, sV, sSH, sWS))
        if self.diag:
            for i in range(16):
                a('s_mov_b32 s%d, 0' % (84 + i))
        self.stamp(0)
        a('s_cmp_ge_u32 s2, 256')
        a('s_cbranch_scc1 L_exit')
        a('v_readfirstlane_b32 s%d, v0' % T64)
        a('s_lshr_b32 s74, s2, 3')
        if o['pf']:
            a('v_lshl_add_u32 v43, v0, 5, s74')
            a('v_lshlrev_b32 v43, 7, v43')
            a('v_cmp_gt_u32 vcc, CODE_LIMIT, v43')
            a('s_and_saveexec_b64 s[68:69], vcc')
            a('s_cbranch_execz L_nopf')
            a('v_mov_b32 v165, s67')
            a('v_add_co_u32 v164, vcc, s66, v43')
            a('v_addc_co_u32 v165, vcc, 0, v165, vcc')
            a('global_load_dword v163, v[164:165], off')
            a('L_nopf:')
            a('s_mov_b64 exec, -1')
        a('v_bfe_u32 v%d, v0, 4, 2' % R4)
        a('v_and_b32 v%d, 15, v0' % C16)
        a('s_and_b32 s75, s2, 7')
        a('s_lshr_b32 s70, s2, 4')
        a('s_lshl4_add_u32 s70, s75, s70')
        a('s_and_b32 s71, s74, 1')
        a('s_mul_i32 s72, s70, 20480')
        a('s_mul_i32 s73, s71, 640')
        a('s_add_u32 s73, s73, s%d' % T64)
        a('s_add_u32 s72, s72, s73')
        a('v_mul_u32_u24 v40, 5120, v%d' % R4)
        a('v_lshl_add_u32 v40, v%d, 2, v40' % C16)
        a('v_add_u32 v40, s72, v40')
        a('v_subrev_u32 v41, 3840, v40')
        a('v_lshlrev_b32 v42, 4, v%d' % C16)
        a('v_bfe_u32 v%d, v0, 3, 3' % L8)
        a('v_and_b32 v%d, 0x70, v42' % P16)
        a('v_lshl_add_u32 v%d, v%d, 14, v%d' % (vKVST, L8, P16))
        a('s_lshl_b32 s76, s70, 7')
        a('s_lshl_b32 s72, s73, 11')
        a('s_add_u32 s72, s72, s76')
        a('s_add_u32 s80, s72, %d' % KVX)
        a('s_lshl_b32 s72, s73, 8')
        a('s_add_u32 s72, s72, s76')
        a('s_add_u32 s78, s72, %d' % F1)
        a('s_lshl_b32 s73, s73, 2')
        self.srd_tail((sK, sV, sSH, sWS))
        a('s_waitcnt lgkmcnt(0)')
        for i in range(3):
            a('buffer_load_dword v%d, v41, %s, 0 offen offset:%d' % (KR + i, srd(sK), 1280 * i))
        for i in range(4):
            a('buffer_load_dword v%d, v40, %s, 0 offen offset:%d' % (KR + 3 + i, srd(sK), 1280 * i))
        a('buffer_load_dwordx4 %s, v42, %s, s73 offen' % (vr(SR, 4), srd(sSH)))
        for i in range(4):
            a('buffer_load_dword v%d, v40, %s, 0 offen offset:%d' % (VR + i, srd(sV), 1280 * i))
        if o['wsoff']:
            a('s_add_u32 s%d, s%d, %d' % (sWS, sWS, o['wsoff'] << 20))
            a('s_addc_u32 s%d, s%d, 0' % (sWS + 1, sWS + 1))
        a('s_load_dword s%d, s[%d:%d], 0' % (TAG, sWS, sWS + 1))
        self.ptrs((sSK, sD, sQ, sWR, sO, sWM))
        a('v_and_b32 v%d, 63, v0' % LANE)
        a('s_lshr_b32 s%d, s%d, 6' % (WV, T64))
        a('s_mul_i32 s%d, s75, 20' % CG)
        a('s_add_u32 s%d, s%d, s74' % (CG, CG))
        a('s_lshl4_add_u32 s%d, s75, s74' % RW)
        self.srd_tail([s for s in SIZES if s not in (sK, sV, sSH, sWS)])
        a('s_mov_b32 s%d, 0xffff0000' % HI)
        a('v_and_b32 v%d, 7, v0' % P8)
        a('v_lshlrev_b32 v%d, 7, v%d' % (vC128, C16))
        a('v_lshlrev_b32 v%d, 4, v%d' % (vL16, LANE))
        a('s_mul_i32 s72, s%d, 1536' % WV)
        a('s_add_u32 s72, s72, %d' % PS)
        self.mad(vPW, R4, 384, 42)
        a('v_add_u32 v%d, s72, v%d' % (vPW, vPW))
        a('v_and_b32 v43, 16, v%d' % P16)
        a('v_lshl_add_u32 v43, v%d, 5, v43' % L8)
        a('v_lshrrev_b32 v44, 1, v%d' % P8)
        a('v_mad_u32_u24 v%d, v44, s83, v43' % vPR)
        a('v_add_u32 v%d, s72, v%d' % (vPR, vPR))
        a('v_lshlrev_b32 v43, 2, v0')
        a('v_add_u32 v43, %d, v43' % ACC)
        a('v_mov_b32 v45, 0')
        a('ds_write_b32 v43, v45')
        a('s_cmp_ge_u32 s%d, 5' % WV)
        a('s_cselect_b32 s74, 1, 0')
        a('s_mul_i32 s75, s74, 5')
        a('s_sub_u32 s75, s%d, s75' % WV)
        a('s_mul_i32 s75, s75, 52')
        a('v_add_u32 v%d, s75, v%d' % (vKI, LANE))
        a('s_lshl2_add_u32 s75, s%d, s74' % CG)
        a('s_lshl_b32 s76, s75, 12')
        a('s_sub_u32 s76, s76, 32')
        a('v_lshl_add_u32 v46, v%d, 4, s76' % vKI)
        a('v_subrev_u32 v43, 2, v%d' % vKI)
        a('v_cmp_gt_u32 vcc, 256, v43')
        a('s_and_b32 vcc_hi, vcc_hi, 0x1fffff')
        a('s_cmp_lt_u32 s2, %d' % N_CONV)
        a('s_cselect_b64 vcc, vcc, 0')
        a('v_mov_b32 v47, %s' % OOB)
        a('v_cndmask_b32 v46, v47, v46, vcc')
        a('s_movk_i32 s77, 0x2000')
        if o['modpf']:
            a('s_lshr_b32 s72, s2, 3')
            a('s_mul_i32 s72, s72, 7')
            a('s_add_u32 s72, s72, s%d' % WV)
            a('s_sub_u32 s72, s72, 140')
            a('s_mul_i32 s72, s72, %d' % (8 * 7680))
            a('s_and_b32 s73, s2, 7')
            a('s_lshl_b32 s73, s73, 7')
            a('s_add_u32 s72, s72, s73')
            a('v_lshl_add_u32 v43, v%d, 10, s72' % P8)
            self.mad(43, L8, 7680, 43)
            a('s_cmp_ge_u32 s2, %d' % N_CONV)
            a('s_cselect_b64 vcc, -1, 0')
            a('s_cmp_lt_u32 s%d, 7' % WV)
            a('s_cselect_b64 vcc, vcc, 0')
            a('v_cndmask_b32 v47, v47, v43, vcc')
        a('v_lshlrev_b32 v%d, 2, v%d' % (vL4, LANE))
        self.conv_addresses()
        a('s_waitcnt lgkmcnt(0)')
        self.ptrs((sWU, sWD, sC, sWG))
        a('s_min_u32 s72, s%d, %d' % (CG, N_CONV - 1))
        a('s_lshl_b32 s72, s72, 3')
        a('s_load_dwordx2 s[68:69], s[%d:%d], s72' % (sD, sD + 1))
        a('s_mul_i32 s%d, s%d, 0x9e3779b1' % (TAG, TAG))
        a('s_add_u32 s%d, s%d, 0x7f4a7c15' % (TAG, TAG))
        a('v_mov_b32 v167, s%d' % TAG)

        def kloads():
            a('buffer_load_dwordx4 v[48:51], v46, %s, 0 offen' % srd(sSK))
            a('buffer_load_dwordx4 v[56:59], v46, %s, s77 offen' % srd(sSK))
            if o['modpf']:
                a('buffer_load_dword v163, v47, %s, 0 offen' % srd(sWM))
        if not o['klate']:
            kloads()
        self.stamp(14)
        a('s_waitcnt vmcnt(%d)' % (4 if o['klate'] else 6 + o['modpf']))
        if o['klate']:
            kloads()
        for i in range(7):
            self.unpack(KP + 2 * i, KP + 1 + 2 * i, KR + i)
        for j in range(4):
            for dst, src in ((W + 2 * j, SR + j // 2), (W + 1 + 2 * j, SR + 2 + j // 2)):
                if j % 2 == 0:
                    a('v_lshlrev_b32 v%d, 16, v%d' % (dst, src))
                else:
                    a('v_and_b32 v%d, s%d, v%d' % (dst, HI, src))
        for j in range(4):
            for r in range(4):
                kp = KP + 2 * (r + 3 - j)
                if j == 0:
                    a('v_pk_mul_f32 %s, %s, %s' % (vr(AC + 2 * r, 2), vr(W, 2), vr(kp, 2)))
                else:
                    a('v_pk_fma_f32 %s, %s, %s, %s' % (vr(AC + 2 * r, 2), vr(W + 2 * j, 2), vr(kp, 2), vr(AC + 2 * r, 2)))
        a('s_waitcnt vmcnt(%d)' % (2 + o['modpf']))
        for i in range(4):
            self.unpack(VP + 2 * i, VP + 1 + 2 * i, VR + i)
        for r in range(4):
            a('v_pk_mul_f32 %s, %s, %s' % (vr(AC + 2 * r, 2), vr(AC + 2 * r, 2), vr(VP + 2 * r, 2)))
        a('v_cvt_pk_bf16_f32 v%d, v%d, v%d' % (OUT, AC + 6, AC + 4))
        a('v_cvt_pk_bf16_f32 v%d, v%d, v%d' % (OUT + 1, AC + 2, AC))
        a('v_cvt_pk_bf16_f32 v%d, v%d, v%d' % (OUT + 2, AC + 7, AC + 5))
        a('v_cvt_pk_bf16_f32 v%d, v%d, v%d' % (OUT + 3, AC + 3, AC + 1))
        a('ds_write_b128 v%d, %s' % (vPW, vr(OUT, 4)))
        a('ds_read_b128 %s, v%d' % (vr(OUT + 4, 4), vPR))
        a('s_cmp_ge_u32 s2, %d' % N_CONV)
        a('s_waitcnt lgkmcnt(0)')
        a('buffer_store_dwordx4 %s, v%d, %s, s80 offen sc1' % (vr(OUT + 4, 4), vKVST, srd(sWS)))
        self.stamp(1)
        a('s_cbranch_scc1 L_nonconv')

    def wave_flag(self, soff):
        a = self.a
        if self.opt['full']:
            a('s_mov_b32 exec_hi, 0')
        else:
            a('s_mov_b64 exec, 1')
        a('s_waitcnt vmcnt(0)')
        a('buffer_store_dword v167, v%d, %s, s%d offen sc1' % (vL4, srd(sWS), soff))
        a('s_mov_b64 exec, -1')

    def flag_probe(self, soff, v):
        self.a('s_mov_b64 exec, 0xffff')
        self.a('buffer_load_dword v%d, v%d, %s, s%d offen sc1' % (v, vC128, srd(sWS), soff))
        self.a('s_mov_b64 exec, -1')

    def flag_confirm(self, name, soff, v):
        a = self.a
        a('s_mov_b64 exec, 0xffff')
        l, d = self.spin_head(name)
        a('v_cmp_ne_u32 vcc, s%d, v%d' % (TAG, v))
        a('s_and_b64 exec, vcc, vcc')
        a('s_cbranch_scc0 %s' % d)
        a('buffer_load_dword v%d, v%d, %s, s%d offen sc1' % (v, vC128, srd(sWS), soff))
        a('s_add_u32 s79, s79, 1')
        a('s_cmp_gt_u32 s79, %d' % SPIN)
        a('s_waitcnt vmcnt(0)')
        a('s_cbranch_scc0 %s' % l)
        a('%s:' % d)
        a('s_mov_b64 exec, -1')

    def data_confirm(self, name, loads, r0, r1, count_stamp):
        a = self.a
        l, d = self.spin_head(name)
        a('s_waitcnt vmcnt(0)')
        a('v_cmp_eq_u32 vcc, s82, v%d' % r0)
        a('v_cmp_eq_u32 s[70:71], s82, v%d' % r1)
        a('s_or_b64 exec, vcc, s[70:71]')
        a('s_cbranch_scc0 %s' % d)
        loads()
        a('s_add_u32 s79, s79, 1')
        a('s_cmp_gt_u32 s79, %d' % SPIN)
        a('s_cbranch_scc0 %s' % l)
        a('s_waitcnt vmcnt(0)')
        a('%s:' % d)
        a('s_mov_b64 exec, -1')
        if self.diag is True and count_stamp is not None:
            a('s_mul_i32 s79, s79, 100')
            a('s_add_u32 s%d, s84, s79' % (84 + count_stamp))

    def conv_addresses(self):
        a = self.a
        a('s_mul_i32 s72, s74, %d' % (4 * KPITCH))
        a('v_lshl_add_u32 v%d, v%d, 4, s72' % (vKW, vKI))
        a('s_lshl_b32 s72, s%d, 9' % WV)
        a('s_sub_u32 s72, %d, s72' % (RV + 3832))
        a('v_lshrrev_b32 v43, 1, v%d' % LANE)
        a('v_lshlrev_b32 v43, 3, v43')
        a('v_sub_u32 v43, s72, v43')
        a('v_and_b32 v45, 1, v0')
        self.mad(vKVL, 45, 2 * RPITCH, 43)
        a('s_and_b32 s72, s%d, 3' % WV)
        a('s_mul_i32 s72, s72, 640')
        a('s_add_u32 s72, s72, %d' % ZS)
        a('v_lshl_add_u32 v43, v45, 2, s72')
        a('v_lshl_add_u32 v43, v%d, 3, v43' % L8)
        self.mad(vZG0, 44, 160, 43)
        a('v_add_u32 v%d, 64, v%d' % (vZG1, vZG0))
        self.mad(vZST, L8, 20480, P16)
        a('s_cmp_ge_u32 s%d, 4' % WV)
        a('s_cbranch_scc1 L_nomf')
        for i in range(32):
            a('v_mov_b32 v%d, 0' % (64 + i))
        a('s_mul_i32 s72, s%d, %d' % (WV, RPITCH))
        a('s_add_u32 s76, s72, %d' % (RV + 4096))
        a('v_min_u32 v43, 59, v%d' % LANE)
        a('v_lshl_add_u32 v43, v43, 3, s76')
        a('ds_write_b64 v43, v[64:65]')
        a('s_add_u32 s72, s72, %d' % (RV + 480))
        a('v_lshl_add_u32 v%d, v%d, 4, s72' % (vB, R4))
        a('v_lshlrev_b32 v43, 5, v%d' % C16)
        a('v_sub_u32 v%d, v%d, v43' % (vB, vB))
        a('v_lshl_add_u32 v43, v%d, 3, v%d' % (R4, C16))
        a('v_add_u32 v43, 1, v43')
        a('v_and_b32 v45, 3, v43')
        a('s_mul_i32 s72, s%d, %d' % (WV, 4 * KPITCH))
        a('v_lshl_add_u32 v43, v43, 1, s72')
        self.mad(vA, 45, KPITCH - 2, 43)
        a('s_mul_i32 s72, s%d, 5120' % WV)
        a('s_add_u32 s72, s72, %d' % ZS)
        a('v_lshl_add_u32 v43, v%d, 3, s72' % C16)
        self.mad(vZW, R4, 160, 43)
        a('L_nomf:')
        self.mad(vOST, L8, 1280, P16)

    def row_addresses(self):
        a = self.a
        a('s_lshl_b32 s72, s%d, 7' % WV)
        a('s_add_u32 s72, s72, %d' % QS)
        a('v_lshl_add_u32 v43, v%d, 4, s72' % L8)
        self.mad(vQS, P8, 2 * QPITCH, 43)
        a('v_add_u32 v43, s72, v%d' % P16)
        self.mad(vORD, L8, QPITCH, 43)
        a('v_add_u32 v%d, %d, v%d' % (vST1, ST1, P16))
        a('v_lshlrev_b32 v%d, 5, v%d' % (vH2, L8))
        a('v_lshlrev_b32 v%d, 6, v%d' % (vBASE, L8))
        a('s_lshl_b32 s72, s%d, 8' % WV)
        a('s_add_u32 s72, s72, %d' % PAR)
        a('v_add_u32 v%d, s72, v%d' % (vPAR, vH2))
        a('v_lshl_add_u32 v%d, v%d, 8, v%d' % (vZLD, L8, P16))
        a('v_mul_u32_u24 v43, 48, v%d' % P8)
        a('v_add_u32 v%d, %d, v43' % (vSRD, ST2))
        a('v_bfe_u32 v43, v0, 4, 1')
        a('v_bfe_u32 v45, v0, 3, 1')
        a('v_lshl_add_u32 v43, v45, 1, v43')
        a('v_min_u32 v43, 2, v43')
        a('v_lshl_add_u32 v43, v43, 4, v%d' % vSRD)
        a('v_bfe_u32 v45, v0, 5, 1')
        a('v_lshl_add_u32 v%d, v45, 3, v43' % vSADD)
        a('s_lshl_b32 s72, s%d, 4' % RW)
        a('s_sub_u32 s72, 2047, s72')
        a('v_lshlrev_b32 v43, 1, v%d' % P8)
        a('v_sub_u32 v%d, s72, v43' % vIDX)

    def kprep(self, rho):
        a = self.a
        d, t = (48, 96) if rho == 0 else (56, 108)
        a('s_lshl_b32 s72, s%d, 16' % (68 + rho))
        a('s_and_b32 s73, s%d, s%d' % (68 + rho, HI))
        a('s_cmp_ge_u32 s%d, 5' % WV)
        a('s_cselect_b32 s72, s73, s72')
        a('v_lshlrev_b32 v40, 16, v%d' % d)
        a('v_add_f32 v40, s72, v40')
        a('v_cvt_pk_bf16_f32 v40, v40, v40')
        a('v_bfi_b32 v40, s%d, v%d, v40' % (HI, d))
        a('v_cndmask_b32 v%d, v%d, v40, s[64:65]' % (d, d))
        a('v_mov_b32_dpp v%d, v%d wave_shl:1 %s' % (d + 5, d + 1, DPP))
        a('v_mov_b32_dpp v%d, v%d wave_shl:1 %s' % (d + 4, d, DPP))
        for i in range(4):
            a('v_alignbit_b32 v%d, v%d, v%d, 16' % (t + i, d + i + 1, d + i))
            a('v_mov_b32 v%d, v%d' % (t + 4 + i, d + i + 1))
            a('v_alignbit_b32 v%d, v%d, v%d, 16' % (t + 8 + i, d + i + 2, d + i + 1))
        a('s_mov_b32 exec_hi, 0xfffff')
        for s, r in enumerate((d, t, t + 4, t + 8)):
            a('ds_write_b128 v%d, %s offset:%d' % (vKW, vr(r, 4), KC + (8 * rho + s) * KPITCH))
        a('s_mov_b32 exec_hi, -1')

    def conv(self):
        a, o = self.a, self.opt
        a('s_lshr_b32 s72, s%d, 3' % CG)
        a('s_lshl_b32 s72, s72, 14')
        a('s_lshl_b32 s73, s%d, 11' % WV)
        a('s_add_u32 s72, s72, s73')
        a('s_add_u32 s80, s72, %d' % F1)
        a('s_lshl_b32 s72, s%d, 14' % CG)
        a('s_add_u32 s72, s72, s73')
        a('s_add_u32 s81, s72, %d' % KVX)
        a('v_cmp_eq_u32 s[64:65], 2, v%d' % vKI)
        if o['kp'] >= 1:
            a('s_waitcnt vmcnt(1)')
            self.kprep(0)
        self.wave_flag(78)
        self.stamp(2)
        a('s_cmp_ge_u32 s%d, 8' % WV)
        a('s_cbranch_scc1 L_qload')
        a('L_kp0:')
        if o['kp'] < 1:
            self.kprep(0)
        if o['early'] == 1:
            self.flag_probe(80, 30)
        self.kprep(1)
        if o['early'] == 2:
            self.flag_probe(80, 30)
        self.row_addresses()
        a('s_waitcnt lgkmcnt(0)')
        a('s_barrier')
        A = lambda i: 96 + 4 * i
        B = lambda j: 128 + 4 * j

        def ldA(i, nxt):
            off = 512 * i + (64 if nxt else 0)
            return ['ds_read_b64 %s, v%d offset:%d' % (vr(A(i), 2), vA, off),
                    'ds_read_b64 %s, v%d offset:%d' % (vr(A(i) + 2, 2), vA, off + 8)]

        def ldB(j, nxt):
            return ['ds_read_b128 %s, v%d offset:%d' % (vr(B(j), 4), vB, 512 * (7 - j) + (64 if nxt else 0))]

        a('s_cmp_ge_u32 s%d, 4' % WV)
        a('s_cbranch_scc1 L_noA')
        for i in range(7, 0, -1):
            for l in ldA(i, False):
                a(l)
        a('L_noA:')
        a('s_cmp_ge_u32 s%d, 8' % WV)
        a('s_cbranch_scc1 L_qstat')
        if o['early']:
            a('s_waitcnt vmcnt(0)')
            self.flag_confirm('f1', 80, 30)
        else:
            self.poll16('f1', 80, 30)
        self.stamp(4)
        a('buffer_load_dwordx4 v[32:35], v%d, %s, s81 offen sc1' % (vL16, srd(sWS)))
        a('buffer_load_dwordx4 v[36:39], v%d, %s, s81 offen offset:1024 sc1' % (vL16, srd(sWS)))
        a('s_waitcnt vmcnt(1)')
        a('ds_write_b64 v%d, v[32:33] offset:256' % vKVL)
        a('ds_write_b64 v%d, v[34:35] offset:%d' % (vKVL, 256 + RPITCH))
        a('s_waitcnt vmcnt(0)')
        a('ds_write_b64 v%d, v[36:37]' % vKVL)
        a('ds_write_b64 v%d, v[38:39] offset:%d' % (vKVL, RPITCH))
        a('L_kvdone:')
        a('s_and_b32 s75, s%d, 3' % WV)
        a('s_mul_i32 s72, s75, %d' % (16 * 20480))
        a('s_lshl_b32 s78, s%d, 7' % CG)
        a('s_add_u32 s72, s72, s78')
        a('s_add_u32 s80, s72, %d' % ZX)
        a('s_add_u32 s81, s80, %d' % (8 * 20480))
        a('s_add_u32 s76, s80, %d' % (64 * 20480))
        a('s_add_u32 s77, s81, %d' % (64 * 20480))
        a('v_mov_b32 v30, %d' % ZCNT)
        a('v_mov_b32 v31, 1')
        a('s_mov_b32 s72, 0')
        a('s_cmp_ge_u32 s%d, 4' % WV)
        a('s_waitcnt lgkmcnt(0)')
        a('s_barrier')
        if self.diag or self.amp:
            self.stamp(5)
            a('s_cmp_ge_u32 s%d, 4' % WV)
        a('s_cbranch_scc1 L_helper')
        for j in range(4):
            a(ldB(j, False)[0])
        if o['prio']:
            a('s_setprio 3')
        order = [(7, 0), (6, 0), (5, 0), (4, 0), (6, 1), (5, 1), (4, 1), (5, 2), (4, 2), (4, 3)]
        order += [(i, j) for j in range(4) for i in (3, 2, 1, 0)]
        order += [(3, 4), (2, 4), (2, 5), (1, 4), (1, 5), (1, 6), (0, 4), (0, 5), (0, 6), (0, 7)]
        after = {}
        for slot, kind, idx, nxt in [(1, 'A', 0, 0), (3, 'A', 7, 1), (5, 'A', 6, 1), (7, 'B', 4, 0), (8, 'A', 5, 1), (10, 'A', 4, 1),
                                     (12, 'B', 5, 0), (13, 'B', 6, 0), (14, 'B', 0, 1), (15, 'B', 7, 0), (18, 'B', 1, 1), (22, 'B', 2, 1),
                                     (26, 'B', 3, 1), (27, 'A', 3, 1), (29, 'A', 2, 1), (32, 'A', 1, 1)]:
            for k, l in enumerate((ldA if kind == 'A' else ldB)(idx, nxt)):
                after.setdefault(slot + k, []).append((kind + str(idx), l))
        issued, last, done = 0, {}, 0
        waits, hist = {}, []
        for it in range(4):
            for slot, (i, j) in enumerate(order, 1):
                needed = max(last.get('A%d' % i, 0), last.get('B%d' % j, 0))
                if needed > done:
                    n = min(issued - needed, sum(hist[-8:]))
                    done = issued - n
                    waits.setdefault(it, {})[slot] = n
                hist.append(len(after.get(slot, [])))
                for key, l in after.get(slot, []):
                    issued += 1
                    last[key] = issued
        assert waits[2] == waits[3]
        waits = waits[3]
        a('.p2align 5')
        a('s_nop 0')
        a('s_waitcnt lgkmcnt(0)')
        a('L_mfma:')
        for slot, (i, j) in enumerate(order, 1):
            if slot in waits:
                a('s_waitcnt lgkmcnt(%d)' % waits[slot])
            g = 64 + 4 * (i + j)
            a('v_mfma_f32_16x16x32_bf16 %s, %s, %s, %s' % (vr(g, 4), vr(A(i), 4), vr(B(j), 4), vr(g, 4)))
            for key, l in after.get(slot, []):
                a(l)
            if slot == 34:
                a('v_add_u32 v%d, 64, v%d' % (vA, vA))
                a('v_add_u32 v%d, 64, v%d' % (vB, vB))
            if slot == 35:
                a('s_add_u32 s72, s72, 1')
                a('s_cmp_lt_u32 s72, 8')
        a('s_cbranch_scc1 L_mfma')
        self.stamp(6)
        for g in range(8):
            r = 64 + 4 * g
            a('v_cvt_pk_bf16_f32 v%d, v%d, v%d' % (44 + 2 * g, r, r + 1))
            a('v_cvt_pk_bf16_f32 v%d, v%d, v%d' % (45 + 2 * g, r + 2, r + 3))
            a('ds_write_b64 v%d, %s offset:%d' % (vZW, vr(44 + 2 * g, 2), 640 * g))
        a('s_mov_b64 exec, 1')
        a('ds_add_rtn_u32 v60, v30, v31')
        a('s_mov_b32 s72, 7')
        l, d = self.spin_head('zs')
        a('s_waitcnt lgkmcnt(0)')
        a('v_cmp_eq_u32 vcc, s72, v60')
        a('s_cbranch_vccnz %s' % d)
        a('ds_read_b32 v60, v30')
        a('s_mov_b32 s72, 8')
        a('s_add_u32 s79, s79, 1')
        a('s_cmp_gt_u32 s79, %d' % (SPIN * 16))
        a('s_cbranch_scc0 %s' % l)
        a('%s:' % d)
        a('s_mov_b64 exec, -1')
        self.stamp(7)
        for k, (va, off) in enumerate(((vZG0, 0), (vZG1, 0), (vZG0, 10), (vZG1, 10))):
            a('ds_read2st64_b32 %s, v%d offset0:%d offset1:%d' % (vr(80 + 4 * k, 2), va, off, off + 20))
            a('ds_read2st64_b32 %s, v%d offset0:%d offset1:%d' % (vr(82 + 4 * k, 2), va, off + 40, off + 60))
        for k, sreg in enumerate((80, 81, 76, 77)):
            a('s_waitcnt lgkmcnt(%d)' % (6 - 2 * k))
            a('buffer_store_dwordx4 %s, v%d, %s, s%d offen sc1' % (vr(80 + 4 * k, 4), vZST, srd(sWS), sreg))
        if o['prio']:
            a('s_setprio 0')
        a('L_zjoin:')
        a('s_cmp_ge_u32 s2, %d' % N_ROW)
        a('s_cbranch_scc1 L_end')
        a('s_waitcnt lgkmcnt(0)')
        a('s_barrier')
        self.stamp(3)

    def helper(self):
        a = self.a
        o = self.opt
        a('L_qload:')
        a('s_cmp_ge_u32 s2, %d' % (0 if o['noq'] else N_ROW))
        a('s_cbranch_scc1 L_kp0')
        a('s_mul_i32 s72, s%d, 20480' % RW)
        a('s_and_b32 s73, s%d, 1' % WV)
        a('s_mul_i32 s73, s73, 10240')
        a('s_add_u32 s72, s72, s73')
        for i in range(10):
            a('buffer_load_dwordx4 %s, v%d, %s, s72 offen offset:%d' % (vr(120 + 4 * i, 4), vOST, srd(sQ), 128 * i))
        a('s_branch L_kp0')
        a('L_qstat:')
        a('s_cmp_ge_u32 s2, %d' % N_ROW)
        a('s_cbranch_scc1 L_kvdone')
        a('s_and_b32 s72, s%d, 1' % WV)
        a('s_mul_i32 s73, s72, %d' % (8 * QPITCH))
        a('s_add_u32 s73, s73, %d' % QS)
        self.mad(42, L8, QPITCH, P16)
        a('v_add_u32 v42, s73, v42')
        a('s_lshl_b32 s73, s72, 6')
        a('s_add_u32 s73, s73, %d' % ST1)
        a('v_lshl_add_u32 v43, v%d, 4, s73' % R4)
        a('v_and_b32 v44, 1, v%d' % L8)
        a('v_lshl_add_u32 v43, v44, 2, v43')
        for i in range(4):
            a('v_mov_b32 v%d, 0' % (44 + i))
        a('s_mov_b32 s74, 0x3f803f80')
        for i in range(10):
            a('s_waitcnt vmcnt(%d)' % (9 - i + (1 if o['early'] else 0)))
            a('ds_write_b128 v42, %s offset:%d' % (vr(120 + 4 * i, 4), 128 * i))
            for k in range(4):
                r = 120 + 4 * i + k
                a('v_dot2c_f32_bf16 v%d, s74, v%d' % (44 + (k & 1), r))
                a('v_dot2c_f32_bf16 v%d, v%d, v%d' % (46 + (k & 1), r, r))
        a('v_add_f32 v44, v44, v45')
        a('v_add_f32 v46, v46, v47')
        for ctl in ('quad_perm:[1,0,3,2]', 'quad_perm:[2,3,0,1]', 'row_half_mirror'):
            for r in (44, 46):
                a('v_add_f32_dpp v%d, v%d, v%d %s %s' % (r, r, r, ctl, DPP))
        a('v_mul_f32 v44, 0xbacccccd, v44')
        a('v_mul_f32 v46, 0x3acccccd, v46')
        a('v_fma_f32 v46, -v44, v44, v46')
        a('v_max_f32 v46, 0, v46')
        a('v_add_f32 v46, 0x3727c5ac, v46')
        a('v_rsq_f32 v46, v46')
        a('v_mul_f32 v44, v44, v46')
        a('ds_write2_b32 v43, v46, v44 offset0:0 offset1:2')
        self.stamp(4)
        a('s_branch L_kvdone')
        a('L_helper:')
        a('s_cmp_lt_u32 s%d, 8' % WV)
        a('s_cbranch_scc1 L_hclr')
        a('s_cmp_lg_u32 s%d, 9' % WV)
        a('s_cbranch_scc1 L_hmod')
        a('s_add_u32 s72, s78, %d' % GO)
        a('s_mov_b32 exec_hi, 0')
        a('buffer_store_dword v167, v%d, %s, s72 offen sc1' % (vL4, srd(sWS)))
        a('s_mov_b64 exec, -1')
        a('s_branch L_hmod')
        a('L_hclr:')
        a('s_and_b32 s70, s2, 7')
        a('s_lshr_b32 s71, s2, 3')
        if o['l2pf'] == 1:
            a('v_lshlrev_b32 v40, 10, v%d' % P8)
            self.mad(40, L8, 7680, 40)
            a('s_lshl2_add_u32 s72, s71, s75')
            a('s_mul_i32 s72, s72, %d' % (8 * 7680))
            a('s_lshl_b32 s73, s70, 7')
            a('s_add_u32 s72, s72, s73')
            a('buffer_load_dword v163, v40, %s, s72 offen' % srd(sWM))
        for i in range(4):
            a('v_mov_b32 v%d, %s' % (44 + i, MARK))
        for sreg in (80, 81, 76, 77):
            a('buffer_store_dwordx4 v[44:47], v%d, %s, s%d offen sc1' % (vZST, srd(sWS), sreg))
        if o['l2pf']:
            a('v_and_b32 v41, 3, v0')
            a('v_lshl_add_u32 v42, v41, 3, s70')
            a('s_lshr_b32 s72, s70, 1')
            a('s_add_u32 s72, s72, 24')
            a('v_min_u32 v42, s72, v42')
            a('v_lshlrev_b32 v42, 7, v42')
            a('v_lshrrev_b32 v41, 2, v%d' % LANE)
            self.mad(41, 41, 3456, 42)
            a('s_bitcmp1_b32 s75, 0')
            a('s_cselect_b64 s[%d:%d], s[%d:%d], s[%d:%d]' % (sWG, sWG + 1, sWU, sWU + 1, sWG, sWG + 1))
            a('s_lshr_b32 s72, s75, 1')
            a('s_lshl1_add_u32 s72, s71, s72')
            a('s_mul_i32 s72, s72, %d' % (16 * 3456))
            a('buffer_load_dword v163, v41, %s, s72 offen' % srd(sWG))
            a('s_lshl3_add_u32 s72, s75, s70')
            a('s_mul_i32 s72, s72, 20')
            a('s_add_u32 s72, s72, s71')
            a('s_lshl_b32 s72, s72, 12')
            a('s_add_u32 s73, s70, 48')
            a('s_mul_i32 s73, s73, 20')
            a('s_add_u32 s73, s73, s71')
            a('s_lshl_b32 s73, s73, 11')
            a('s_cmp_eq_u32 s75, 3')
            a('s_cselect_b32 s72, s73, s72')
            a('v_lshl_add_u32 v41, v%d, 7, s72' % LANE)
            a('s_mov_b32 exec_hi, 0')
            a('buffer_load_dword v163, v41, %s, 0 offen' % srd(sWD))
            a('s_mov_b32 exec_hi, -1')
        a('s_mul_i32 s72, s75, 20480')
        a('s_add_u32 s72, s72, s78')
        a('s_add_u32 s72, s72, %d' % F2)
        a('v_bfe_u32 v40, v0, 5, 1')
        self.mad(40, 40, 4 * 20480 - 128, vL4)
        a('s_waitcnt vmcnt(%d)' % (2 if o['l2pf'] else 0))
        a('buffer_store_dword v167, v40, %s, s72 offen sc1' % srd(sWS))
        a('s_mov_b64 exec, 1')
        a('ds_add_u32 v30, v31')
        a('s_mov_b64 exec, -1')
        a('s_cmp_lg_u32 s%d, 4' % WV)
        a('s_cbranch_scc1 L_hmod')
        a('s_cmp_ge_u32 s2, %d' % N_ROW)
        a('s_cbranch_scc1 L_zjoin')
        a('s_lshr_b32 s72, s%d, 4' % RW)
        a('s_mul_i32 s72, s72, 20480')
        a('s_add_u32 s72, s72, %d' % F2)
        a('s_add_u32 s73, s72, 8192')
        a('s_add_u32 s74, s72, 12288')
        a('v_lshlrev_b32 v40, 7, v%d' % LANE)
        l, d = self.spin_head('clr')
        a('s_sleep %d' % o['fsleep'])
        for k in range(3):
            a('buffer_load_dword v%d, v40, %s, s%d offen sc1' % (41 + k, srd(sWS), 72 + k))
        self.spin_bound(d)
        a('s_waitcnt vmcnt(0)')
        a('v_cmp_ne_u32 vcc, s%d, v41' % TAG)
        a('v_cmp_ne_u32 s[70:71], s%d, v42' % TAG)
        a('s_or_b64 s[70:71], s[70:71], vcc')
        a('v_cmp_ne_u32 vcc, s%d, v43' % TAG)
        a('s_or_b64 exec, s[70:71], vcc')
        a('s_cbranch_scc1 %s' % l)
        a('%s:' % d)
        a('s_mov_b64 exec, -1')
        self.stamp(7)
        a('s_branch L_zjoin')
        a('L_hmod:')
        a('s_cmp_ge_u32 s2, %d' % N_ROW)
        a('s_cbranch_scc1 L_zjoin')
        a('v_subrev_u32 v40, 320, v0')
        a('v_lshlrev_b32 v41, 2, v40')
        a('buffer_load_dword v76, v41, %s, 0 offen' % srd(sWR))
        a('v_lshlrev_b32 v41, 3, v40')
        a('v_add_u32 v42, %d, v41' % PAR)
        a('s_mov_b32 s72, %d' % MODG)
        a('s_mov_b32 s73, %d' % (MODG + 5120))
        a('s_mov_b32 s74, %d' % (MODG + 10240))
        if o['msleep']:
            a('v_lshrrev_b32 v43, 1, v%d' % C16)
            a('v_and_b32 v44, 1, v0')
            a('v_lshlrev_b32 v44, 8, v44')
            self.mad(43, 43, 2560, 44)
            a('s_sub_u32 s70, s%d, 5' % WV)
            a('s_lshl_b32 s70, s70, 9')
            a('s_add_u32 s70, s70, %d' % (MODG + 4))
            self.poll16('modtag', 70, 44, sleep=o['msleep'], vaddr=43, mask='0xfff')
        l, d = self.spin_head('mod')
        for v in range(6):
            a('buffer_load_dwordx2 %s, v41, %s, s%d offen offset:%d sc1' % (vr(64 + 2 * v, 2), srd(sWS), 72 + v // 2, 2560 * (v % 2)))
        self.spin_bound(d)
        a('s_waitcnt vmcnt(0)')
        for v in range(6):
            a('v_xor_b32 v%d, s%d, v%d' % (65 + 2 * v, TAG, 65 + 2 * v))
        a('v_or3_b32 v65, v65, v67, v69')
        a('v_or3_b32 v71, v71, v73, v75')
        a('v_or_b32 v65, v65, v71')
        a('v_cmp_ne_u32 vcc, 0, v65')
        a('s_cbranch_vccnz %s' % l)
        a('%s:' % d)
        a('s_waitcnt vmcnt(0)')
        for v in range(7):
            self.unpack(80 + 2 * v, 81 + 2 * v, 64 + 2 * v)
        for r in (82, 83, 88, 89):
            a('v_add_f32 v%d, 1.0, v%d' % (r, r))
            a('v_cvt_pk_bf16_f32 v%d, 0, v%d' % (r, r))
        a('v_pk_mul_f32 v[82:83], v[82:83], v[84:85]')
        a('v_pk_mul_f32 v[80:81], v[80:81], v[84:85]')
        a('v_pk_mul_f32 v[94:95], v[86:87], v[92:93]')
        a('v_pk_mul_f32 v[92:93], v[88:89], v[92:93]')
        for v, r in enumerate((82, 80, 88, 86, 90, 92)):
            a('ds_write_b64 v42, %s offset:%d' % (vr(r, 2), 2560 * v))
        a('v_add_f32 v44, v92, v93')
        a('v_add_f32 v46, v94, v95')
        self.row_allreduce16([44, 46])
        a('v_cvt_f64_f32 v[44:45], v44')
        a('v_cvt_f64_f32 v[46:47], v46')
        a('v_mov_b32 v42, %d' % CS)
        a('s_mov_b32 exec_lo, 0x00010001')
        a('s_mov_b32 exec_hi, 0x00010001')
        a('ds_add_f64 v42, v[44:45]')
        a('ds_add_f64 v42, v[46:47] offset:8')
        a('s_mov_b64 exec, -1')
        self.stamp(6)
        a('s_branch L_zjoin')

    def rows(self):
        a, o = self.a, self.opt
        Q, P, Z = 96, 112, 136
        sel = lambda s: 'op_sel:[0,%d,%d] op_sel_hi:[1,%d,%d]' % (s, s, s, s)
        a('s_lshl_b32 s72, s%d, 11' % WV)
        a('ds_read_b128 v[128:131], v%d' % vQS)
        a('ds_read_b128 v[132:135], v%d offset:%d' % (vQS, QPITCH))
        a('ds_read_b128 v[40:43], v%d' % vST1)
        par = (136, 144, 44, 52, 60, 68)
        for v in range(6):
            a('ds_read_b128 %s, v%d offset:%d' % (vr(par[v], 4), vPAR, 2560 * v))
            a('ds_read_b128 %s, v%d offset:%d' % (vr(par[v] + 4, 4), vPAR, 2560 * v + 16))
        A1, A2, B1, B2, G, W = par
        a('v_mov_b32 v30, %d' % CS)
        a('s_mul_i32 s73, s%d, 20480' % RW)
        a('s_add_u32 s72, s72, s73')
        a('s_add_u32 s81, s72, %d' % ZX)
        a('s_lshl_b32 s72, s%d, 7' % WV)
        a('s_add_u32 s76, s72, s73')
        a('s_add_u32 s77, s76, 10240')
        a('s_mul_i32 s73, s%d, 1280' % RW)
        a('s_add_u32 s73, s73, s72')
        a('s_lshl_b32 s73, s73, 1')
        a('s_add_u32 s74, s73, %d' % H2G)
        a('s_lshl_b32 s73, s73, 1')
        a('s_add_u32 s75, s73, %d' % BASEG)
        a('s_mul_i32 s73, s%d, %d' % (RW, o['kstride']))
        a('s_add_u32 s78, s73, %d' % KEYS)
        a('s_mov_b32 s82, %s' % MARK)
        a('s_mov_b32 s64, 0x3acccccd')
        a('s_mov_b32 s65, 0x3acccccd')
        a('s_mov_b32 s66, 0xff00ff00')
        a('s_mov_b32 s67, 0xff00ff00')
        a('s_mov_b32 s68, 0xfffff800')
        a('s_mov_b32 s69, 0x3727c5ac')
        a('s_waitcnt lgkmcnt(12)')
        a('ds_read_b128 v[76:79], v30')
        for c in range(8):
            for rho in range(2):
                src = 128 + 4 * rho + c // 2
                if c % 2 == 0:
                    a('v_lshlrev_b32 v%d, 16, v%d' % (Q + 2 * c + rho, src))
                else:
                    a('v_and_b32 v%d, s%d, v%d' % (Q + 2 * c + rho, HI, src))
        for c in range(8):
            a('v_pk_fma_f32 %s, %s, v[40:41], v[42:43]' % (vr(P + 2 * c, 2), vr(Q + 2 * c, 2)))
        a('s_waitcnt lgkmcnt(9)')
        for c in range(8):
            e = c & ~1
            a('v_pk_fma_f32 %s, %s, %s, %s %s' % (vr(P + 2 * c, 2), vr(P + 2 * c, 2), vr(A1 + e, 2), vr(A2 + e, 2), sel(c & 1)))
        for i in range(8):
            a('v_mov_b32 v%d, s%d' % (81 + 2 * i, TAG))
        a('v_subrev_u32 v29, 1, v%d' % vIDX)
        a('s_waitcnt lgkmcnt(0)')
        a('v_cvt_f32_f64 v76, v[76:77]')
        a('v_cvt_f32_f64 v77, v[78:79]')
        if o['zwait']:
            a('s_waitcnt vmcnt(0)')
            a('s_barrier')
        self.stamp(8)

        def zloads():
            a('buffer_load_dwordx4 v[128:131], v%d, %s, s81 offen sc1' % (vZLD, srd(sWS)))
            a('buffer_load_dwordx4 v[132:135], v%d, %s, s81 offen offset:128 sc1' % (vZLD, srd(sWS)))
        zloads()
        self.data_confirm('z', zloads, 128, 132, 10)
        self.stamp(9)
        S1, S2, S3 = 152, 154, 156
        for h in range(2):
            for c in range(4 * h, 4 * h + 4):
                self.unpack(Z + 2 * c, Z + 2 * c + 1, 128 + c)
            for c in range(4 * h, 4 * h + 4):
                a('v_pk_fma_f32 %s, %s, %s, %s' % (vr(Q + 2 * c, 2), vr(P + 2 * c, 2), vr(Z + 2 * c, 2), vr(Q + 2 * c, 2)))
            for c in range(4 * h, 4 * h + 4):
                x = vr(Q + 2 * c, 2)
                s, e = c & 1, c & ~1
                if c == 0:
                    a('v_pk_mul_f32 %s, %s, %s' % (vr(S2, 2), x, x))
                    a('v_pk_mul_f32 %s, %s, %s op_sel:[0,0] op_sel_hi:[1,0]' % (vr(S3, 2), x, vr(W, 2)))
                else:
                    a('v_pk_add_f32 %s, %s, %s' % (vr(S1, 2), vr(Q, 2) if c == 1 else vr(S1, 2), x))
                    a('v_pk_fma_f32 %s, %s, %s, %s' % (vr(S2, 2), x, x, vr(S2, 2)))
                    a('v_pk_fma_f32 %s, %s, %s, %s op_sel:[0,%d,0] op_sel_hi:[1,%d,1]' % (vr(S3, 2), x, vr(W + e, 2), vr(S3, 2), s, s))
        for s in (S1, S2, S3):
            a('v_permlane32_swap_b32 v%d, v%d' % (s, s + 1))
        for s in (S1, S2, S3):
            a('v_add_f32 v%d, v%d, v%d' % (s, s, s + 1))
        a('v_permlane16_swap_b32 v%d, v%d' % (S1, S2))
        a('v_add_f32_dpp v%d, v%d, v%d row_ror:8 %s' % (S3, S3, S3, DPP))
        a('v_add_f32 v%d, v%d, v%d' % (S1, S1, S2))
        a('v_add_f32_dpp v%d, v%d, v%d row_ror:8 %s' % (S1, S1, S1, DPP))
        a('v_cndmask_b32 v%d, v%d, v%d, s[66:67]' % (S1, S1, S3))
        a('v_cvt_f64_f32 %s, v%d' % (vr(S1, 2), S1))
        a('ds_add_f64 v%d, %s' % (vSADD, vr(S1, 2)))
        if o['keyprio']:
            a('s_cmp_lg_u32 s%d, 2' % WV)
            a('s_cbranch_scc1 L_noprio')
            a('s_setprio 3')
            a('L_noprio:')
        a('s_waitcnt lgkmcnt(0)')
        a('s_barrier')
        a('ds_read_b128 v[128:131], v%d' % vSRD)
        a('ds_read_b128 v[132:135], v%d offset:16' % vSRD)
        a('ds_read_b128 v[152:155], v%d offset:32' % vSRD)
        a('s_waitcnt lgkmcnt(1)')
        for i in range(4):
            a('v_cvt_f32_f64 v%d, %s' % (32 + i, vr(128 + 2 * i, 2)))
        a('v_pk_mul_f32 v[32:33], v[32:33], s[64:65]')
        a('v_pk_mul_f32 v[34:35], v[34:35], s[64:65]')
        a('v_pk_fma_f32 v[34:35], v[32:33], v[32:33], v[34:35] neg_lo:[1,0,0] neg_hi:[1,0,0]')
        a('v_max_f32 v34, 0, v34')
        a('v_max_f32 v35, 0, v35')
        a('v_add_f32 v34, s69, v34')
        a('v_add_f32 v35, s69, v35')
        a('v_rsq_f32 v34, v34')
        a('v_rsq_f32 v35, v35')
        a('s_waitcnt lgkmcnt(0)')
        a('v_cvt_f32_f64 v36, v[152:153]')
        a('v_cvt_f32_f64 v37, v[154:155]')
        a('v_pk_fma_f32 v[36:37], v[32:33], v[76:77], v[36:37] op_sel_hi:[1,0,1] neg_lo:[1,0,0] neg_hi:[1,0,0]')
        a('v_pk_fma_f32 v[36:37], v[36:37], v[34:35], v[76:77] op_sel:[0,0,1] op_sel_hi:[1,1,1]')
        for r, t in ((36, 38), (37, 39)):
            a('v_ashrrev_i32 v%d, 31, v%d' % (t, r))
        for r, t in ((36, 38), (37, 39)):
            a('v_or_b32 v%d, 0x80000000, v%d' % (t, t))
        for r, t in ((36, 38), (37, 39)):
            a('v_xor_b32 v%d, v%d, v%d' % (r, r, t))
        for r, ix in ((36, vIDX), (37, 29)):
            a('v_and_or_b32 v%d, v%d, s68, v%d' % (r, r, ix))
        a('v_max_u32 v166, v36, v37')
        a('v_max_u32_dpp v166, v166, v166 quad_perm:[1,0,3,2] %s' % DPP)
        a('v_max_u32_dpp v166, v166, v166 quad_perm:[2,3,0,1] %s' % DPP)
        a('v_max_u32_dpp v166, v166, v166 row_half_mirror %s' % DPP)
        a('s_cmp_lg_u32 s%d, 2' % WV)
        a('s_cbranch_scc1 L_nokey')
        a('s_mov_b64 exec, 1')
        a('buffer_store_dwordx2 v[166:167], v%d, %s, s78 offen sc1' % (vC128, srd(sWS)))
        a('s_mov_b64 exec, -1')
        a('L_nokey:')
        self.stamp(11)
        a('v_readfirstlane_b32 s72, v166')
        a('v_pk_mul_f32 v[32:33], v[32:33], v[34:35] neg_lo:[1,0] neg_hi:[1,0]')
        for c in range(8):
            a('v_pk_fma_f32 %s, %s, v[34:35], v[32:33]' % (vr(Z + 2 * c, 2), vr(Q + 2 * c, 2)))
        for c in range(8):
            e = c & ~1
            a('v_pk_fma_f32 %s, %s, %s, %s %s' % (vr(Z + 2 * c, 2), vr(Z + 2 * c, 2), vr(B1 + e, 2), vr(B2 + e, 2), sel(c & 1)))
        a('s_not_b32 s72, s72')
        a('s_bfe_u32 s73, s72, 0x30001')
        a('s_mov_b32 s70, 0x01010101')
        a('s_mov_b32 s71, 0x01010101')
        a('s_lshl_b64 s[70:71], s[70:71], s73')
        a('s_bitcmp1_b32 s72, 0')
        a('s_cbranch_scc1 L_h2odd')
        for k in range(4):
            a('v_cvt_pk_bf16_f32 v%d, v%d, v%d' % (80 + 2 * k, Z + 4 * k, Z + 4 * k + 2))
        a('s_branch L_h2st')
        a('L_h2odd:')
        for k in range(4):
            a('v_cvt_pk_bf16_f32 v%d, v%d, v%d' % (80 + 2 * k, Z + 4 * k + 1, Z + 4 * k + 3))
        a('L_h2st:')
        a('s_mov_b64 exec, s[70:71]')
        a('buffer_store_dwordx4 v[80:83], v%d, %s, s74 offen sc1' % (vH2, srd(sWS)))
        a('buffer_store_dwordx4 v[84:87], v%d, %s, s74 offen offset:16 sc1' % (vH2, srd(sWS)))
        a('s_mov_b64 exec, -1')
        self.stamp(12)
        for c in range(8):
            e, s = c & ~1, c & 1
            a('v_pk_fma_f32 %s, %s, %s, %s op_sel:[0,%d,0] op_sel_hi:[1,%d,1]' % (vr(P + 2 * c, 2), vr(Z + 2 * c, 2), vr(G + e, 2), vr(Q + 2 * c, 2), s, s))
        for rho in range(2):
            for k in range(4):
                a('v_cvt_pk_bf16_f32 v%d, v%d, v%d' % (32 + 4 * rho + k, P + 4 * k + rho, P + 4 * k + 2 + rho))
        a('ds_write_b128 v%d, v[32:35]' % vQS)
        a('ds_write_b128 v%d, v[36:39] offset:%d' % (vQS, QPITCH))
        a('ds_read_b128 v[128:131], v%d' % vORD)
        a('ds_read_b128 v[132:135], v%d offset:%d' % (vORD, 8 * QPITCH))
        if o['h2wait']:
            a('s_waitcnt vmcnt(0)')
        a('s_waitcnt lgkmcnt(1)')
        a('buffer_store_dwordx4 v[128:131], v%d, %s, s76 offen sc1' % (vOST, srd(sO)))
        a('s_waitcnt lgkmcnt(0)')
        a('buffer_store_dwordx4 v[132:135], v%d, %s, s77 offen sc1' % (vOST, srd(sO)))
        a('s_bitcmp1_b32 s72, 0')
        a('s_cselect_b64 vcc, -1, 0')
        for c in range(8):
            a('v_cndmask_b32 v%d, v%d, v%d, vcc' % (80 + 2 * c, P + 2 * c, P + 2 * c + 1))
        a('s_waitcnt vmcnt(0)')
        a('s_mov_b64 exec, s[70:71]')
        for k in range(4):
            a('buffer_store_dwordx4 %s, v%d, %s, s75 offen offset:%d sc1' % (vr(80 + 4 * k, 4), vBASE, srd(sWS), 16 * k))
        a('s_mov_b64 exec, -1')
        self.stamp(13)
        a('s_branch L_end')

    def nonconv(self):
        a = self.a
        MR, MP, GR, DR, GP, DP = 12, 44, 76, 108, 12, 44
        vGUA, vGUR, vXS, vPT, vKM = 124, 125, 126, 127, 128
        a('L_nonconv:')
        a('s_mov_b32 s64, 0x05040100')
        a('s_mov_b32 s65, 0x07060302')
        a('v_lshlrev_b32 v131, 3, v%d' % C16)
        a('v_lshlrev_b32 v132, 2, v%d' % C16)
        a('v_bfe_u32 v137, v0, 5, 1')
        a('v_and_b32 v130, 31, v0')
        a('v_lshlrev_b32 v130, 2, v130')
        self.mad(133, 137, 32 * 7680, 130)
        self.mad(134, R4, 32 * 3456, 132)
        self.mad(135, 137, 16 * 1280, 130)
        a('v_lshl_add_u32 v136, v137, 6, v132')
        a('s_sub_u32 s70, s2, %d' % MOD0)
        a('s_mul_i32 s72, s%d, %d' % (WV, 64 * 7680))
        a('s_lshl_b32 s73, s70, 7')
        a('s_add_u32 s72, s72, s73')
        a('s_max_u32 s68, s2, %d' % MLP0)
        a('s_sub_u32 s68, s68, %d' % MLP0)
        a('s_and_b32 s73, s68, 7')
        a('s_bfe_u32 s74, s68, 0x10003')
        a('s_lshl_b32 s73, s73, 1')
        a('s_add_u32 s73, s73, s74')
        a('s_and_b32 s74, s68, 0x30')
        a('s_add_u32 s73, s73, s74')
        a('s_cmp_lt_u32 s68, 48')
        a('s_cselect_b32 s68, s73, s68')
        a('s_bitcmp1_b32 s%d, 0' % WV)
        a('s_cselect_b64 s[%d:%d], s[%d:%d], s[%d:%d]' % (sWG, sWG + 1, sWU, sWU + 1, sWG, sWG + 1))
        a('s_lshr_b32 s71, s%d, 1' % WV)
        a('s_mul_i32 s74, s71, %d' % (128 * 3456))
        a('s_lshl_b32 s73, s68, 6')
        a('s_add_u32 s74, s74, s73')
        a('s_mul_i32 s76, s68, %d' % (32 * 1280))
        a('s_lshl_b32 s73, s%d, 7' % WV)
        a('s_add_u32 s76, s76, s73')
        a('s_and_b32 s82, s%d, 1' % WV)
        a('s_lshl_b32 s82, s82, 3')
        a('s_add_u32 s82, s82, %d' % GU)
        a('v_lshl_add_u32 v129, v%d, 5, s82' % C16)
        a('v_lshl_add_u32 v%d, v137, 4, v129' % vGUA)
        a('v_lshlrev_b32 v129, 2, v136')
        a('v_add_u32 v%d, %d, v129' % (vGUR, GU))
        a('s_lshl_b32 s82, s71, 9')
        a('s_add_u32 s82, s82, %d' % H2G)
        a('v_lshl_add_u32 v%d, v%d, 3, s82' % (vXS, LANE))
        a('v_bfe_u32 v129, v0, 4, 1')
        a('v_lshl_add_u32 v129, v129, 8, v131')
        a('v_lshl_add_u32 v%d, v137, 7, v129' % vPT)
        a('s_mul_i32 s82, s68, 5120')
        a('s_lshl_b32 s73, s%d, 9' % WV)
        a('s_add_u32 s82, s82, s73')
        a('s_add_u32 s81, s82, %d' % PART)
        a('v_and_b32 v129, 3, v0')
        a('v_lshlrev_b32 v129, 2, v129')
        a('v_add_u32 v%d, %d, v129' % (vKM, KEYMAX))
        self.wave_flag(78)
        self.stamp(2)
        a('s_cmp_ge_u32 s2, %d' % (MLP0 + N_MLP))
        a('s_cbranch_scc1 L_end')
        def gowait():
            a('s_cmp_lg_u32 s%d, 1' % WV)
            a('s_cbranch_scc1 L_bggo')
            a('s_and_b32 s80, s2, 7')
            a('s_mul_i32 s80, s80, 2560')
            a('s_add_u32 s80, s80, %d' % GO)
            self.poll16('bg', 80, 148, sleep=self.opt['gsleep'])
            a('L_bggo:')
        if self.opt['bg'] == 1:
            gowait()
        a('s_barrier')
        a('s_cmp_ge_u32 s2, %d' % (MOD0 + N_MOD))
        a('s_cbranch_scc1 L_mlp')
        a('s_lshl_b32 s73, s%d, 7' % WV)
        a('buffer_load_dword v138, v136, %s, s73 offen' % srd(sC))
        for i in range(32):
            a('buffer_load_dword v%d, v133, %s, s72 offen' % (MR + i, srd(sWM)))
            if i < 31:
                a('s_add_u32 s72, s72, 7680')
        a('s_waitcnt vmcnt(32)')
        self.unpack(139, 138, 138)
        self.silu(139, 140)
        self.silu(138, 141)
        a('v_cvt_pk_bf16_f32 v138, v139, v138')
        for i in range(4):
            a('v_mov_b32 v%d, 0' % (140 + i))
        a('v_lshl_add_u32 v129, v130, 2, %d' % 0)
        a('v_lshl_add_u32 v129, v137, 3, v129')
        a('v_add_u32 v129, %d, v129' % MODACC)
        for t in range(16):
            a('s_waitcnt vmcnt(%d)' % (30 - 2 * t))
            self.pair_rows(MP + 2 * t, MR + 2 * t, MR + 1 + 2 * t)
            if t % 2 == 1:
                for u in (t - 1, t):
                    for c in range(2):
                        a('v_dot2c_f32_bf16_dpp v%d, v138, v%d row_newbcast:%d %s' % (140 + 2 * (u & 1) + c, MP + 2 * u + c, u, DPP))
        a('v_pk_add_f32 v[140:141], v[140:141], v[142:143]')
        a('v_permlane32_swap_b32 v140, v141')
        a('v_add_f32 v140, v140, v141')
        a('v_cvt_f64_f32 v[140:141], v140')
        a('ds_add_f64 v129, v[140:141]')
        a('v_add_u32 v129, %d, v%d' % (MODACC, vL16))
        a('v_lshlrev_b32 v139, 3, v%d' % LANE)
        a('s_lshl_b32 s72, s70, 8')
        a('s_add_u32 s72, s72, %d' % MODG)
        a('s_cmp_lg_u32 s%d, 0' % WV)
        a('s_waitcnt lgkmcnt(0)')
        a('s_barrier')
        a('s_cbranch_scc1 L_modpub')
        a('s_mov_b32 exec_hi, 0')
        a('ds_read_b128 v[140:143], v129')
        a('s_waitcnt lgkmcnt(0)')
        a('v_cvt_f32_f64 v140, v[140:141]')
        a('v_cvt_f32_f64 v141, v[142:143]')
        a('v_cvt_pk_bf16_f32 v166, v140, v141')
        a('buffer_store_dwordx2 v[166:167], v139, %s, s72 offen sc1' % srd(sWS))
        a('s_mov_b64 exec, -1')
        a('L_modpub:')
        self.stamp(3)
        a('s_cmp_lt_u32 s2, %d' % (RED0 + N_RED))
        a('s_cbranch_scc1 L_keys')
        a('s_cmp_lt_u32 s2, %d' % MLP0)
        a('s_cbranch_scc1 L_end')
        a('L_mlp:')
        if self.opt['bg'] == 2:
            gowait()
        a('s_barrier')
        for t in range(16):
            a('buffer_load_dword v%d, v134, %s, s74 offen' % (GR + 2 * t, srd(sWG)))
            a('buffer_load_dword v%d, v134, %s, s74 offen offset:3456' % (GR + 1 + 2 * t, srd(sWG)))
            if t < 15:
                a('s_add_u32 s74, s74, 6912')
        for i in range(16):
            a('buffer_load_dword v%d, v135, %s, s76 offen offset:%d' % (DR + i, srd(sWD), 1280 * (i % 4)))
            if i % 4 == 3:
                a('s_add_u32 s76, s76, 5120')
        a('s_waitcnt vmcnt(0)')
        for t in range(16):
            self.pair_rows(GP + 2 * t, GR + 2 * t, GR + 1 + 2 * t)
        for t in range(8):
            self.pair_rows(DP + 2 * t, DR + 2 * t, DR + 1 + 2 * t)
        for i in range(8):
            a('v_mov_b32 v%d, 0' % (140 + i))
        self.stamp(4)
        a('L_keys:')
        a('v_mov_b32 v129, %d' % KEYMAX)
        a('s_cmp_ge_u32 s%d, 8' % WV)
        a('s_cbranch_scc1 L_keyjoin')
        a('s_mul_i32 s72, s%d, %d' % (WV, 16 * self.opt['kstride']))
        a('s_add_u32 s72, s72, %d' % KEYS)
        a('v_mul_u32_u24 v%d, %d, v%d' % (vC128, self.opt['kstride'], C16))
        self.poll16('keys', 72, 148, width=2, sleep=self.opt['ksleep'])
        a('ds_max_u32 v%d, v%d' % (vKM, 148 + 2 * self.opt['depth']))
        a('s_mov_b64 exec, -1')
        a('s_waitcnt lgkmcnt(0)')
        a('L_keyjoin:')
        a('s_barrier')
        a('ds_read_b128 v[132:135], v129')
        a('s_waitcnt lgkmcnt(0)')
        a('v_max3_u32 v132, v132, v133, v134')
        a('v_max_u32 v132, v132, v135')
        a('v_readfirstlane_b32 s74, v132')
        a('s_not_b32 s75, s74')
        a('s_bfe_u32 s76, s75, 0x70004')
        self.stamp(5)
        a('s_cmp_lt_u32 s2, %d' % MLP0)
        a('s_cbranch_scc1 L_red')
        a('s_mul_i32 s77, s76, 2560')
        l, d = self.spin_head('xsel')
        a('buffer_load_dwordx2 v[138:139], v%d, %s, s77 offen sc1' % (vXS, srd(sWS)))
        self.spin_bound(d)
        a('s_waitcnt vmcnt(0)')
        a('v_cmp_ne_u32 vcc, s%d, v139' % TAG)
        a('s_cbranch_vccnz %s' % l)
        a('%s:' % d)
        a('s_waitcnt vmcnt(0)')
        self.stamp(6)
        for t in range(16):
            for c in range(2):
                a('v_dot2c_f32_bf16_dpp v%d, v138, v%d row_newbcast:%d %s' % (140 + 2 * (t & 1) + c, GP + 2 * t + c, t, DPP))
        a('v_pk_add_f32 v[140:141], v[140:141], v[142:143]')
        a('v_permlane32_swap_b32 v140, v141')
        a('v_add_f32 v140, v140, v141')
        a('v_cvt_f64_f32 v[140:141], v140')
        a('ds_add_f64 v%d, v[140:141]' % vGUA)
        a('s_waitcnt lgkmcnt(0)')
        a('s_barrier')
        a('ds_read_b128 v[132:135], v%d' % vGUR)
        a('s_waitcnt lgkmcnt(0)')
        a('v_cvt_f32_f64 v138, v[132:133]')
        a('v_cvt_f32_f64 v139, v[134:135]')
        a('v_mul_f32 v137, 0xbfb8aa3b, v138')
        a('v_exp_f32 v137, v137')
        a('v_mul_f32 v138, v138, v139')
        a('v_add_f32 v137, 1.0, v137')
        a('v_rcp_f32 v137, v137')
        a('v_mul_f32 v138, v138, v137')
        a('v_mov_b32_dpp v139, v138 quad_perm:[1,0,3,2] %s' % DPP)
        a('v_cvt_pk_bf16_f32 v138, v138, v139')
        for t in range(8):
            for c in range(2):
                a('v_dot2c_f32_bf16_dpp v%d, v138, v%d row_newbcast:%d %s' % (144 + 2 * (t & 1) + c, DP + 2 * t + c, 2 * t, DPP))
        a('v_pk_add_f32 v[144:145], v[144:145], v[146:147]')
        a('v_permlane32_swap_b32 v144, v145')
        a('v_add_f32 v166, v144, v145')
        a('buffer_store_dwordx2 v[166:167], v%d, %s, s81 offen sc1' % (vPT, srd(sWS)))
        self.stamp(7)
        a('s_branch L_end')
        a('L_red:')
        a('s_cmp_ge_u32 s%d, 7' % WV)
        a('s_cbranch_scc1 L_fin')
        a('s_lshl_b32 s72, s%d, 3' % WV)
        a('v_add_u32 v12, s72, v%d' % R4)
        a('v_add_u32 v13, 4, v12')
        a('v_cmp_gt_u32 s[66:67], %d, v13' % N_MLP)
        a('v_min_u32 v13, %d, v13' % (N_MLP - 1))
        a('s_lshl_b32 s72, s70, 8')
        a('s_add_u32 s72, s72, %d' % PART)
        a('v_lshlrev_b32 v14, 4, v%d' % C16)
        self.mad(12, 12, 5120, 14)
        self.mad(13, 13, 5120, 14)
        a('v_bfe_u32 v15, v0, 3, 1')
        a('v_lshl_add_u32 v14, v%d, 2, v15' % P8)
        a('v_bfe_u32 v15, v0, 5, 1')
        a('v_lshl_add_u32 v14, v15, 1, v14')
        a('v_lshlrev_b32 v14, 3, v14')
        a('v_add_u32 v14, %d, v14' % RED)
        l, d = self.spin_head('part')
        a('buffer_load_dwordx4 v[16:19], v12, %s, s72 offen sc1' % srd(sWS))
        a('buffer_load_dwordx4 v[20:23], v13, %s, s72 offen sc1' % srd(sWS))
        self.spin_bound(d)
        a('s_waitcnt vmcnt(0)')
        for r in (17, 19, 21, 23):
            a('v_xor_b32 v%d, s%d, v%d' % (r, TAG, r))
        a('v_or3_b32 v17, v17, v19, v21')
        a('v_or_b32 v17, v17, v23')
        a('v_cmp_ne_u32 vcc, 0, v17')
        a('s_cbranch_vccnz %s' % l)
        a('%s:' % d)
        a('s_waitcnt vmcnt(0)')
        self.stamp(6)
        a('v_cndmask_b32 v20, 0, v20, s[66:67]')
        a('v_cndmask_b32 v22, 0, v22, s[66:67]')
        a('v_add_f32 v16, v16, v20')
        a('v_add_f32 v18, v18, v22')
        a('v_permlane32_swap_b32 v16, v18')
        a('v_add_f32 v16, v16, v18')
        a('v_cvt_f64_f32 v[16:17], v16')
        a('ds_add_f64 v14, v[16:17]')
        a('s_waitcnt lgkmcnt(0)')
        a('s_barrier')
        a('s_branch L_end')
        a('L_fin:')
        a('s_cmp_lg_u32 s%d, 9' % WV)
        a('s_cbranch_scc1 L_end')
        a('s_mul_i32 s72, s76, 5120')
        a('s_lshl_b32 s73, s70, 8')
        a('s_add_u32 s72, s72, s73')
        a('s_add_u32 s80, s72, %d' % BASEG)
        a('s_lshl_b32 s73, s70, 7')
        a('s_add_u32 s81, s73, %d' % (MODG + 5 * 2560))
        a('v_add_u32 v14, %d, v%d' % (RED, vL16))
        a('s_and_b32 s75, s75, 0x7ff')
        a('s_mul_i32 s72, s75, 1280')
        a('s_lshl_b32 s73, s70, 6')
        a('s_add_u32 s82, s72, s73')
        a('v_lshlrev_b32 v15, 2, v%d' % C16)
        a('s_and_b32 s72, s74, 0xfffff800')
        a('s_or_b32 s72, s72, 0x400')
        a('s_not_b32 s73, s72')
        a('s_xor_b32 s77, s72, 0x80000000')
        a('s_bitcmp1_b32 s72, 31')
        a('s_cselect_b32 s72, s77, s73')
        a('v_mov_b32 v24, s72')
        a('v_mul_f32 v24, 0xbfb8aa3b, v24')
        a('v_exp_f32 v24, v24')
        a('v_add_f32 v24, 1.0, v24')
        a('v_rcp_f32 v24, v24')
        a('s_mov_b64 exec, 0xffff')
        l, d = self.spin_head('base')
        a('buffer_load_dwordx4 v[16:19], v%d, %s, s80 offen sc1' % (vL16, srd(sWS)))
        a('buffer_load_dwordx2 v[20:21], v131, %s, s81 offen sc1' % srd(sWS))
        self.spin_bound(d)
        a('s_waitcnt vmcnt(0)')
        for r in (17, 19, 21):
            a('v_xor_b32 v%d, s%d, v%d' % (r, TAG, r))
        a('v_or3_b32 v17, v17, v19, v21')
        a('v_cmp_ne_u32 vcc, 0, v17')
        a('s_cbranch_vccnz %s' % l)
        a('%s:' % d)
        a('s_waitcnt vmcnt(0)')
        self.unpack(22, 23, 20)
        a('v_mul_f32 v22, v22, v24')
        a('v_mul_f32 v23, v23, v24')
        a('s_cmp_lg_u32 s70, 0')
        a('s_cbranch_scc1 L_noepoch')
        a('v_mov_b32 v25, 0')
        a('buffer_store_dword v167, v25, %s, 0 offen' % srd(sWS))
        a('L_noepoch:')
        self.stamp(8)
        a('s_barrier')
        a('ds_read_b128 v[28:31], v14')
        a('s_waitcnt lgkmcnt(0)')
        a('v_cvt_f32_f64 v28, v[28:29]')
        a('v_cvt_f32_f64 v29, v[30:31]')
        a('v_fmac_f32 v16, v22, v28')
        a('v_fmac_f32 v18, v23, v29')
        a('v_cvt_pk_bf16_f32 v16, v16, v18')
        a('buffer_store_dword v16, v15, %s, s82 offen' % srd(sO))
        a('s_mov_b64 exec, -1')
        self.stamp(7)

    def finish(self):
        a = self.a
        a('L_end:')
        if self.amp:
            wg, wave, j = self.amp
            self.stamp(15)
            a('s_cmp_lg_u32 s2, %d' % wg)
            a('s_cbranch_scc1 L_exit')
            a('s_cmp_lg_u32 s%d, %d' % (WV, wave))
            a('s_cbranch_scc1 L_exit')
            a('s_sub_u32 s72, s%d, s84' % (84 + j))
            a('s_min_u32 s72, s72, 10000')
            a('s_add_u32 s72, s72, 3000')
            a('L_amp:')
            a('s_memrealtime s[100:101]')
            a('s_waitcnt lgkmcnt(0)')
            a('s_sub_u32 s73, s100, s84')
            a('s_cmp_lt_u32 s73, s72')
            a('s_cbranch_scc1 L_amp')
        if self.diag:
            self.stamp(15)
            a('s_mov_b64 exec, -1')
            a('s_mul_i32 s72, s2, 640')
            a('s_add_u32 s72, s72, s%d' % T64)
            a('s_add_u32 s72, s72, %d' % DIAG)
            a('v_mov_b32 v2, s72')
            for i in range(16):
                a('v_mov_b32 v%d, s%d' % (8 + i, 84 + i))
            a('s_mov_b64 exec, 1')
            for i in range(4):
                a('buffer_store_dwordx4 %s, v2, %s, 0 offen offset:%d' % (vr(8 + 4 * i, 4), srd(sWS), 16 * i))
        a('L_exit:')
        a('s_endpgm')
        a('L_code_end:')

    def text(self):
        self.prologue()
        self.conv()
        self.rows()
        self.helper()
        self.nonconv()
        self.finish()
        body = self.a.body().replace('CODE_LIMIT', 'L_code_end-%s_kernel-8' % NAME)
        code, desc = kernel_text(NAME + '_kernel', body, 168)
        return (HEADER + '; @launch grid=(256,1,1) block=(640,1,1) lds=%d\n' % LDS_BYTES +
                '.amdgcn_target "amdgcn-amd-amdhsa--gfx950"\n' + code + desc)


def parse_args(args):
    kw = {}
    for x in args:
        if x == 'diag':
            kw['diag'] = True
        elif x.startswith('amp='):
            kw['amp'] = tuple(int(y) for y in x[4:].split(','))
        else:
            k, v = x.split('=')
            kw[k] = int(v)
    return kw


if __name__ == '__main__':
    open(sys.argv[1], 'w').write(Gen(**parse_args(sys.argv[2:])).text())
```

```python
import sys
sys.path.insert(0, 'gen')
from asmlib import *

NAME = 'adaLN_cond__ssm_conv_h3__moe_arch_mod__prompt'
HEADER = open('cdna_kernels/%s.s.ref' % NAME).read().split('; Override launch')[0]

MODG, KEYS = 0x1000, 0x8000
H2G, BASEG, PART = 0x10000, 0x60000, 0x100000
F1, F2, GO = 0x150000, 0x1a0000, 0x1d0000
KVX, ZX, DIAG = 0x200000, 0x480000, 0x700000
WS_BYTES = 0x800000
KC, KPITCH = 0, 4160
RV, RPITCH = 66560, 4576
PS = 84864
ZS = 100224
QS, QPITCH = 120704, 1312
PAR = 141696
ACC = 157056
ST2, CS, GU, MODACC, RED, KEYMAX = ACC, ACC + 384, ACC + 512, ACC + 1024, ACC + 1536, ACC + 1792
ZCNT = ACC + 1824
ST1 = ACC + 2560
LDS_BYTES = ST1 + 128

N_CONV, N_ROW = 160, 128
MOD0, N_MOD = 160, 60
MLP0, N_MLP = 200, 54
RED0, N_RED = 160, 20
SPIN = 1 << 16
GROUPS = [('row', slice(0, 128)), ('conv', slice(128, 160)), ('red', slice(160, 180)), ('mod', slice(180, 200)),
          ('mm', slice(200, 220)), ('mlp', slice(220, 254))]

sK, sV, sSH, sWS, sSK, sO, sQ, sWR, sWG, sWU, sWD, sC, sWM, sD = [4 + 4 * i for i in range(14)]
SIZES = {sK: 2621440, sV: 2621440, sSH: 5120, sWS: WS_BYTES, sSK: 2621440, sQ: 2621440, sWR: 1280,
         sWG: 2211840, sWU: 2211840, sWD: 2211840, sC: 1280, sWM: 4915200, sO: 2621440}
SLOT = {sQ: 0, sK: 1, sV: 2, sSH: 3, sSK: 4, sD: 5, sWR: 7, sWG: 8, sWU: 9, sWD: 10, sC: 11, sWM: 12, sO: 13, sWS: 15}
TAG, WV, T64, HI = 60, 61, 62, 63
CG, RW = 3, 59
OOB = '0x7ffffff0'
MARK = '0x7f817f81'
DPP = 'row_mask:0xf bank_mask:0xf'

LANE, R4, C16, L8, P8, P16 = 1, 2, 3, 4, 5, 6
vPW, vPR, vKVST, vC128, vL16 = 7, 8, 9, 10, 11
vKI, vKW, vKVL, vZG0, vZG1, vZST = 12, 13, 14, 15, 16, 17
vQS, vST1, vPAR, vZLD, vSADD, vSRD, vIDX, vH2, vBASE, vORD, vOST = 18, 19, 20, 21, 22, 23, 24, 25, 26, 27, 28
vA, vB, vZW, vL4 = 160, 161, 162, 164


def srd(s):
    return 's[%d:%d]' % (s, s + 3)


def vr(a, n):
    return 'v[%d:%d]' % (a, a + n - 1)


class Gen:
    def __init__(self, diag=False, amp=None, **opt):
        self.a = Asm()
        self.diag = diag
        self.amp = amp
        self.opt = dict(prio=1, h2wait=0, pf=1, depth=1, keyprio=1, zwait=1, bg=2, klate=0, kstride=256, qwait=0, noq=0, full=1, wsoff=0, kp=0, early=0, l2pf=0, ksleep=0, msleep=4, gsleep=2, fsleep=8, modpf=0)
        self.opt.update(opt)

    def stamp(self, i):
        if self.diag is True or (self.diag and (i in (0, 15) or i in self.diag)) or (self.amp and i in (0, self.amp[2])):
            a = self.a
            a('s_memrealtime s[100:101]')
            a('s_waitcnt lgkmcnt(0)')
            a('s_mov_b32 s%d, s100' % (84 + i))

    def srd_tail(self, regs):
        for s in regs:
            self.a('s_mov_b32 s%d, %d' % (s + 2, SIZES[s]))
            self.a('s_mov_b32 s%d, 0x20000' % (s + 3))

    def ptrs(self, regs):
        for s in regs:
            self.a('s_load_dwordx2 s[%d:%d], s[0:1], %d' % (s, s + 1, 8 * SLOT[s]))

    def mad(self, dst, src, const, add):
        self.a('s_mov_b32 s83, %d' % const)
        self.a('v_mad_u32_u24 v%d, v%d, s83, v%d' % (dst, src, add))

    def unpack(self, dst_lo, dst_hi, src):
        self.a('v_lshlrev_b32 v%d, 16, v%d' % (dst_lo, src))
        self.a('v_and_b32 v%d, s%d, v%d' % (dst_hi, HI, src))

    def spin_head(self, name):
        a = self.a
        l, d = a.label(name), a.label(name + '_done')
        a('s_mov_b32 s79, 0')
        a('%s:' % l)
        return l, d

    def spin_bound(self, d):
        a = self.a
        a('s_add_u32 s79, s79, 1')
        a('s_cmp_gt_u32 s79, %d' % SPIN)
        a('s_cbranch_scc1 %s' % d)

    def poll16(self, name, soff, vtmp, width=1, sleep=0, vaddr=vC128, mask='0xffff'):
        a = self.a
        depth = self.opt['depth']
        op = 'buffer_load_dword' if width == 1 else 'buffer_load_dwordx2'
        reg = lambda k: ('v%d' % (vtmp + k)) if width == 1 else vr(vtmp + 2 * k, 2)
        ld = lambda k: a('%s %s, v%d, %s, s%d offen sc1' % (op, reg(k), vaddr, srd(sWS), soff))
        a('s_mov_b64 exec, %s' % mask)
        for k in range(depth - 1):
            ld(k)
        l, d = self.spin_head(name)
        for k in range(depth):
            ld((k + depth - 1) % depth)
            if sleep:
                a('s_sleep %d' % sleep)
            a('s_waitcnt vmcnt(%d)' % (depth - 1))
            if width == 2:
                a('v_mov_b32 v%d, v%d' % (vtmp + 2 * depth, vtmp + 2 * k))
            a('v_cmp_ne_u32 vcc, s%d, v%d' % (TAG, vtmp + k if width == 1 else vtmp + 2 * k + 1))
            a('s_and_b64 exec, vcc, vcc')
            a('s_cbranch_scc0 %s' % d)
        self.spin_bound(d)
        a('s_branch %s' % l)
        a('%s:' % d)
        a('s_mov_b64 exec, %s' % ('-1' if width == 1 else '0xffff'))

    def barrier_flag(self, soff, wait):
        a = self.a
        l, e = a.label('flagwave'), a.label('flagged')
        a('s_cmp_eq_u32 s%d, 9' % WV)
        a('s_cbranch_scc1 %s' % l)
        a(wait)
        a('s_barrier')
        a('s_branch %s' % e)
        a('%s:' % l)
        a('s_mov_b64 exec, 1')
        a(wait)
        a('s_barrier')
        a('buffer_store_dword v167, v%d, %s, s%d offen sc1' % (vC128, srd(sWS), soff))
        a('s_mov_b64 exec, -1')
        a('%s:' % e)

    def silu(self, x, t):
        a = self.a
        a('v_mul_f32 v%d, 0xbfb8aa3b, v%d' % (t, x))
        a('v_exp_f32 v%d, v%d' % (t, t))
        a('v_add_f32 v%d, 1.0, v%d' % (t, t))
        a('v_rcp_f32 v%d, v%d' % (t, t))
        a('v_mul_f32 v%d, v%d, v%d' % (x, x, t))

    def row_allreduce16(self, regs):
        for sh in (1, 2, 4, 8):
            for r in regs:
                self.a('v_add_f32_dpp v%d, v%d, v%d row_ror:%d %s' % (r, r, r, sh, DPP))

    def reduce4x4(self, r):
        a = self.a
        a('v_permlane32_swap_b32 v%d, v%d' % (r, r + 2))
        a('v_permlane32_swap_b32 v%d, v%d' % (r + 1, r + 3))
        a('v_add_f32 v%d, v%d, v%d' % (r, r, r + 2))
        a('v_add_f32 v%d, v%d, v%d' % (r + 1, r + 1, r + 3))
        a('v_permlane16_swap_b32 v%d, v%d' % (r, r + 1))
        a('v_add_f32 v%d, v%d, v%d' % (r, r, r + 1))

    def pair_rows(self, dst, x, y):
        self.a('v_perm_b32 v%d, v%d, v%d, s64' % (dst, y, x))
        self.a('v_perm_b32 v%d, v%d, v%d, s65' % (dst + 1, y, x))

    def prologue(self):
        a, o = self.a, self.opt
        KR, VR, SR, W, KP, VP, AC, OUT = 96, 103, 108, 112, 120, 134, 142, 152
        a('s_getpc_b64 s[66:67]')
        self.ptrs((sK, sV, sSH, sWS))
        if self.diag or self.amp:
            for i in range(16):
                a('s_mov_b32 s%d, 0' % (84 + i))
        self.stamp(0)
        a('s_cmp_ge_u32 s2, 256')
        a('s_cbranch_scc1 L_exit')
        a('v_readfirstlane_b32 s%d, v0' % T64)
        a('s_lshr_b32 s74, s2, 3')
        if o['pf']:
            a('v_lshl_add_u32 v43, v0, 5, s74')
            a('v_lshlrev_b32 v43, 7, v43')
            a('v_cmp_gt_u32 vcc, CODE_LIMIT, v43')
            a('s_and_saveexec_b64 s[68:69], vcc')
            a('s_cbranch_execz L_nopf')
            a('v_mov_b32 v165, s67')
            a('v_add_co_u32 v164, vcc, s66, v43')
            a('v_addc_co_u32 v165, vcc, 0, v165, vcc')
            a('global_load_dword v163, v[164:165], off')
            a('L_nopf:')
            a('s_mov_b64 exec, -1')
        a('v_bfe_u32 v%d, v0, 4, 2' % R4)
        a('v_and_b32 v%d, 15, v0' % C16)
        a('s_and_b32 s75, s2, 7')
        a('s_lshr_b32 s70, s2, 4')
        a('s_lshl4_add_u32 s70, s75, s70')
        a('s_and_b32 s71, s74, 1')
        a('s_mul_i32 s72, s70, 20480')
        a('s_mul_i32 s73, s71, 640')
        a('s_add_u32 s73, s73, s%d' % T64)
        a('s_add_u32 s72, s72, s73')
        a('v_mul_u32_u24 v40, 5120, v%d' % R4)
        a('v_lshl_add_u32 v40, v%d, 2, v40' % C16)
        a('v_add_u32 v40, s72, v40')
        a('v_subrev_u32 v41, 3840, v40')
        a('v_lshlrev_b32 v42, 4, v%d' % C16)
        a('v_bfe_u32 v%d, v0, 3, 3' % L8)
        a('v_and_b32 v%d, 0x70, v42' % P16)
        a('v_lshl_add_u32 v%d, v%d, 14, v%d' % (vKVST, L8, P16))
        a('s_lshl_b32 s76, s70, 7')
        a('s_lshl_b32 s72, s73, 11')
        a('s_add_u32 s72, s72, s76')
        a('s_add_u32 s80, s72, %d' % KVX)
        a('s_lshl_b32 s72, s73, 8')
        a('s_add_u32 s72, s72, s76')
        a('s_add_u32 s78, s72, %d' % F1)
        a('s_lshl_b32 s73, s73, 2')
        self.srd_tail((sK, sV, sSH, sWS))
        a('s_waitcnt lgkmcnt(0)')
        for i in range(3):
            a('buffer_load_dword v%d, v41, %s, 0 offen offset:%d' % (KR + i, srd(sK), 1280 * i))
        for i in range(4):
            a('buffer_load_dword v%d, v40, %s, 0 offen offset:%d' % (KR + 3 + i, srd(sK), 1280 * i))
        a('buffer_load_dwordx4 %s, v42, %s, s73 offen' % (vr(SR, 4), srd(sSH)))
        for i in range(4):
            a('buffer_load_dword v%d, v40, %s, 0 offen offset:%d' % (VR + i, srd(sV), 1280 * i))
        if o['wsoff']:
            a('s_add_u32 s%d, s%d, %d' % (sWS, sWS, o['wsoff'] << 20))
            a('s_addc_u32 s%d, s%d, 0' % (sWS + 1, sWS + 1))
        a('s_load_dword s%d, s[%d:%d], 0' % (TAG, sWS, sWS + 1))
        self.ptrs((sSK, sD, sQ, sWR, sO, sWM))
        a('v_and_b32 v%d, 63, v0' % LANE)
        a('s_lshr_b32 s%d, s%d, 6' % (WV, T64))
        a('s_mul_i32 s%d, s75, 20' % CG)
        a('s_add_u32 s%d, s%d, s74' % (CG, CG))
        a('s_lshl4_add_u32 s%d, s75, s74' % RW)
        self.srd_tail([s for s in SIZES if s not in (sK, sV, sSH, sWS)])
        a('s_mov_b32 s%d, 0xffff0000' % HI)
        a('v_and_b32 v%d, 7, v0' % P8)
        a('v_lshlrev_b32 v%d, 7, v%d' % (vC128, C16))
        a('v_lshlrev_b32 v%d, 4, v%d' % (vL16, LANE))
        a('s_mul_i32 s72, s%d, 1536' % WV)
        a('s_add_u32 s72, s72, %d' % PS)
        self.mad(vPW, R4, 384, 42)
        a('v_add_u32 v%d, s72, v%d' % (vPW, vPW))
        a('v_and_b32 v43, 16, v%d' % P16)
        a('v_lshl_add_u32 v43, v%d, 5, v43' % L8)
        a('v_lshrrev_b32 v44, 1, v%d' % P8)
        a('v_mad_u32_u24 v%d, v44, s83, v43' % vPR)
        a('v_add_u32 v%d, s72, v%d' % (vPR, vPR))
        a('v_lshlrev_b32 v43, 2, v0')
        a('v_add_u32 v43, %d, v43' % ACC)
        a('v_mov_b32 v45, 0')
        a('ds_write_b32 v43, v45')
        a('s_cmp_ge_u32 s%d, 5' % WV)
        a('s_cselect_b32 s74, 1, 0')
        a('s_mul_i32 s75, s74, 5')
        a('s_sub_u32 s75, s%d, s75' % WV)
        a('s_mul_i32 s75, s75, 52')
        a('v_add_u32 v%d, s75, v%d' % (vKI, LANE))
        a('s_lshl2_add_u32 s75, s%d, s74' % CG)
        a('s_lshl_b32 s76, s75, 12')
        a('s_sub_u32 s76, s76, 32')
        a('v_lshl_add_u32 v46, v%d, 4, s76' % vKI)
        a('v_subrev_u32 v43, 2, v%d' % vKI)
        a('v_cmp_gt_u32 vcc, 256, v43')
        a('s_and_b32 vcc_hi, vcc_hi, 0x1fffff')
        a('s_cmp_lt_u32 s2, %d' % N_CONV)
        a('s_cselect_b64 vcc, vcc, 0')
        a('v_mov_b32 v47, %s' % OOB)
        a('v_cndmask_b32 v46, v47, v46, vcc')
        a('s_movk_i32 s77, 0x2000')
        if o['modpf']:
            a('s_lshr_b32 s72, s2, 3')
            a('s_mul_i32 s72, s72, 7')
            a('s_add_u32 s72, s72, s%d' % WV)
            a('s_sub_u32 s72, s72, 140')
            a('s_mul_i32 s72, s72, %d' % (8 * 7680))
            a('s_and_b32 s73, s2, 7')
            a('s_lshl_b32 s73, s73, 7')
            a('s_add_u32 s72, s72, s73')
            a('v_lshl_add_u32 v43, v%d, 10, s72' % P8)
            self.mad(43, L8, 7680, 43)
            a('s_cmp_ge_u32 s2, %d' % N_CONV)
            a('s_cselect_b64 vcc, -1, 0')
            a('s_cmp_lt_u32 s%d, 7' % WV)
            a('s_cselect_b64 vcc, vcc, 0')
            a('v_cndmask_b32 v47, v47, v43, vcc')
        a('v_lshlrev_b32 v%d, 2, v%d' % (vL4, LANE))
        self.conv_addresses()
        a('s_waitcnt lgkmcnt(0)')
        self.ptrs((sWU, sWD, sC, sWG))
        a('s_min_u32 s72, s%d, %d' % (CG, N_CONV - 1))
        a('s_lshl_b32 s72, s72, 3')
        a('s_load_dwordx2 s[68:69], s[%d:%d], s72' % (sD, sD + 1))
        a('s_mul_i32 s%d, s%d, 0x9e3779b1' % (TAG, TAG))
        a('s_add_u32 s%d, s%d, 0x7f4a7c15' % (TAG, TAG))
        a('v_mov_b32 v167, s%d' % TAG)

        def kloads():
            a('buffer_load_dwordx4 v[48:51], v46, %s, 0 offen' % srd(sSK))
            a('buffer_load_dwordx4 v[56:59], v46, %s, s77 offen' % srd(sSK))
            if o['modpf']:
                a('buffer_load_dword v163, v47, %s, 0 offen' % srd(sWM))
        if not o['klate']:
            kloads()
        self.stamp(14)
        a('s_waitcnt vmcnt(%d)' % (4 if o['klate'] else 6 + o['modpf']))
        if o['klate']:
            kloads()
        for i in range(7):
            self.unpack(KP + 2 * i, KP + 1 + 2 * i, KR + i)
        for j in range(4):
            for dst, src in ((W + 2 * j, SR + j // 2), (W + 1 + 2 * j, SR + 2 + j // 2)):
                if j % 2 == 0:
                    a('v_lshlrev_b32 v%d, 16, v%d' % (dst, src))
                else:
                    a('v_and_b32 v%d, s%d, v%d' % (dst, HI, src))
        for j in range(4):
            for r in range(4):
                kp = KP + 2 * (r + 3 - j)
                if j == 0:
                    a('v_pk_mul_f32 %s, %s, %s' % (vr(AC + 2 * r, 2), vr(W, 2), vr(kp, 2)))
                else:
                    a('v_pk_fma_f32 %s, %s, %s, %s' % (vr(AC + 2 * r, 2), vr(W + 2 * j, 2), vr(kp, 2), vr(AC + 2 * r, 2)))
        a('s_waitcnt vmcnt(%d)' % (2 + o['modpf']))
        for i in range(4):
            self.unpack(VP + 2 * i, VP + 1 + 2 * i, VR + i)
        for r in range(4):
            a('v_pk_mul_f32 %s, %s, %s' % (vr(AC + 2 * r, 2), vr(AC + 2 * r, 2), vr(VP + 2 * r, 2)))
        a('v_cvt_pk_bf16_f32 v%d, v%d, v%d' % (OUT, AC + 6, AC + 4))
        a('v_cvt_pk_bf16_f32 v%d, v%d, v%d' % (OUT + 1, AC + 2, AC))
        a('v_cvt_pk_bf16_f32 v%d, v%d, v%d' % (OUT + 2, AC + 7, AC + 5))
        a('v_cvt_pk_bf16_f32 v%d, v%d, v%d' % (OUT + 3, AC + 3, AC + 1))
        a('ds_write_b128 v%d, %s' % (vPW, vr(OUT, 4)))
        a('ds_read_b128 %s, v%d' % (vr(OUT + 4, 4), vPR))
        a('s_cmp_ge_u32 s2, %d' % N_CONV)
        a('s_waitcnt lgkmcnt(0)')
        a('buffer_store_dwordx4 %s, v%d, %s, s80 offen sc1' % (vr(OUT + 4, 4), vKVST, srd(sWS)))
        self.stamp(1)
        a('s_cbranch_scc1 L_nonconv')

    def wave_flag(self, soff):
        a = self.a
        if self.opt['full']:
            a('s_mov_b32 exec_hi, 0')
        else:
            a('s_mov_b64 exec, 1')
        a('s_waitcnt vmcnt(0)')
        a('buffer_store_dword v167, v%d, %s, s%d offen sc1' % (vL4, srd(sWS), soff))
        a('s_mov_b64 exec, -1')

    def flag_probe(self, soff, v):
        self.a('s_mov_b64 exec, 0xffff')
        self.a('buffer_load_dword v%d, v%d, %s, s%d offen sc1' % (v, vC128, srd(sWS), soff))
        self.a('s_mov_b64 exec, -1')

    def flag_confirm(self, name, soff, v):
        a = self.a
        a('s_mov_b64 exec, 0xffff')
        l, d = self.spin_head(name)
        a('v_cmp_ne_u32 vcc, s%d, v%d' % (TAG, v))
        a('s_and_b64 exec, vcc, vcc')
        a('s_cbranch_scc0 %s' % d)
        a('buffer_load_dword v%d, v%d, %s, s%d offen sc1' % (v, vC128, srd(sWS), soff))
        a('s_add_u32 s79, s79, 1')
        a('s_cmp_gt_u32 s79, %d' % SPIN)
        a('s_waitcnt vmcnt(0)')
        a('s_cbranch_scc0 %s' % l)
        a('%s:' % d)
        a('s_mov_b64 exec, -1')

    def data_confirm(self, name, loads, r0, r1, count_stamp):
        a = self.a
        l, d = self.spin_head(name)
        a('s_waitcnt vmcnt(0)')
        a('v_cmp_eq_u32 vcc, s82, v%d' % r0)
        a('v_cmp_eq_u32 s[70:71], s82, v%d' % r1)
        a('s_or_b64 exec, vcc, s[70:71]')
        a('s_cbranch_scc0 %s' % d)
        loads()
        a('s_add_u32 s79, s79, 1')
        a('s_cmp_gt_u32 s79, %d' % SPIN)
        a('s_cbranch_scc0 %s' % l)
        a('s_waitcnt vmcnt(0)')
        a('%s:' % d)
        a('s_mov_b64 exec, -1')
        if self.diag is True and count_stamp is not None:
            a('s_mul_i32 s79, s79, 100')
            a('s_add_u32 s%d, s84, s79' % (84 + count_stamp))

    def conv_addresses(self):
        a = self.a
        a('s_mul_i32 s72, s74, %d' % (4 * KPITCH))
        a('v_lshl_add_u32 v%d, v%d, 4, s72' % (vKW, vKI))
        a('s_lshl_b32 s72, s%d, 9' % WV)
        a('s_sub_u32 s72, %d, s72' % (RV + 3832))
        a('v_lshrrev_b32 v43, 1, v%d' % LANE)
        a('v_lshlrev_b32 v43, 3, v43')
        a('v_sub_u32 v43, s72, v43')
        a('v_and_b32 v45, 1, v0')
        self.mad(vKVL, 45, 2 * RPITCH, 43)
        a('s_and_b32 s72, s%d, 3' % WV)
        a('s_mul_i32 s72, s72, 640')
        a('s_add_u32 s72, s72, %d' % ZS)
        a('v_lshl_add_u32 v43, v45, 2, s72')
        a('v_lshl_add_u32 v43, v%d, 3, v43' % L8)
        self.mad(vZG0, 44, 160, 43)
        a('v_add_u32 v%d, 64, v%d' % (vZG1, vZG0))
        self.mad(vZST, L8, 20480, P16)
        a('s_cmp_ge_u32 s%d, 4' % WV)
        a('s_cbranch_scc1 L_nomf')
        for i in range(32):
            a('v_mov_b32 v%d, 0' % (64 + i))
        a('s_mul_i32 s72, s%d, %d' % (WV, RPITCH))
        a('s_add_u32 s76, s72, %d' % (RV + 4096))
        a('v_min_u32 v43, 59, v%d' % LANE)
        a('v_lshl_add_u32 v43, v43, 3, s76')
        a('ds_write_b64 v43, v[64:65]')
        a('s_add_u32 s72, s72, %d' % (RV + 480))
        a('v_lshl_add_u32 v%d, v%d, 4, s72' % (vB, R4))
        a('v_lshlrev_b32 v43, 5, v%d' % C16)
        a('v_sub_u32 v%d, v%d, v43' % (vB, vB))
        a('v_lshl_add_u32 v43, v%d, 3, v%d' % (R4, C16))
        a('v_add_u32 v43, 1, v43')
        a('v_and_b32 v45, 3, v43')
        a('s_mul_i32 s72, s%d, %d' % (WV, 4 * KPITCH))
        a('v_lshl_add_u32 v43, v43, 1, s72')
        self.mad(vA, 45, KPITCH - 2, 43)
        a('s_mul_i32 s72, s%d, 5120' % WV)
        a('s_add_u32 s72, s72, %d' % ZS)
        a('v_lshl_add_u32 v43, v%d, 3, s72' % C16)
        self.mad(vZW, R4, 160, 43)
        a('L_nomf:')
        self.mad(vOST, L8, 1280, P16)

    def row_addresses(self):
        a = self.a
        a('s_lshl_b32 s72, s%d, 7' % WV)
        a('s_add_u32 s72, s72, %d' % QS)
        a('v_lshl_add_u32 v43, v%d, 4, s72' % L8)
        self.mad(vQS, P8, 2 * QPITCH, 43)
        a('v_add_u32 v43, s72, v%d' % P16)
        self.mad(vORD, L8, QPITCH, 43)
        a('v_add_u32 v%d, %d, v%d' % (vST1, ST1, P16))
        a('v_lshlrev_b32 v%d, 5, v%d' % (vH2, L8))
        a('v_lshlrev_b32 v%d, 6, v%d' % (vBASE, L8))
        a('s_lshl_b32 s72, s%d, 8' % WV)
        a('s_add_u32 s72, s72, %d' % PAR)
        a('v_add_u32 v%d, s72, v%d' % (vPAR, vH2))
        a('v_lshl_add_u32 v%d, v%d, 8, v%d' % (vZLD, L8, P16))
        a('v_mul_u32_u24 v43, 48, v%d' % P8)
        a('v_add_u32 v%d, %d, v43' % (vSRD, ST2))
        a('v_bfe_u32 v43, v0, 4, 1')
        a('v_bfe_u32 v45, v0, 3, 1')
        a('v_lshl_add_u32 v43, v45, 1, v43')
        a('v_min_u32 v43, 2, v43')
        a('v_lshl_add_u32 v43, v43, 4, v%d' % vSRD)
        a('v_bfe_u32 v45, v0, 5, 1')
        a('v_lshl_add_u32 v%d, v45, 3, v43' % vSADD)
        a('s_lshl_b32 s72, s%d, 4' % RW)
        a('s_sub_u32 s72, 2047, s72')
        a('v_lshlrev_b32 v43, 1, v%d' % P8)
        a('v_sub_u32 v%d, s72, v43' % vIDX)

    def kprep(self, rho):
        a = self.a
        d, t = (48, 96) if rho == 0 else (56, 108)
        a('s_lshl_b32 s72, s%d, 16' % (68 + rho))
        a('s_and_b32 s73, s%d, s%d' % (68 + rho, HI))
        a('s_cmp_ge_u32 s%d, 5' % WV)
        a('s_cselect_b32 s72, s73, s72')
        a('v_lshlrev_b32 v40, 16, v%d' % d)
        a('v_add_f32 v40, s72, v40')
        a('v_cvt_pk_bf16_f32 v40, v40, v40')
        a('v_bfi_b32 v40, s%d, v%d, v40' % (HI, d))
        a('v_cndmask_b32 v%d, v%d, v40, s[64:65]' % (d, d))
        a('v_mov_b32_dpp v%d, v%d wave_shl:1 %s' % (d + 5, d + 1, DPP))
        a('v_mov_b32_dpp v%d, v%d wave_shl:1 %s' % (d + 4, d, DPP))
        for i in range(4):
            a('v_alignbit_b32 v%d, v%d, v%d, 16' % (t + i, d + i + 1, d + i))
            a('v_mov_b32 v%d, v%d' % (t + 4 + i, d + i + 1))
            a('v_alignbit_b32 v%d, v%d, v%d, 16' % (t + 8 + i, d + i + 2, d + i + 1))
        a('s_mov_b32 exec_hi, 0xfffff')
        for s, r in enumerate((d, t, t + 4, t + 8)):
            a('ds_write_b128 v%d, %s offset:%d' % (vKW, vr(r, 4), KC + (8 * rho + s) * KPITCH))
        a('s_mov_b32 exec_hi, -1')

    def conv(self):
        a, o = self.a, self.opt
        a('s_lshr_b32 s72, s%d, 3' % CG)
        a('s_lshl_b32 s72, s72, 14')
        a('s_lshl_b32 s73, s%d, 11' % WV)
        a('s_add_u32 s72, s72, s73')
        a('s_add_u32 s80, s72, %d' % F1)
        a('s_lshl_b32 s72, s%d, 14' % CG)
        a('s_add_u32 s72, s72, s73')
        a('s_add_u32 s81, s72, %d' % KVX)
        a('v_cmp_eq_u32 s[64:65], 2, v%d' % vKI)
        if o['kp'] >= 1:
            a('s_waitcnt vmcnt(1)')
            self.kprep(0)
        self.wave_flag(78)
        self.stamp(2)
        a('s_cmp_ge_u32 s%d, 8' % WV)
        a('s_cbranch_scc1 L_qload')
        a('L_kp0:')
        if o['kp'] < 1:
            self.kprep(0)
        if o['early'] == 1:
            self.flag_probe(80, 30)
        self.kprep(1)
        if o['early'] == 2:
            self.flag_probe(80, 30)
        self.row_addresses()
        a('s_waitcnt lgkmcnt(0)')
        a('s_barrier')
        A = lambda i: 96 + 4 * i
        B = lambda j: 128 + 4 * j

        def ldA(i, nxt):
            off = 512 * i + (64 if nxt else 0)
            return ['ds_read_b64 %s, v%d offset:%d' % (vr(A(i), 2), vA, off),
                    'ds_read_b64 %s, v%d offset:%d' % (vr(A(i) + 2, 2), vA, off + 8)]

        def ldB(j, nxt):
            return ['ds_read_b128 %s, v%d offset:%d' % (vr(B(j), 4), vB, 512 * (7 - j) + (64 if nxt else 0))]

        a('s_cmp_ge_u32 s%d, 4' % WV)
        a('s_cbranch_scc1 L_noA')
        for i in range(7, 0, -1):
            for l in ldA(i, False):
                a(l)
        a('L_noA:')
        a('s_cmp_ge_u32 s%d, 8' % WV)
        a('s_cbranch_scc1 L_qstat')
        if o['early']:
            a('s_waitcnt vmcnt(0)')
            self.flag_confirm('f1', 80, 30)
        else:
            self.poll16('f1', 80, 30)
        self.stamp(4)
        a('buffer_load_dwordx4 v[32:35], v%d, %s, s81 offen sc1' % (vL16, srd(sWS)))
        a('buffer_load_dwordx4 v[36:39], v%d, %s, s81 offen offset:1024 sc1' % (vL16, srd(sWS)))
        a('s_waitcnt vmcnt(1)')
        a('ds_write_b64 v%d, v[32:33] offset:256' % vKVL)
        a('ds_write_b64 v%d, v[34:35] offset:%d' % (vKVL, 256 + RPITCH))
        a('s_waitcnt vmcnt(0)')
        a('ds_write_b64 v%d, v[36:37]' % vKVL)
        a('ds_write_b64 v%d, v[38:39] offset:%d' % (vKVL, RPITCH))
        a('L_kvdone:')
        a('s_and_b32 s75, s%d, 3' % WV)
        a('s_mul_i32 s72, s75, %d' % (16 * 20480))
        a('s_lshl_b32 s78, s%d, 7' % CG)
        a('s_add_u32 s72, s72, s78')
        a('s_add_u32 s80, s72, %d' % ZX)
        a('s_add_u32 s81, s80, %d' % (8 * 20480))
        a('s_add_u32 s76, s80, %d' % (64 * 20480))
        a('s_add_u32 s77, s81, %d' % (64 * 20480))
        a('v_mov_b32 v30, %d' % ZCNT)
        a('v_mov_b32 v31, 1')
        a('s_mov_b32 s72, 0')
        a('s_cmp_ge_u32 s%d, 4' % WV)
        a('s_waitcnt lgkmcnt(0)')
        a('s_barrier')
        if self.diag or self.amp:
            self.stamp(5)
            a('s_cmp_ge_u32 s%d, 4' % WV)
        a('s_cbranch_scc1 L_helper')
        for j in range(4):
            a(ldB(j, False)[0])
        if o['prio']:
            a('s_setprio 3')
        order = [(7, 0), (6, 0), (5, 0), (4, 0), (6, 1), (5, 1), (4, 1), (5, 2), (4, 2), (4, 3)]
        order += [(i, j) for j in range(4) for i in (3, 2, 1, 0)]
        order += [(3, 4), (2, 4), (2, 5), (1, 4), (1, 5), (1, 6), (0, 4), (0, 5), (0, 6), (0, 7)]
        after = {}
        for slot, kind, idx, nxt in [(1, 'A', 0, 0), (3, 'A', 7, 1), (5, 'A', 6, 1), (7, 'B', 4, 0), (8, 'A', 5, 1), (10, 'A', 4, 1),
                                     (12, 'B', 5, 0), (13, 'B', 6, 0), (14, 'B', 0, 1), (15, 'B', 7, 0), (18, 'B', 1, 1), (22, 'B', 2, 1),
                                     (26, 'B', 3, 1), (27, 'A', 3, 1), (29, 'A', 2, 1), (32, 'A', 1, 1)]:
            for k, l in enumerate((ldA if kind == 'A' else ldB)(idx, nxt)):
                after.setdefault(slot + k, []).append((kind + str(idx), l))
        issued, last, done = 0, {}, 0
        waits, hist = {}, []
        for it in range(4):
            for slot, (i, j) in enumerate(order, 1):
                needed = max(last.get('A%d' % i, 0), last.get('B%d' % j, 0))
                if needed > done:
                    n = min(issued - needed, sum(hist[-8:]))
                    done = issued - n
                    waits.setdefault(it, {})[slot] = n
                hist.append(len(after.get(slot, [])))
                for key, l in after.get(slot, []):
                    issued += 1
                    last[key] = issued
        assert waits[2] == waits[3]
        waits = waits[3]
        a('.p2align 5')
        a('s_nop 0')
        a('s_waitcnt lgkmcnt(0)')
        a('L_mfma:')
        for slot, (i, j) in enumerate(order, 1):
            if slot in waits:
                a('s_waitcnt lgkmcnt(%d)' % waits[slot])
            g = 64 + 4 * (i + j)
            a('v_mfma_f32_16x16x32_bf16 %s, %s, %s, %s' % (vr(g, 4), vr(A(i), 4), vr(B(j), 4), vr(g, 4)))
            for key, l in after.get(slot, []):
                a(l)
            if slot == 34:
                a('v_add_u32 v%d, 64, v%d' % (vA, vA))
                a('v_add_u32 v%d, 64, v%d' % (vB, vB))
            if slot == 35:
                a('s_add_u32 s72, s72, 1')
                a('s_cmp_lt_u32 s72, 8')
        a('s_cbranch_scc1 L_mfma')
        self.stamp(6)
        for g in range(8):
            r = 64 + 4 * g
            a('v_cvt_pk_bf16_f32 v%d, v%d, v%d' % (44 + 2 * g, r, r + 1))
            a('v_cvt_pk_bf16_f32 v%d, v%d, v%d' % (45 + 2 * g, r + 2, r + 3))
            a('ds_write_b64 v%d, %s offset:%d' % (vZW, vr(44 + 2 * g, 2), 640 * g))
        a('s_mov_b64 exec, 1')
        a('ds_add_rtn_u32 v60, v30, v31')
        a('s_mov_b32 s72, 7')
        l, d = self.spin_head('zs')
        a('s_waitcnt lgkmcnt(0)')
        a('v_cmp_eq_u32 vcc, s72, v60')
        a('s_cbranch_vccnz %s' % d)
        a('ds_read_b32 v60, v30')
        a('s_mov_b32 s72, 8')
        a('s_add_u32 s79, s79, 1')
        a('s_cmp_gt_u32 s79, %d' % (SPIN * 16))
        a('s_cbranch_scc0 %s' % l)
        a('%s:' % d)
        a('s_mov_b64 exec, -1')
        self.stamp(7)
        for k, (va, off) in enumerate(((vZG0, 0), (vZG1, 0), (vZG0, 10), (vZG1, 10))):
            a('ds_read2st64_b32 %s, v%d offset0:%d offset1:%d' % (vr(80 + 4 * k, 2), va, off, off + 20))
            a('ds_read2st64_b32 %s, v%d offset0:%d offset1:%d' % (vr(82 + 4 * k, 2), va, off + 40, off + 60))
        for k, sreg in enumerate((80, 81, 76, 77)):
            a('s_waitcnt lgkmcnt(%d)' % (6 - 2 * k))
            a('buffer_store_dwordx4 %s, v%d, %s, s%d offen sc1' % (vr(80 + 4 * k, 4), vZST, srd(sWS), sreg))
        if o['prio']:
            a('s_setprio 0')
        a('L_zjoin:')
        a('s_cmp_ge_u32 s2, %d' % N_ROW)
        a('s_cbranch_scc1 L_end')
        a('s_waitcnt lgkmcnt(0)')
        a('s_barrier')
        self.stamp(3)

    def helper(self):
        a = self.a
        o = self.opt
        a('L_qload:')
        a('s_cmp_ge_u32 s2, %d' % (0 if o['noq'] else N_ROW))
        a('s_cbranch_scc1 L_kp0')
        a('s_mul_i32 s72, s%d, 20480' % RW)
        a('s_and_b32 s73, s%d, 1' % WV)
        a('s_mul_i32 s73, s73, 10240')
        a('s_add_u32 s72, s72, s73')
        for i in range(10):
            a('buffer_load_dwordx4 %s, v%d, %s, s72 offen offset:%d' % (vr(120 + 4 * i, 4), vOST, srd(sQ), 128 * i))
        a('s_branch L_kp0')
        a('L_qstat:')
        a('s_cmp_ge_u32 s2, %d' % N_ROW)
        a('s_cbranch_scc1 L_kvdone')
        a('s_and_b32 s72, s%d, 1' % WV)
        a('s_mul_i32 s73, s72, %d' % (8 * QPITCH))
        a('s_add_u32 s73, s73, %d' % QS)
        self.mad(42, L8, QPITCH, P16)
        a('v_add_u32 v42, s73, v42')
        a('s_lshl_b32 s73, s72, 6')
        a('s_add_u32 s73, s73, %d' % ST1)
        a('v_lshl_add_u32 v43, v%d, 4, s73' % R4)
        a('v_and_b32 v44, 1, v%d' % L8)
        a('v_lshl_add_u32 v43, v44, 2, v43')
        for i in range(4):
            a('v_mov_b32 v%d, 0' % (44 + i))
        a('s_mov_b32 s74, 0x3f803f80')
        for i in range(10):
            a('s_waitcnt vmcnt(%d)' % (9 - i + (1 if o['early'] else 0)))
            a('ds_write_b128 v42, %s offset:%d' % (vr(120 + 4 * i, 4), 128 * i))
            for k in range(4):
                r = 120 + 4 * i + k
                a('v_dot2c_f32_bf16 v%d, s74, v%d' % (44 + (k & 1), r))
                a('v_dot2c_f32_bf16 v%d, v%d, v%d' % (46 + (k & 1), r, r))
        a('v_add_f32 v44, v44, v45')
        a('v_add_f32 v46, v46, v47')
        for ctl in ('quad_perm:[1,0,3,2]', 'quad_perm:[2,3,0,1]', 'row_half_mirror'):
            for r in (44, 46):
                a('v_add_f32_dpp v%d, v%d, v%d %s %s' % (r, r, r, ctl, DPP))
        a('v_mul_f32 v44, 0xbacccccd, v44')
        a('v_mul_f32 v46, 0x3acccccd, v46')
        a('v_fma_f32 v46, -v44, v44, v46')
        a('v_max_f32 v46, 0, v46')
        a('v_add_f32 v46, 0x3727c5ac, v46')
        a('v_rsq_f32 v46, v46')
        a('v_mul_f32 v44, v44, v46')
        a('ds_write2_b32 v43, v46, v44 offset0:0 offset1:2')
        self.stamp(4)
        a('s_branch L_kvdone')
        a('L_helper:')
        a('s_cmp_lt_u32 s%d, 8' % WV)
        a('s_cbranch_scc1 L_hclr')
        a('s_cmp_lg_u32 s%d, 9' % WV)
        a('s_cbranch_scc1 L_hmod')
        a('s_add_u32 s72, s78, %d' % GO)
        a('s_mov_b32 exec_hi, 0')
        a('buffer_store_dword v167, v%d, %s, s72 offen sc1' % (vL4, srd(sWS)))
        a('s_mov_b64 exec, -1')
        a('s_branch L_hmod')
        a('L_hclr:')
        a('s_and_b32 s70, s2, 7')
        a('s_lshr_b32 s71, s2, 3')
        if o['l2pf'] == 1:
            a('v_lshlrev_b32 v40, 10, v%d' % P8)
            self.mad(40, L8, 7680, 40)
            a('s_lshl2_add_u32 s72, s71, s75')
            a('s_mul_i32 s72, s72, %d' % (8 * 7680))
            a('s_lshl_b32 s73, s70, 7')
            a('s_add_u32 s72, s72, s73')
            a('buffer_load_dword v163, v40, %s, s72 offen' % srd(sWM))
        for i in range(4):
            a('v_mov_b32 v%d, %s' % (44 + i, MARK))
        for sreg in (80, 81, 76, 77):
            a('buffer_store_dwordx4 v[44:47], v%d, %s, s%d offen sc1' % (vZST, srd(sWS), sreg))
        if o['l2pf']:
            a('v_and_b32 v41, 3, v0')
            a('v_lshl_add_u32 v42, v41, 3, s70')
            a('s_lshr_b32 s72, s70, 1')
            a('s_add_u32 s72, s72, 24')
            a('v_min_u32 v42, s72, v42')
            a('v_lshlrev_b32 v42, 7, v42')
            a('v_lshrrev_b32 v41, 2, v%d' % LANE)
            self.mad(41, 41, 3456, 42)
            a('s_bitcmp1_b32 s75, 0')
            a('s_cselect_b64 s[%d:%d], s[%d:%d], s[%d:%d]' % (sWG, sWG + 1, sWU, sWU + 1, sWG, sWG + 1))
            a('s_lshr_b32 s72, s75, 1')
            a('s_lshl1_add_u32 s72, s71, s72')
            a('s_mul_i32 s72, s72, %d' % (16 * 3456))
            a('buffer_load_dword v163, v41, %s, s72 offen' % srd(sWG))
            a('s_lshl3_add_u32 s72, s75, s70')
            a('s_mul_i32 s72, s72, 20')
            a('s_add_u32 s72, s72, s71')
            a('s_lshl_b32 s72, s72, 12')
            a('s_add_u32 s73, s70, 48')
            a('s_mul_i32 s73, s73, 20')
            a('s_add_u32 s73, s73, s71')
            a('s_lshl_b32 s73, s73, 11')
            a('s_cmp_eq_u32 s75, 3')
            a('s_cselect_b32 s72, s73, s72')
            a('v_lshl_add_u32 v41, v%d, 7, s72' % LANE)
            a('s_mov_b32 exec_hi, 0')
            a('buffer_load_dword v163, v41, %s, 0 offen' % srd(sWD))
            a('s_mov_b32 exec_hi, -1')
        a('s_mul_i32 s72, s75, 20480')
        a('s_add_u32 s72, s72, s78')
        a('s_add_u32 s72, s72, %d' % F2)
        a('v_bfe_u32 v40, v0, 5, 1')
        self.mad(40, 40, 4 * 20480 - 128, vL4)
        a('s_waitcnt vmcnt(%d)' % (2 if o['l2pf'] else 0))
        a('buffer_store_dword v167, v40, %s, s72 offen sc1' % srd(sWS))
        a('s_mov_b64 exec, 1')
        a('ds_add_u32 v30, v31')
        a('s_mov_b64 exec, -1')
        a('s_cmp_lg_u32 s%d, 4' % WV)
        a('s_cbranch_scc1 L_hmod')
        a('s_cmp_ge_u32 s2, %d' % N_ROW)
        a('s_cbranch_scc1 L_zjoin')
        a('s_lshr_b32 s72, s%d, 4' % RW)
        a('s_mul_i32 s72, s72, 20480')
        a('s_add_u32 s72, s72, %d' % F2)
        a('s_add_u32 s73, s72, 8192')
        a('s_add_u32 s74, s72, 12288')
        a('v_lshlrev_b32 v40, 7, v%d' % LANE)
        l, d = self.spin_head('clr')
        a('s_sleep %d' % o['fsleep'])
        for k in range(3):
            a('buffer_load_dword v%d, v40, %s, s%d offen sc1' % (41 + k, srd(sWS), 72 + k))
        self.spin_bound(d)
        a('s_waitcnt vmcnt(0)')
        a('v_cmp_ne_u32 vcc, s%d, v41' % TAG)
        a('v_cmp_ne_u32 s[70:71], s%d, v42' % TAG)
        a('s_or_b64 s[70:71], s[70:71], vcc')
        a('v_cmp_ne_u32 vcc, s%d, v43' % TAG)
        a('s_or_b64 exec, s[70:71], vcc')
        a('s_cbranch_scc1 %s' % l)
        a('%s:' % d)
        a('s_mov_b64 exec, -1')
        self.stamp(7)
        a('s_branch L_zjoin')
        a('L_hmod:')
        a('s_cmp_ge_u32 s2, %d' % N_ROW)
        a('s_cbranch_scc1 L_zjoin')
        a('v_subrev_u32 v40, 320, v0')
        a('v_lshlrev_b32 v41, 2, v40')
        a('buffer_load_dword v76, v41, %s, 0 offen' % srd(sWR))
        a('v_lshlrev_b32 v41, 3, v40')
        a('v_add_u32 v42, %d, v41' % PAR)
        a('s_mov_b32 s72, %d' % MODG)
        a('s_mov_b32 s73, %d' % (MODG + 5120))
        a('s_mov_b32 s74, %d' % (MODG + 10240))
        if o['msleep']:
            a('v_lshrrev_b32 v43, 1, v%d' % C16)
            a('v_and_b32 v44, 1, v0')
            a('v_lshlrev_b32 v44, 8, v44')
            self.mad(43, 43, 2560, 44)
            a('s_sub_u32 s70, s%d, 5' % WV)
            a('s_lshl_b32 s70, s70, 9')
            a('s_add_u32 s70, s70, %d' % (MODG + 4))
            self.poll16('modtag', 70, 44, sleep=o['msleep'], vaddr=43, mask='0xfff')
        l, d = self.spin_head('mod')
        for v in range(6):
            a('buffer_load_dwordx2 %s, v41, %s, s%d offen offset:%d sc1' % (vr(64 + 2 * v, 2), srd(sWS), 72 + v // 2, 2560 * (v % 2)))
        self.spin_bound(d)
        a('s_waitcnt vmcnt(0)')
        for v in range(6):
            a('v_xor_b32 v%d, s%d, v%d' % (65 + 2 * v, TAG, 65 + 2 * v))
        a('v_or3_b32 v65, v65, v67, v69')
        a('v_or3_b32 v71, v71, v73, v75')
        a('v_or_b32 v65, v65, v71')
        a('v_cmp_ne_u32 vcc, 0, v65')
        a('s_cbranch_vccnz %s' % l)
        a('%s:' % d)
        a('s_waitcnt vmcnt(0)')
        for v in range(7):
            self.unpack(80 + 2 * v, 81 + 2 * v, 64 + 2 * v)
        for r in (82, 83, 88, 89):
            a('v_add_f32 v%d, 1.0, v%d' % (r, r))
            a('v_cvt_pk_bf16_f32 v%d, 0, v%d' % (r, r))
        a('v_pk_mul_f32 v[82:83], v[82:83], v[84:85]')
        a('v_pk_mul_f32 v[80:81], v[80:81], v[84:85]')
        a('v_pk_mul_f32 v[94:95], v[86:87], v[92:93]')
        a('v_pk_mul_f32 v[92:93], v[88:89], v[92:93]')
        for v, r in enumerate((82, 80, 88, 86, 90, 92)):
            a('ds_write_b64 v42, %s offset:%d' % (vr(r, 2), 2560 * v))
        a('v_add_f32 v44, v92, v93')
        a('v_add_f32 v46, v94, v95')
        self.row_allreduce16([44, 46])
        a('v_cvt_f64_f32 v[44:45], v44')
        a('v_cvt_f64_f32 v[46:47], v46')
        a('v_mov_b32 v42, %d' % CS)
        a('s_mov_b32 exec_lo, 0x00010001')
        a('s_mov_b32 exec_hi, 0x00010001')
        a('ds_add_f64 v42, v[44:45]')
        a('ds_add_f64 v42, v[46:47] offset:8')
        a('s_mov_b64 exec, -1')
        self.stamp(6)
        a('s_branch L_zjoin')

    def rows(self):
        a, o = self.a, self.opt
        Q, P, Z = 96, 112, 136
        sel = lambda s: 'op_sel:[0,%d,%d] op_sel_hi:[1,%d,%d]' % (s, s, s, s)
        a('s_lshl_b32 s72, s%d, 11' % WV)
        a('ds_read_b128 v[128:131], v%d' % vQS)
        a('ds_read_b128 v[132:135], v%d offset:%d' % (vQS, QPITCH))
        a('ds_read_b128 v[40:43], v%d' % vST1)
        par = (136, 144, 44, 52, 60, 68)
        for v in range(6):
            a('ds_read_b128 %s, v%d offset:%d' % (vr(par[v], 4), vPAR, 2560 * v))
            a('ds_read_b128 %s, v%d offset:%d' % (vr(par[v] + 4, 4), vPAR, 2560 * v + 16))
        A1, A2, B1, B2, G, W = par
        a('v_mov_b32 v30, %d' % CS)
        a('s_mul_i32 s73, s%d, 20480' % RW)
        a('s_add_u32 s72, s72, s73')
        a('s_add_u32 s81, s72, %d' % ZX)
        a('s_lshl_b32 s72, s%d, 7' % WV)
        a('s_add_u32 s76, s72, s73')
        a('s_add_u32 s77, s76, 10240')
        a('s_mul_i32 s73, s%d, 1280' % RW)
        a('s_add_u32 s73, s73, s72')
        a('s_lshl_b32 s73, s73, 1')
        a('s_add_u32 s74, s73, %d' % H2G)
        a('s_lshl_b32 s73, s73, 1')
        a('s_add_u32 s75, s73, %d' % BASEG)
        a('s_mul_i32 s73, s%d, %d' % (RW, o['kstride']))
        a('s_add_u32 s78, s73, %d' % KEYS)
        a('s_mov_b32 s82, %s' % MARK)
        a('s_mov_b32 s64, 0x3acccccd')
        a('s_mov_b32 s65, 0x3acccccd')
        a('s_mov_b32 s66, 0xff00ff00')
        a('s_mov_b32 s67, 0xff00ff00')
        a('s_mov_b32 s68, 0xfffff800')
        a('s_mov_b32 s69, 0x3727c5ac')
        a('s_waitcnt lgkmcnt(12)')
        a('ds_read_b128 v[76:79], v30')
        for c in range(8):
            for rho in range(2):
                src = 128 + 4 * rho + c // 2
                if c % 2 == 0:
                    a('v_lshlrev_b32 v%d, 16, v%d' % (Q + 2 * c + rho, src))
                else:
                    a('v_and_b32 v%d, s%d, v%d' % (Q + 2 * c + rho, HI, src))
        for c in range(8):
            a('v_pk_fma_f32 %s, %s, v[40:41], v[42:43]' % (vr(P + 2 * c, 2), vr(Q + 2 * c, 2)))
        a('s_waitcnt lgkmcnt(9)')
        for c in range(8):
            e = c & ~1
            a('v_pk_fma_f32 %s, %s, %s, %s %s' % (vr(P + 2 * c, 2), vr(P + 2 * c, 2), vr(A1 + e, 2), vr(A2 + e, 2), sel(c & 1)))
        for i in range(8):
            a('v_mov_b32 v%d, s%d' % (81 + 2 * i, TAG))
        a('v_subrev_u32 v29, 1, v%d' % vIDX)
        a('s_waitcnt lgkmcnt(0)')
        a('v_cvt_f32_f64 v76, v[76:77]')
        a('v_cvt_f32_f64 v77, v[78:79]')
        if o['zwait']:
            a('s_waitcnt vmcnt(0)')
            a('s_barrier')
        self.stamp(8)

        def zloads():
            a('buffer_load_dwordx4 v[128:131], v%d, %s, s81 offen sc1' % (vZLD, srd(sWS)))
            a('buffer_load_dwordx4 v[132:135], v%d, %s, s81 offen offset:128 sc1' % (vZLD, srd(sWS)))
        zloads()
        self.data_confirm('z', zloads, 128, 132, 10)
        self.stamp(9)
        S1, S2, S3 = 152, 154, 156
        for h in range(2):
            for c in range(4 * h, 4 * h + 4):
                self.unpack(Z + 2 * c, Z + 2 * c + 1, 128 + c)
            for c in range(4 * h, 4 * h + 4):
                a('v_pk_fma_f32 %s, %s, %s, %s' % (vr(Q + 2 * c, 2), vr(P + 2 * c, 2), vr(Z + 2 * c, 2), vr(Q + 2 * c, 2)))
            for c in range(4 * h, 4 * h + 4):
                x = vr(Q + 2 * c, 2)
                s, e = c & 1, c & ~1
                if c == 0:
                    a('v_pk_mul_f32 %s, %s, %s' % (vr(S2, 2), x, x))
                    a('v_pk_mul_f32 %s, %s, %s op_sel:[0,0] op_sel_hi:[1,0]' % (vr(S3, 2), x, vr(W, 2)))
                else:
                    a('v_pk_add_f32 %s, %s, %s' % (vr(S1, 2), vr(Q, 2) if c == 1 else vr(S1, 2), x))
                    a('v_pk_fma_f32 %s, %s, %s, %s' % (vr(S2, 2), x, x, vr(S2, 2)))
                    a('v_pk_fma_f32 %s, %s, %s, %s op_sel:[0,%d,0] op_sel_hi:[1,%d,1]' % (vr(S3, 2), x, vr(W + e, 2), vr(S3, 2), s, s))
        for s in (S1, S2, S3):
            a('v_permlane32_swap_b32 v%d, v%d' % (s, s + 1))
        for s in (S1, S2, S3):
            a('v_add_f32 v%d, v%d, v%d' % (s, s, s + 1))
        a('v_permlane16_swap_b32 v%d, v%d' % (S1, S2))
        a('v_add_f32_dpp v%d, v%d, v%d row_ror:8 %s' % (S3, S3, S3, DPP))
        a('v_add_f32 v%d, v%d, v%d' % (S1, S1, S2))
        a('v_add_f32_dpp v%d, v%d, v%d row_ror:8 %s' % (S1, S1, S1, DPP))
        a('v_cndmask_b32 v%d, v%d, v%d, s[66:67]' % (S1, S1, S3))
        a('v_cvt_f64_f32 %s, v%d' % (vr(S1, 2), S1))
        a('ds_add_f64 v%d, %s' % (vSADD, vr(S1, 2)))
        if o['keyprio']:
            a('s_cmp_lg_u32 s%d, 2' % WV)
            a('s_cbranch_scc1 L_noprio')
            a('s_setprio 3')
            a('L_noprio:')
        a('s_waitcnt lgkmcnt(0)')
        a('s_barrier')
        a('ds_read_b128 v[128:131], v%d' % vSRD)
        a('ds_read_b128 v[132:135], v%d offset:16' % vSRD)
        a('ds_read_b128 v[152:155], v%d offset:32' % vSRD)
        a('s_waitcnt lgkmcnt(1)')
        for i in range(4):
            a('v_cvt_f32_f64 v%d, %s' % (32 + i, vr(128 + 2 * i, 2)))
        a('v_pk_mul_f32 v[32:33], v[32:33], s[64:65]')
        a('v_pk_mul_f32 v[34:35], v[34:35], s[64:65]')
        a('v_pk_fma_f32 v[34:35], v[32:33], v[32:33], v[34:35] neg_lo:[1,0,0] neg_hi:[1,0,0]')
        a('v_max_f32 v34, 0, v34')
        a('v_max_f32 v35, 0, v35')
        a('v_add_f32 v34, s69, v34')
        a('v_add_f32 v35, s69, v35')
        a('v_rsq_f32 v34, v34')
        a('v_rsq_f32 v35, v35')
        a('s_waitcnt lgkmcnt(0)')
        a('v_cvt_f32_f64 v36, v[152:153]')
        a('v_cvt_f32_f64 v37, v[154:155]')
        a('v_pk_fma_f32 v[36:37], v[32:33], v[76:77], v[36:37] op_sel_hi:[1,0,1] neg_lo:[1,0,0] neg_hi:[1,0,0]')
        a('v_pk_fma_f32 v[36:37], v[36:37], v[34:35], v[76:77] op_sel:[0,0,1] op_sel_hi:[1,1,1]')
        for r, t in ((36, 38), (37, 39)):
            a('v_ashrrev_i32 v%d, 31, v%d' % (t, r))
        for r, t in ((36, 38), (37, 39)):
            a('v_or_b32 v%d, 0x80000000, v%d' % (t, t))
        for r, t in ((36, 38), (37, 39)):
            a('v_xor_b32 v%d, v%d, v%d' % (r, r, t))
        for r, ix in ((36, vIDX), (37, 29)):
            a('v_and_or_b32 v%d, v%d, s68, v%d' % (r, r, ix))
        a('v_max_u32 v166, v36, v37')
        a('v_max_u32_dpp v166, v166, v166 quad_perm:[1,0,3,2] %s' % DPP)
        a('v_max_u32_dpp v166, v166, v166 quad_perm:[2,3,0,1] %s' % DPP)
        a('v_max_u32_dpp v166, v166, v166 row_half_mirror %s' % DPP)
        a('s_cmp_lg_u32 s%d, 2' % WV)
        a('s_cbranch_scc1 L_nokey')
        a('s_mov_b64 exec, 1')
        a('buffer_store_dwordx2 v[166:167], v%d, %s, s78 offen sc1' % (vC128, srd(sWS)))
        a('s_mov_b64 exec, -1')
        a('L_nokey:')
        self.stamp(11)
        a('v_readfirstlane_b32 s72, v166')
        a('v_pk_mul_f32 v[32:33], v[32:33], v[34:35] neg_lo:[1,0] neg_hi:[1,0]')
        for c in range(8):
            a('v_pk_fma_f32 %s, %s, v[34:35], v[32:33]' % (vr(Z + 2 * c, 2), vr(Q + 2 * c, 2)))
        for c in range(8):
            e = c & ~1
            a('v_pk_fma_f32 %s, %s, %s, %s %s' % (vr(Z + 2 * c, 2), vr(Z + 2 * c, 2), vr(B1 + e, 2), vr(B2 + e, 2), sel(c & 1)))
        a('s_not_b32 s72, s72')
        a('s_bfe_u32 s73, s72, 0x30001')
        a('s_mov_b32 s70, 0x01010101')
        a('s_mov_b32 s71, 0x01010101')
        a('s_lshl_b64 s[70:71], s[70:71], s73')
        a('s_bitcmp1_b32 s72, 0')
        a('s_cbranch_scc1 L_h2odd')
        for k in range(4):
            a('v_cvt_pk_bf16_f32 v%d, v%d, v%d' % (80 + 2 * k, Z + 4 * k, Z + 4 * k + 2))
        a('s_branch L_h2st')
        a('L_h2odd:')
        for k in range(4):
            a('v_cvt_pk_bf16_f32 v%d, v%d, v%d' % (80 + 2 * k, Z + 4 * k + 1, Z + 4 * k + 3))
        a('L_h2st:')
        a('s_mov_b64 exec, s[70:71]')
        a('buffer_store_dwordx4 v[80:83], v%d, %s, s74 offen sc1' % (vH2, srd(sWS)))
        a('buffer_store_dwordx4 v[84:87], v%d, %s, s74 offen offset:16 sc1' % (vH2, srd(sWS)))
        a('s_mov_b64 exec, -1')
        self.stamp(12)
        for c in range(8):
            e, s = c & ~1, c & 1
            a('v_pk_fma_f32 %s, %s, %s, %s op_sel:[0,%d,0] op_sel_hi:[1,%d,1]' % (vr(P + 2 * c, 2), vr(Z + 2 * c, 2), vr(G + e, 2), vr(Q + 2 * c, 2), s, s))
        for rho in range(2):
            for k in range(4):
                a('v_cvt_pk_bf16_f32 v%d, v%d, v%d' % (32 + 4 * rho + k, P + 4 * k + rho, P + 4 * k + 2 + rho))
        a('ds_write_b128 v%d, v[32:35]' % vQS)
        a('ds_write_b128 v%d, v[36:39] offset:%d' % (vQS, QPITCH))
        a('ds_read_b128 v[128:131], v%d' % vORD)
        a('ds_read_b128 v[132:135], v%d offset:%d' % (vORD, 8 * QPITCH))
        if o['h2wait']:
            a('s_waitcnt vmcnt(0)')
        a('s_waitcnt lgkmcnt(1)')
        a('buffer_store_dwordx4 v[128:131], v%d, %s, s76 offen sc1' % (vOST, srd(sO)))
        a('s_waitcnt lgkmcnt(0)')
        a('buffer_store_dwordx4 v[132:135], v%d, %s, s77 offen sc1' % (vOST, srd(sO)))
        a('s_bitcmp1_b32 s72, 0')
        a('s_cselect_b64 vcc, -1, 0')
        for c in range(8):
            a('v_cndmask_b32 v%d, v%d, v%d, vcc' % (80 + 2 * c, P + 2 * c, P + 2 * c + 1))
        a('s_waitcnt vmcnt(0)')
        a('s_mov_b64 exec, s[70:71]')
        for k in range(4):
            a('buffer_store_dwordx4 %s, v%d, %s, s75 offen offset:%d sc1' % (vr(80 + 4 * k, 4), vBASE, srd(sWS), 16 * k))
        a('s_mov_b64 exec, -1')
        self.stamp(13)
        a('s_branch L_end')

    def nonconv(self):
        a = self.a
        MR, MP, GR, DR, GP, DP = 12, 44, 76, 108, 12, 44
        vGUA, vGUR, vXS, vPT, vKM = 124, 125, 126, 127, 128
        a('L_nonconv:')
        a('s_mov_b32 s64, 0x05040100')
        a('s_mov_b32 s65, 0x07060302')
        a('v_lshlrev_b32 v131, 3, v%d' % C16)
        a('v_lshlrev_b32 v132, 2, v%d' % C16)
        a('v_bfe_u32 v137, v0, 5, 1')
        a('v_and_b32 v130, 31, v0')
        a('v_lshlrev_b32 v130, 2, v130')
        self.mad(133, 137, 32 * 7680, 130)
        self.mad(134, R4, 32 * 3456, 132)
        self.mad(135, 137, 16 * 1280, 130)
        a('v_lshl_add_u32 v136, v137, 6, v132')
        a('s_sub_u32 s70, s2, %d' % MOD0)
        a('s_mul_i32 s72, s%d, %d' % (WV, 64 * 7680))
        a('s_lshl_b32 s73, s70, 7')
        a('s_add_u32 s72, s72, s73')
        a('s_max_u32 s68, s2, %d' % MLP0)
        a('s_sub_u32 s68, s68, %d' % MLP0)
        a('s_and_b32 s73, s68, 7')
        a('s_bfe_u32 s74, s68, 0x10003')
        a('s_lshl_b32 s73, s73, 1')
        a('s_add_u32 s73, s73, s74')
        a('s_and_b32 s74, s68, 0x30')
        a('s_add_u32 s73, s73, s74')
        a('s_cmp_lt_u32 s68, 48')
        a('s_cselect_b32 s68, s73, s68')
        a('s_bitcmp1_b32 s%d, 0' % WV)
        a('s_cselect_b64 s[%d:%d], s[%d:%d], s[%d:%d]' % (sWG, sWG + 1, sWU, sWU + 1, sWG, sWG + 1))
        a('s_lshr_b32 s71, s%d, 1' % WV)
        a('s_mul_i32 s74, s71, %d' % (128 * 3456))
        a('s_lshl_b32 s73, s68, 6')
        a('s_add_u32 s74, s74, s73')
        a('s_mul_i32 s76, s68, %d' % (32 * 1280))
        a('s_lshl_b32 s73, s%d, 7' % WV)
        a('s_add_u32 s76, s76, s73')
        a('s_and_b32 s82, s%d, 1' % WV)
        a('s_lshl_b32 s82, s82, 3')
        a('s_add_u32 s82, s82, %d' % GU)
        a('v_lshl_add_u32 v129, v%d, 5, s82' % C16)
        a('v_lshl_add_u32 v%d, v137, 4, v129' % vGUA)
        a('v_lshlrev_b32 v129, 2, v136')
        a('v_add_u32 v%d, %d, v129' % (vGUR, GU))
        a('s_lshl_b32 s82, s71, 9')
        a('s_add_u32 s82, s82, %d' % H2G)
        a('v_lshl_add_u32 v%d, v%d, 3, s82' % (vXS, LANE))
        a('v_bfe_u32 v129, v0, 4, 1')
        a('v_lshl_add_u32 v129, v129, 8, v131')
        a('v_lshl_add_u32 v%d, v137, 7, v129' % vPT)
        a('s_mul_i32 s82, s68, 5120')
        a('s_lshl_b32 s73, s%d, 9' % WV)
        a('s_add_u32 s82, s82, s73')
        a('s_add_u32 s81, s82, %d' % PART)
        a('v_and_b32 v129, 3, v0')
        a('v_lshlrev_b32 v129, 2, v129')
        a('v_add_u32 v%d, %d, v129' % (vKM, KEYMAX))
        self.wave_flag(78)
        self.stamp(2)
        a('s_cmp_ge_u32 s2, %d' % (MLP0 + N_MLP))
        a('s_cbranch_scc1 L_end')
        def gowait():
            a('s_cmp_lg_u32 s%d, 1' % WV)
            a('s_cbranch_scc1 L_bggo')
            a('s_and_b32 s80, s2, 7')
            a('s_mul_i32 s80, s80, 2560')
            a('s_add_u32 s80, s80, %d' % GO)
            self.poll16('bg', 80, 148, sleep=self.opt['gsleep'])
            a('L_bggo:')
        if self.opt['bg'] == 1:
            gowait()
        a('s_barrier')
        a('s_cmp_ge_u32 s2, %d' % (MOD0 + N_MOD))
        a('s_cbranch_scc1 L_mlp')
        a('s_lshl_b32 s73, s%d, 7' % WV)
        a('buffer_load_dword v138, v136, %s, s73 offen' % srd(sC))
        for i in range(32):
            a('buffer_load_dword v%d, v133, %s, s72 offen' % (MR + i, srd(sWM)))
            if i < 31:
                a('s_add_u32 s72, s72, 7680')
        a('s_waitcnt vmcnt(32)')
        self.unpack(139, 138, 138)
        self.silu(139, 140)
        self.silu(138, 141)
        a('v_cvt_pk_bf16_f32 v138, v139, v138')
        for i in range(4):
            a('v_mov_b32 v%d, 0' % (140 + i))
        a('v_lshl_add_u32 v129, v130, 2, %d' % 0)
        a('v_lshl_add_u32 v129, v137, 3, v129')
        a('v_add_u32 v129, %d, v129' % MODACC)
        for t in range(16):
            a('s_waitcnt vmcnt(%d)' % (30 - 2 * t))
            self.pair_rows(MP + 2 * t, MR + 2 * t, MR + 1 + 2 * t)
            if t % 2 == 1:
                for u in (t - 1, t):
                    for c in range(2):
                        a('v_dot2c_f32_bf16_dpp v%d, v138, v%d row_newbcast:%d %s' % (140 + 2 * (u & 1) + c, MP + 2 * u + c, u, DPP))
        a('v_pk_add_f32 v[140:141], v[140:141], v[142:143]')
        a('v_permlane32_swap_b32 v140, v141')
        a('v_add_f32 v140, v140, v141')
        a('v_cvt_f64_f32 v[140:141], v140')
        a('ds_add_f64 v129, v[140:141]')
        a('v_add_u32 v129, %d, v%d' % (MODACC, vL16))
        a('v_lshlrev_b32 v139, 3, v%d' % LANE)
        a('s_lshl_b32 s72, s70, 8')
        a('s_add_u32 s72, s72, %d' % MODG)
        a('s_cmp_lg_u32 s%d, 0' % WV)
        a('s_waitcnt lgkmcnt(0)')
        a('s_barrier')
        a('s_cbranch_scc1 L_modpub')
        a('s_mov_b32 exec_hi, 0')
        a('ds_read_b128 v[140:143], v129')
        a('s_waitcnt lgkmcnt(0)')
        a('v_cvt_f32_f64 v140, v[140:141]')
        a('v_cvt_f32_f64 v141, v[142:143]')
        a('v_cvt_pk_bf16_f32 v166, v140, v141')
        a('buffer_store_dwordx2 v[166:167], v139, %s, s72 offen sc1' % srd(sWS))
        a('s_mov_b64 exec, -1')
        a('L_modpub:')
        self.stamp(3)
        a('s_cmp_lt_u32 s2, %d' % (RED0 + N_RED))
        a('s_cbranch_scc1 L_keys')
        a('s_cmp_lt_u32 s2, %d' % MLP0)
        a('s_cbranch_scc1 L_end')
        a('L_mlp:')
        if self.opt['bg'] == 2:
            gowait()
        a('s_barrier')
        for t in range(16):
            a('buffer_load_dword v%d, v134, %s, s74 offen' % (GR + 2 * t, srd(sWG)))
            a('buffer_load_dword v%d, v134, %s, s74 offen offset:3456' % (GR + 1 + 2 * t, srd(sWG)))
            if t < 15:
                a('s_add_u32 s74, s74, 6912')
        for i in range(16):
            a('buffer_load_dword v%d, v135, %s, s76 offen offset:%d' % (DR + i, srd(sWD), 1280 * (i % 4)))
            if i % 4 == 3:
                a('s_add_u32 s76, s76, 5120')
        a('s_waitcnt vmcnt(0)')
        for t in range(16):
            self.pair_rows(GP + 2 * t, GR + 2 * t, GR + 1 + 2 * t)
        for t in range(8):
            self.pair_rows(DP + 2 * t, DR + 2 * t, DR + 1 + 2 * t)
        for i in range(8):
            a('v_mov_b32 v%d, 0' % (140 + i))
        self.stamp(4)
        a('L_keys:')
        a('v_mov_b32 v129, %d' % KEYMAX)
        a('s_cmp_ge_u32 s%d, 8' % WV)
        a('s_cbranch_scc1 L_keyjoin')
        a('s_mul_i32 s72, s%d, %d' % (WV, 16 * self.opt['kstride']))
        a('s_add_u32 s72, s72, %d' % KEYS)
        a('v_mul_u32_u24 v%d, %d, v%d' % (vC128, self.opt['kstride'], C16))
        self.poll16('keys', 72, 148, width=2, sleep=self.opt['ksleep'])
        a('ds_max_u32 v%d, v%d' % (vKM, 148 + 2 * self.opt['depth']))
        a('s_mov_b64 exec, -1')
        a('s_waitcnt lgkmcnt(0)')
        a('L_keyjoin:')
        a('s_barrier')
        a('ds_read_b128 v[132:135], v129')
        a('s_waitcnt lgkmcnt(0)')
        a('v_max3_u32 v132, v132, v133, v134')
        a('v_max_u32 v132, v132, v135')
        a('v_readfirstlane_b32 s74, v132')
        a('s_not_b32 s75, s74')
        a('s_bfe_u32 s76, s75, 0x70004')
        self.stamp(5)
        a('s_cmp_lt_u32 s2, %d' % MLP0)
        a('s_cbranch_scc1 L_red')
        a('s_mul_i32 s77, s76, 2560')
        l, d = self.spin_head('xsel')
        a('buffer_load_dwordx2 v[138:139], v%d, %s, s77 offen sc1' % (vXS, srd(sWS)))
        self.spin_bound(d)
        a('s_waitcnt vmcnt(0)')
        a('v_cmp_ne_u32 vcc, s%d, v139' % TAG)
        a('s_cbranch_vccnz %s' % l)
        a('%s:' % d)
        a('s_waitcnt vmcnt(0)')
        self.stamp(6)
        for t in range(16):
            for c in range(2):
                a('v_dot2c_f32_bf16_dpp v%d, v138, v%d row_newbcast:%d %s' % (140 + 2 * (t & 1) + c, GP + 2 * t + c, t, DPP))
        a('v_pk_add_f32 v[140:141], v[140:141], v[142:143]')
        a('v_permlane32_swap_b32 v140, v141')
        a('v_add_f32 v140, v140, v141')
        a('v_cvt_f64_f32 v[140:141], v140')
        a('ds_add_f64 v%d, v[140:141]' % vGUA)
        a('s_waitcnt lgkmcnt(0)')
        a('s_barrier')
        a('ds_read_b128 v[132:135], v%d' % vGUR)
        a('s_waitcnt lgkmcnt(0)')
        a('v_cvt_f32_f64 v138, v[132:133]')
        a('v_cvt_f32_f64 v139, v[134:135]')
        a('v_mul_f32 v137, 0xbfb8aa3b, v138')
        a('v_exp_f32 v137, v137')
        a('v_mul_f32 v138, v138, v139')
        a('v_add_f32 v137, 1.0, v137')
        a('v_rcp_f32 v137, v137')
        a('v_mul_f32 v138, v138, v137')
        a('v_mov_b32_dpp v139, v138 quad_perm:[1,0,3,2] %s' % DPP)
        a('v_cvt_pk_bf16_f32 v138, v138, v139')
        for t in range(8):
            for c in range(2):
                a('v_dot2c_f32_bf16_dpp v%d, v138, v%d row_newbcast:%d %s' % (144 + 2 * (t & 1) + c, DP + 2 * t + c, 2 * t, DPP))
        a('v_pk_add_f32 v[144:145], v[144:145], v[146:147]')
        a('v_permlane32_swap_b32 v144, v145')
        a('v_add_f32 v166, v144, v145')
        a('buffer_store_dwordx2 v[166:167], v%d, %s, s81 offen sc1' % (vPT, srd(sWS)))
        self.stamp(7)
        a('s_branch L_end')
        a('L_red:')
        a('s_cmp_ge_u32 s%d, 7' % WV)
        a('s_cbranch_scc1 L_fin')
        a('s_lshl_b32 s72, s%d, 3' % WV)
        a('v_add_u32 v12, s72, v%d' % R4)
        a('v_add_u32 v13, 4, v12')
        a('v_cmp_gt_u32 s[66:67], %d, v13' % N_MLP)
        a('v_min_u32 v13, %d, v13' % (N_MLP - 1))
        a('s_lshl_b32 s72, s70, 8')
        a('s_add_u32 s72, s72, %d' % PART)
        a('v_lshlrev_b32 v14, 4, v%d' % C16)
        self.mad(12, 12, 5120, 14)
        self.mad(13, 13, 5120, 14)
        a('v_bfe_u32 v15, v0, 3, 1')
        a('v_lshl_add_u32 v14, v%d, 2, v15' % P8)
        a('v_bfe_u32 v15, v0, 5, 1')
        a('v_lshl_add_u32 v14, v15, 1, v14')
        a('v_lshlrev_b32 v14, 3, v14')
        a('v_add_u32 v14, %d, v14' % RED)
        l, d = self.spin_head('part')
        a('buffer_load_dwordx4 v[16:19], v12, %s, s72 offen sc1' % srd(sWS))
        a('buffer_load_dwordx4 v[20:23], v13, %s, s72 offen sc1' % srd(sWS))
        self.spin_bound(d)
        a('s_waitcnt vmcnt(0)')
        for r in (17, 19, 21, 23):
            a('v_xor_b32 v%d, s%d, v%d' % (r, TAG, r))
        a('v_or3_b32 v17, v17, v19, v21')
        a('v_or_b32 v17, v17, v23')
        a('v_cmp_ne_u32 vcc, 0, v17')
        a('s_cbranch_vccnz %s' % l)
        a('%s:' % d)
        a('s_waitcnt vmcnt(0)')
        self.stamp(6)
        a('v_cndmask_b32 v20, 0, v20, s[66:67]')
        a('v_cndmask_b32 v22, 0, v22, s[66:67]')
        a('v_add_f32 v16, v16, v20')
        a('v_add_f32 v18, v18, v22')
        a('v_permlane32_swap_b32 v16, v18')
        a('v_add_f32 v16, v16, v18')
        a('v_cvt_f64_f32 v[16:17], v16')
        a('ds_add_f64 v14, v[16:17]')
        a('s_waitcnt lgkmcnt(0)')
        a('s_barrier')
        a('s_branch L_end')
        a('L_fin:')
        a('s_cmp_lg_u32 s%d, 9' % WV)
        a('s_cbranch_scc1 L_end')
        a('s_mul_i32 s72, s76, 5120')
        a('s_lshl_b32 s73, s70, 8')
        a('s_add_u32 s72, s72, s73')
        a('s_add_u32 s80, s72, %d' % BASEG)
        a('s_lshl_b32 s73, s70, 7')
        a('s_add_u32 s81, s73, %d' % (MODG + 5 * 2560))
        a('v_add_u32 v14, %d, v%d' % (RED, vL16))
        a('s_and_b32 s75, s75, 0x7ff')
        a('s_mul_i32 s72, s75, 1280')
        a('s_lshl_b32 s73, s70, 6')
        a('s_add_u32 s82, s72, s73')
        a('v_lshlrev_b32 v15, 2, v%d' % C16)
        a('s_and_b32 s72, s74, 0xfffff800')
        a('s_or_b32 s72, s72, 0x400')
        a('s_not_b32 s73, s72')
        a('s_xor_b32 s77, s72, 0x80000000')
        a('s_bitcmp1_b32 s72, 31')
        a('s_cselect_b32 s72, s77, s73')
        a('v_mov_b32 v24, s72')
        a('v_mul_f32 v24, 0xbfb8aa3b, v24')
        a('v_exp_f32 v24, v24')
        a('v_add_f32 v24, 1.0, v24')
        a('v_rcp_f32 v24, v24')
        a('s_mov_b64 exec, 0xffff')
        l, d = self.spin_head('base')
        a('buffer_load_dwordx4 v[16:19], v%d, %s, s80 offen sc1' % (vL16, srd(sWS)))
        a('buffer_load_dwordx2 v[20:21], v131, %s, s81 offen sc1' % srd(sWS))
        self.spin_bound(d)
        a('s_waitcnt vmcnt(0)')
        for r in (17, 19, 21):
            a('v_xor_b32 v%d, s%d, v%d' % (r, TAG, r))
        a('v_or3_b32 v17, v17, v19, v21')
        a('v_cmp_ne_u32 vcc, 0, v17')
        a('s_cbranch_vccnz %s' % l)
        a('%s:' % d)
        a('s_waitcnt vmcnt(0)')
        self.unpack(22, 23, 20)
        a('v_mul_f32 v22, v22, v24')
        a('v_mul_f32 v23, v23, v24')
        a('s_cmp_lg_u32 s70, 0')
        a('s_cbranch_scc1 L_noepoch')
        a('v_mov_b32 v25, 0')
        a('buffer_store_dword v167, v25, %s, 0 offen' % srd(sWS))
        a('L_noepoch:')
        self.stamp(8)
        a('s_barrier')
        a('ds_read_b128 v[28:31], v14')
        a('s_waitcnt lgkmcnt(0)')
        a('v_cvt_f32_f64 v28, v[28:29]')
        a('v_cvt_f32_f64 v29, v[30:31]')
        a('v_fmac_f32 v16, v22, v28')
        a('v_fmac_f32 v18, v23, v29')
        a('v_cvt_pk_bf16_f32 v16, v16, v18')
        a('buffer_store_dword v16, v15, %s, s82 offen' % srd(sO))
        a('s_mov_b64 exec, -1')
        self.stamp(7)

    def finish(self):
        a = self.a
        a('L_end:')
        if self.amp:
            lo, hi, j = self.amp
            self.stamp(15)
            a('s_cmp_lt_u32 s2, %d' % lo)
            a('s_cbranch_scc1 L_exit')
            a('s_cmp_ge_u32 s2, %d' % hi)
            a('s_cbranch_scc1 L_exit')
            a('s_cmp_eq_u32 s%d, 0' % (84 + j))
            a('s_cbranch_scc1 L_exit')
            a('s_sub_u32 s72, s%d, s84' % (84 + j))
            a('s_min_u32 s72, s72, 3000')
            a('s_mul_i32 s72, s72, 10')
            a('s_add_u32 s72, s72, 3000')
            a('L_amp:')
            a('s_sleep 8')
            a('s_memrealtime s[100:101]')
            a('s_waitcnt lgkmcnt(0)')
            a('s_sub_u32 s73, s100, s84')
            a('s_cmp_lt_u32 s73, s72')
            a('s_cbranch_scc1 L_amp')
        if self.diag:
            self.stamp(15)
            a('s_mov_b64 exec, -1')
            a('s_mul_i32 s72, s2, 640')
            a('s_add_u32 s72, s72, s%d' % T64)
            a('s_add_u32 s72, s72, %d' % DIAG)
            a('v_mov_b32 v2, s72')
            for i in range(16):
                a('v_mov_b32 v%d, s%d' % (8 + i, 84 + i))
            a('s_mov_b64 exec, 1')
            for i in range(4):
                a('buffer_store_dwordx4 %s, v2, %s, 0 offen offset:%d' % (vr(8 + 4 * i, 4), srd(sWS), 16 * i))
        a('L_exit:')
        a('s_endpgm')
        a('L_code_end:')

    def text(self):
        self.prologue()
        self.conv()
        self.rows()
        self.helper()
        self.nonconv()
        self.finish()
        body = self.a.body().replace('CODE_LIMIT', 'L_code_end-%s_kernel-8' % NAME)
        code, desc = kernel_text(NAME + '_kernel', body, 168)
        return (HEADER + '; @launch grid=(256,1,1) block=(640,1,1) lds=%d\n' % LDS_BYTES +
                '.amdgcn_target "amdgcn-amd-amdhsa--gfx950"\n' + code + desc)


def parse_args(args):
    kw = {}
    for x in args:
        if x == 'diag':
            kw['diag'] = True
        elif x.startswith('amp='):
            kw['amp'] = tuple(int(y) for y in x[4:].split(','))
        else:
            k, v = x.split('=')
            kw[k] = int(v)
    return kw


if __name__ == '__main__':
    open(sys.argv[1], 'w').write(Gen(**parse_args(sys.argv[2:])).text())
```

```python
import sys
sys.path.insert(0, 'gen')
from asmlib import *

NAME = 'adaLN_cond__ssm_conv_h3__moe_arch_mod__prompt'
HEADER = open('cdna_kernels/%s.s.ref' % NAME).read().split('; Override launch')[0]

MODG, KEYS = 0x1000, 0x8000
H2G, BASEG, PART = 0x10000, 0x60000, 0x100000
F1, F2, GO = 0x150000, 0x1a0000, 0x1d0000
ZX, KVX, DIAG, KEYR = 0x200000, 0x480000, 0x800000, 0x840000
KVREG = 344 * 64
WS_BYTES = 0x900000
KC, KPITCH = 0, 4160
RV, RPITCH = 66624, 4640
PS = 85248
ZS = 100224
QS, QPITCH = 120704, 1312
PAR = 141696
ACC = 157056
ST2, CS, GU, MODACC, RED, KEYMAX = ACC, ACC + 384, ACC + 512, ACC + 1024, ACC + 1536, ACC + 1792
ZCNT = ACC + 1824
ST1 = ACC + 2560
LDS_BYTES = ST1 + 128

N_CONV, N_ROW = 160, 128
FREE0, N_FREE = 160, 41
MOD0, N_MOD = 160, 60
MLP0, N_MLP = 200, 54
RED0, N_RED = 160, 20
SPIN = 1 << 16
GROUPS = [('row', slice(0, 128)), ('conv', slice(128, 160)), ('red', slice(160, 180)), ('mod', slice(180, 200)),
          ('mm', slice(200, 220)), ('mlp', slice(220, 254))]

sK, sV, sSH, sWS, sSK, sO, sQ, sWR, sWG, sWU, sWD, sC, sWM, sD = [4 + 4 * i for i in range(14)]
SIZES = {sK: 2621440, sV: 2621440, sSH: 5120, sWS: WS_BYTES, sSK: 2621440, sQ: 2621440, sWR: 1280,
         sWG: 2211840, sWU: 2211840, sWD: 2211840, sC: 1280, sWM: 4915200, sO: 2621440}
SLOT = {sQ: 0, sK: 1, sV: 2, sSH: 3, sSK: 4, sD: 5, sWR: 7, sWG: 8, sWU: 9, sWD: 10, sC: 11, sWM: 12, sO: 13, sWS: 15}
TAG, WV, T64, HI = 60, 61, 62, 63
CG, RW = 3, 59
OOB = '0x7ffffff0'
MARK = '0x7f817f81'
DPP = 'row_mask:0xf bank_mask:0xf'

LANE, R4, C16, L8, P8, P16 = 1, 2, 3, 4, 5, 6
vPW, vPR, vKVST, vC128, vL16 = 7, 8, 9, 10, 11
vKI, vKW, vKVL, vZG0, vZG1, vZST = 12, 13, 14, 15, 16, 17
vQS, vST1, vPAR, vZLD, vSADD, vSRD, vIDX, vH2, vBASE, vORD, vOST = 18, 19, 20, 21, 22, 23, 24, 25, 26, 27, 28
vA, vB, vZW, vL4, vHI = 160, 161, 162, 164, 29


def srd(s):
    return 's[%d:%d]' % (s, s + 3)


def vr(a, n):
    return 'v[%d:%d]' % (a, a + n - 1)


class Gen:
    def __init__(self, diag=False, amp=None, **opt):
        self.a = Asm()
        self.diag = diag
        self.amp = amp
        self.opt = dict(prio=1, h2wait=0, pf=1, depth=1, keyprio=0, bg=2, klate=0, kstride=256, full=1,
                        ksleep=0, gsleep=2, fsleep=2, dnpf=1, rev=1, gupf=5, hdiag=0, peel=1, twob=0, krep=1,
                        h2bar=1, kpos=2, modearly=0, wmpf=1, adv=0, wmn=1, wrearly=1, pace=5)
        self.opt.update(opt)

    def hstamp(self, i):
        if self.opt['hdiag']:
            self.stamp(i, True)

    def stamp(self, i, force=False):
        if self.opt['hdiag'] and 9 <= i <= 13 and not force:
            return
        if self.diag is True or (self.diag and (i in (0, 15) or i in self.diag)) or (self.amp and i in (0, self.amp[2])):
            a = self.a
            a('s_memrealtime s[100:101]')
            a('s_waitcnt lgkmcnt(0)')
            a('s_mov_b32 s%d, s100' % (84 + i))

    def srd_tail(self, regs):
        for s in regs:
            self.a('s_mov_b32 s%d, %d' % (s + 2, SIZES[s]))
            self.a('s_mov_b32 s%d, 0x20000' % (s + 3))

    def ptrs(self, regs):
        for s in regs:
            self.a('s_load_dwordx2 s[%d:%d], s[0:1], %d' % (s, s + 1, 8 * SLOT[s]))

    def mad(self, dst, src, const, add):
        self.a('s_mov_b32 s83, %d' % const)
        self.a('v_mad_u32_u24 v%d, v%d, s83, v%d' % (dst, src, add))

    def unpack(self, dst_lo, dst_hi, src):
        self.a('v_lshlrev_b32 v%d, 16, v%d' % (dst_lo, src))
        self.a('v_and_b32 v%d, v%d, v%d' % (dst_hi, vHI, src))

    def spin_head(self, name):
        a = self.a
        l, d = a.label(name), a.label(name + '_done')
        a('s_mov_b32 s79, 0')
        a('%s:' % l)
        return l, d

    def spin_bound(self, d):
        a = self.a
        a('s_add_u32 s79, s79, 1')
        a('s_cmp_gt_u32 s79, %d' % SPIN)
        a('s_cbranch_scc1 %s' % d)

    def poll16(self, name, soff, vtmp, width=1, sleep=0, vaddr=vC128, mask='0xffff'):
        a = self.a
        depth = self.opt['depth']
        op = 'buffer_load_dword' if width == 1 else 'buffer_load_dwordx2'
        reg = lambda k: ('v%d' % (vtmp + k)) if width == 1 else vr(vtmp + 2 * k, 2)
        ld = lambda k: a('%s %s, v%d, %s, s%d offen sc1' % (op, reg(k), vaddr, srd(sWS), soff))
        a('s_mov_b64 exec, %s' % mask)
        for k in range(depth - 1):
            ld(k)
        l, d = self.spin_head(name)
        for k in range(depth):
            ld((k + depth - 1) % depth)
            if sleep:
                a('s_sleep %d' % sleep)
            a('s_waitcnt vmcnt(%d)' % (depth - 1))
            if width == 2:
                a('v_mov_b32 v%d, v%d' % (vtmp + 2 * depth, vtmp + 2 * k))
            a('v_cmp_ne_u32 vcc, s%d, v%d' % (TAG, vtmp + k if width == 1 else vtmp + 2 * k + 1))
            a('s_and_b64 exec, vcc, vcc')
            a('s_cbranch_scc0 %s' % d)
        self.spin_bound(d)
        a('s_branch %s' % l)
        a('%s:' % d)
        a('s_mov_b64 exec, %s' % ('-1' if width == 1 else '0xffff'))

    def barrier_flag(self, soff, wait):
        a = self.a
        l, e = a.label('flagwave'), a.label('flagged')
        a('s_cmp_eq_u32 s%d, 9' % WV)
        a('s_cbranch_scc1 %s' % l)
        a(wait)
        a('s_barrier')
        a('s_branch %s' % e)
        a('%s:' % l)
        a('s_mov_b64 exec, 1')
        a(wait)
        a('s_barrier')
        a('buffer_store_dword v167, v%d, %s, s%d offen sc1' % (vC128, srd(sWS), soff))
        a('s_mov_b64 exec, -1')
        a('%s:' % e)

    def silu(self, x, t):
        a = self.a
        a('v_mul_f32 v%d, 0xbfb8aa3b, v%d' % (t, x))
        a('v_exp_f32 v%d, v%d' % (t, t))
        a('v_add_f32 v%d, 1.0, v%d' % (t, t))
        a('v_rcp_f32 v%d, v%d' % (t, t))
        a('v_mul_f32 v%d, v%d, v%d' % (x, x, t))

    def row_allreduce16(self, regs):
        for sh in (1, 2, 4, 8):
            for r in regs:
                self.a('v_add_f32_dpp v%d, v%d, v%d row_ror:%d %s' % (r, r, r, sh, DPP))

    def reduce4x4(self, r):
        a = self.a
        a('v_permlane32_swap_b32 v%d, v%d' % (r, r + 2))
        a('v_permlane32_swap_b32 v%d, v%d' % (r + 1, r + 3))
        a('v_add_f32 v%d, v%d, v%d' % (r, r, r + 2))
        a('v_add_f32 v%d, v%d, v%d' % (r + 1, r + 1, r + 3))
        a('v_permlane16_swap_b32 v%d, v%d' % (r, r + 1))
        a('v_add_f32 v%d, v%d, v%d' % (r, r, r + 1))

    def pair_rows(self, dst, x, y):
        self.a('v_perm_b32 v%d, v%d, v%d, s64' % (dst, y, x))
        self.a('v_perm_b32 v%d, v%d, v%d, s65' % (dst + 1, y, x))

    def prologue(self):
        a, o = self.a, self.opt
        KR, VR, SR, W, KP, VP, AC, OUT, OUT2 = 96, 105, 112, 116, 124, 124, 142, 96, 104
        a('s_getpc_b64 s[66:67]')
        self.ptrs((sK, sV, sSH, sWS, sSK, sWM, sC))
        if self.diag or self.amp:
            for i in range(16):
                a('s_mov_b32 s%d, 0' % (84 + i))
        self.stamp(0)
        a('s_cmp_ge_u32 s2, 256')
        a('s_cbranch_scc1 L_exit')
        a('v_readfirstlane_b32 s%d, v0' % T64)
        a('s_lshr_b32 s74, s2, 3')
        if o['pf']:
            a('v_lshl_add_u32 v43, v0, 5, s74')
            a('v_lshlrev_b32 v43, 7, v43')
            a('v_cmp_gt_u32 vcc, CODE_LIMIT, v43')
            a('s_and_saveexec_b64 s[68:69], vcc')
            a('s_cbranch_execz L_nopf')
            a('v_mov_b32 v165, s67')
            a('v_add_co_u32 v164, vcc, s66, v43')
            a('v_addc_co_u32 v165, vcc, 0, v165, vcc')
            a('global_load_dword v163, v[164:165], off')
            a('L_nopf:')
            a('s_mov_b64 exec, -1')
        a('v_bfe_u32 v%d, v0, 4, 2' % R4)
        a('v_and_b32 v%d, 15, v0' % C16)
        a('s_lshr_b32 s%d, s%d, 6' % (WV, T64))
        a('s_sub_u32 s71, s2, %d' % N_FREE)
        a('s_cmp_lt_u32 s2, %d' % FREE0)
        a('s_cselect_b32 s71, s2, s71')
        a('s_mul_i32 s70, s71, 205')
        a('s_lshr_b32 s70, s70, 10')
        a('s_mul_i32 s72, s70, 5')
        a('s_sub_u32 s71, s71, s72')
        a('s_lshr_b32 s72, s%d, 2' % WV)
        a('s_lshl1_add_u32 s70, s70, s72')
        a('s_and_b32 s72, s%d, 3' % WV)
        a('s_lshl2_add_u32 s71, s71, s72')
        a('s_mul_i32 s72, s70, 30720')
        a('s_lshl_b32 s73, s71, 6')
        a('s_add_u32 s72, s72, s73')
        a('v_mul_u32_u24 v40, 7680, v%d' % R4)
        a('v_lshl_add_u32 v40, v%d, 2, v40' % C16)
        a('v_add_u32 v40, s72, v40')
        a('v_subrev_u32 v41, 3840, v40')
        a('v_add_u32 v43, 3840, v40')
        a('v_lshlrev_b32 v42, 4, v%d' % C16)
        a('s_lshl_b32 s73, s73, 2')
        self.srd_tail((sK, sV, sSH))
        a('s_sub_u32 s72, s2, %d' % FREE0)
        a('s_cmp_lt_u32 s72, %d' % N_FREE)
        a('s_cselect_b32 s58, 8, s%d' % WV)
        a('s_cmp_ge_u32 s58, 8')
        a('s_waitcnt lgkmcnt(0)')
        a('s_cbranch_scc1 %s' % ('L_free' if o['modearly'] else 'L_shadow'))
        a('buffer_load_dwordx4 %s, v42, %s, s73 offen' % (vr(SR, 4), srd(sSH)))
        for i in range(9):
            a('buffer_load_dword v%d, v%d, %s, 0 offen offset:%d' % (KR + i, (41, 40, 43)[i // 3], srd(sK), 1280 * (i % 3)))
        for i in range(6):
            a('buffer_load_dword v%d, v%d, %s, 0 offen offset:%d' % (VR + i, (40, 43)[i // 3], srd(sV), 1280 * (i % 3)))
        a('L_shadow:')
        a('s_load_dword s%d, s[%d:%d], 0' % (TAG, sWS, sWS + 1))
        self.ptrs((sD, sQ, sWR, sWU, sWD, sO, sWG))
        a('v_and_b32 v%d, 63, v0' % LANE)
        a('s_and_b32 s75, s2, 7')
        a('s_mul_i32 s%d, s75, 20' % CG)
        a('s_add_u32 s%d, s%d, s74' % (CG, CG))
        a('s_lshl4_add_u32 s%d, s75, s74' % RW)
        self.srd_tail((sSK,))
        a('s_cmp_ge_u32 s%d, 5' % WV)
        a('s_cselect_b32 s74, 1, 0')
        a('s_mul_i32 s75, s74, 5')
        a('s_sub_u32 s75, s%d, s75' % WV)
        a('s_mul_i32 s75, s75, 52')
        a('v_add_u32 v%d, s75, v%d' % (vKI, LANE))
        a('s_lshl2_add_u32 s75, s%d, s74' % CG)
        a('s_lshl_b32 s76, s75, 12')
        a('s_sub_u32 s76, s76, 32')
        a('v_lshl_add_u32 v46, v%d, 4, s76' % vKI)
        a('v_subrev_u32 v43, 2, v%d' % vKI)
        a('v_cmp_gt_u32 vcc, 256, v43')
        a('s_and_b32 vcc_hi, vcc_hi, 0x1fffff')
        a('s_cmp_lt_u32 s2, %d' % N_CONV)
        a('s_cselect_b64 vcc, vcc, 0')
        a('v_mov_b32 v47, %s' % OOB)
        a('v_cndmask_b32 v46, v47, v46, vcc')
        a('s_movk_i32 s77, 0x2000')

        def kloads():
            a('buffer_load_dwordx4 v[48:51], v46, %s, 0 offen' % srd(sSK))
            a('buffer_load_dwordx4 v[56:59], v46, %s, s77 offen' % srd(sSK))
        if o['kpos'] == 0:
            kloads()
        self.srd_tail([s for s in SIZES if s not in (sK, sV, sSH, sSK)])
        a('s_mov_b32 s%d, 0xffff0000' % HI)
        a('v_mov_b32 v%d, 0xffff0000' % vHI)
        a('v_bfe_u32 v%d, v0, 3, 3' % L8)
        a('v_and_b32 v%d, 0x70, v42' % P16)
        a('v_and_b32 v%d, 7, v0' % P8)
        a('v_lshlrev_b32 v%d, 7, v%d' % (vC128, C16))
        a('v_lshlrev_b32 v%d, 4, v%d' % (vL16, LANE))
        a('v_lshlrev_b32 v%d, 2, v%d' % (vL4, LANE))
        a('v_lshlrev_b32 v31, 7, v%d' % LANE)
        self.mad(vKVST, R4, KVREG, 42)
        a('s_mul_i32 s72, s71, %d' % (8 * KVREG))
        a('s_lshl_b32 s73, s70, 8')
        a('s_add_u32 s72, s72, s73')
        a('s_add_u32 s80, s72, %d' % KVX)
        a('s_add_u32 s81, s80, %d' % (4 * KVREG))
        a('s_lshl_b32 s72, s71, 14')
        a('s_lshl_b32 s73, s70, 7')
        a('s_add_u32 s72, s72, s73')
        a('s_add_u32 s78, s72, %d' % F1)
        a('s_cmp_lt_u32 s%d, 8' % WV)
        a('s_cbranch_scc1 L_nowatch')
        a('s_lshr_b32 s72, s%d, 3' % CG)
        a('s_lshl_b32 s72, s72, 14')
        a('s_and_b32 s73, s%d, 1' % WV)
        a('s_mul_i32 s73, s73, %d' % (43 * 128))
        a('s_add_u32 s72, s72, s73')
        a('s_add_u32 s78, s72, %d' % F1)
        a('s_cmp_ge_u32 s2, %d' % (N_CONV if o['adv'] else 0))
        a('s_cbranch_scc1 L_nowatch')
        a('s_mov_b32 exec_hi, 0x7ff')
        a('buffer_load_dword v30, v31, %s, s78 offen sc1' % srd(sWS))
        a('s_mov_b32 exec_hi, -1')
        a('L_nowatch:')
        a('s_mul_i32 s72, s%d, 2560' % WV)
        a('s_add_u32 s72, s72, %d' % ZS)
        self.mad(vPW, R4, 640, 42)
        a('v_add_u32 v%d, s72, v%d' % (vPW, vPW))
        a('v_lshl_add_u32 v43, v%d, 5, s72' % R4)
        a('v_bfe_u32 v44, v0, 2, 2')
        a('v_mad_u32_u24 v43, v44, s83, v43')
        a('v_bfe_u32 v44, v0, 1, 1')
        a('v_lshl_add_u32 v43, v44, 4, v43')
        a('v_and_b32 v44, 1, v0')
        self.mad(vPR, 44, 320, 43)
        a('v_lshrrev_b32 v44, 1, v%d' % P8)
        a('v_lshlrev_b32 v43, 2, v0')
        a('v_add_u32 v43, %d, v43' % ACC)
        a('v_mov_b32 v45, 0')
        a('ds_write_b32 v43, v45')
        if o['kpos'] == 1:
            kloads()
        self.conv_addresses()
        if o['kpos'] == 2:
            kloads()
        a('s_waitcnt lgkmcnt(0)')
        a('s_min_u32 s72, s%d, %d' % (CG, N_CONV - 1))
        a('s_lshl_b32 s72, s72, 3')
        a('s_load_dwordx2 s[68:69], s[%d:%d], s72' % (sD, sD + 1))
        a('s_mul_i32 s%d, s%d, 0x9e3779b1' % (TAG, TAG))
        a('s_add_u32 s%d, s%d, 0x7f4a7c15' % (TAG, TAG))
        a('v_mov_b32 v167, s%d' % TAG)
        self.stamp(14)
        a('s_cmp_ge_u32 s58, 8')
        a('s_cbranch_scc1 L_notile')
        a('s_waitcnt vmcnt(17)')
        for j in range(4):
            for dst, src in ((W + 2 * j, SR + j // 2), (W + 1 + 2 * j, SR + 2 + j // 2)):
                if j % 2 == 0:
                    a('v_lshlrev_b32 v%d, 16, v%d' % (dst, src))
                else:
                    a('v_and_b32 v%d, v%d, v%d' % (dst, vHI, src))
        adv = o['adv']
        if adv == 1:
            self.wave_flag(78, 8)
        else:
            a('s_waitcnt vmcnt(8)')
        for i in range(9):
            self.unpack(KP + 2 * i, KP + 1 + 2 * i, KR + i)
        a('v_mov_b32 v%d, v167' % (OUT + 3))
        a('v_mov_b32 v%d, v167' % (OUT + 7))
        for j in range(4):
            for r in range(6):
                kp = KP + 2 * (r + 3 - j)
                if j == 0:
                    a('v_pk_mul_f32 %s, %s, %s' % (vr(AC + 2 * r, 2), vr(W, 2), vr(kp, 2)))
                else:
                    a('v_pk_fma_f32 %s, %s, %s, %s' % (vr(AC + 2 * r, 2), vr(W + 2 * j, 2), vr(kp, 2), vr(AC + 2 * r, 2)))
        if adv == 2:
            self.wave_flag(78, 2)
        else:
            a('s_waitcnt vmcnt(%d)' % (3 if adv == 1 else 2))
        for i in range(6):
            self.unpack(VP + 2 * i, VP + 1 + 2 * i, VR + i)
        for r in range(6):
            a('v_pk_mul_f32 %s, %s, %s' % (vr(AC + 2 * r, 2), vr(AC + 2 * r, 2), vr(VP + 2 * r, 2)))
        for c in range(2):
            for k in range(3):
                a('v_cvt_pk_bf16_f32 v%d, v%d, v%d' % (OUT + 4 * c + k, AC + 10 - 4 * k + c, AC + 8 - 4 * k + c))
            a('ds_write_b128 v%d, %s offset:%d' % (vPW, vr(OUT + 4 * c, 4), 320 * c))
        a('ds_read_b128 %s, v%d' % (vr(OUT2, 4), vPR))
        a('ds_read_b128 %s, v%d offset:128' % (vr(OUT2 + 4, 4), vPR))
        a('s_waitcnt lgkmcnt(0)')
        a('buffer_store_dwordx4 %s, v%d, %s, s80 offen sc1' % (vr(OUT2, 4), vKVST, srd(sWS)))
        a('buffer_store_dwordx4 %s, v%d, %s, s81 offen sc1' % (vr(OUT2 + 4, 4), vKVST, srd(sWS)))
        if adv == 3:
            self.wave_flag(78, 4)
        self.stamp(1)
        a('s_waitcnt vmcnt(%d)' % (3 if adv else 2))
        a('s_branch L_tiled')
        if o['modearly']:
            a('L_free:')
            a('s_cmp_ge_u32 s72, %d' % N_FREE)
            a('s_cbranch_scc1 L_shadow')
            self.srd_tail((sWM, sC))
            self.mod_loads()
            a('s_branch L_shadow')
        a('L_notile:')
        a('s_cmp_ge_u32 s2, %d' % N_CONV)
        a('s_waitcnt lgkmcnt(0)')
        a('s_cbranch_scc1 L_nonconv')
        a('s_waitcnt vmcnt(0)')
        a('L_tiled:')
        a('s_cmp_ge_u32 s2, %d' % N_CONV)
        a('s_cbranch_scc1 L_nonconv')

    def mod_loads(self):
        a = self.a
        a('v_bfe_u32 v137, v0, 5, 1')
        a('v_and_b32 v130, 31, v0')
        a('v_lshlrev_b32 v130, 2, v130')
        self.mad(133, 137, 32 * 7680, 130)
        a('v_lshlrev_b32 v132, 2, v%d' % C16)
        a('v_lshl_add_u32 v136, v137, 6, v132')
        a('s_sub_u32 s73, s2, %d' % MOD0)
        a('s_lshl_b32 s73, s73, 7')
        a('s_mul_i32 s72, s%d, %d' % (WV, 64 * 7680))
        a('s_add_u32 s72, s72, s73')
        a('s_lshl_b32 s73, s%d, 7' % WV)
        a('buffer_load_dword v138, v136, %s, s73 offen' % srd(sC))
        for i in range(32):
            a('buffer_load_dword v%d, v133, %s, s72 offen' % (96 + i, srd(sWM)))
            if i < 31:
                a('s_add_u32 s72, s72, 7680')

    def wave_flag(self, soff, cnt=0):
        a = self.a
        if self.opt['full']:
            a('s_mov_b32 exec_hi, 0')
        else:
            a('s_mov_b64 exec, 1')
        a('s_waitcnt vmcnt(%d)' % cnt)
        a('buffer_store_dword v167, v%d, %s, s%d offen sc1' % (vL4, srd(sWS), soff))
        a('s_mov_b64 exec, -1')

    def wm_prefetch(self, sub, n=0):
        a = self.a
        a('s_lshr_b32 s82, s2, 3')
        if n:
            a('s_lshl2_add_u32 s82, s%d, s82' % WV)
            a('s_add_u32 s82, s82, %d' % (80 - 4 * n - 28))
        else:
            a('s_lshl1_add_u32 s82, s82, s%d' % WV)
            a('s_add_u32 s82, s82, %d' % (32 - 8 - 2 * sub))
        a('s_mul_i32 s82, s82, %d' % (8 * 7680))
        a('s_and_b32 s83, s2, 7')
        a('s_lshl_b32 s83, s83, 7')
        a('s_add_u32 s82, s82, s83')
        a('v_lshlrev_b32 v165, 10, v%d' % P8)
        self.mad(165, L8, 7680, 165)
        a('buffer_load_dword v163, v165, %s, s82 offen' % srd(sWM))

    def dn_prefetch(self, su):
        a = self.a
        a('s_and_b32 s66, s2, 7')
        a('s_lshr_b32 s67, s2, 3')
        a('s_sub_u32 s67, s67, 16')
        a('s_lshl3_add_u32 s82, s%d, s66' % su)
        a('s_mul_i32 s82, s82, 640')
        a('s_mul_i32 s83, s67, 72')
        a('s_add_u32 s82, s82, s83')
        a('s_add_u32 s66, s66, 48')
        a('s_mul_i32 s66, s66, 320')
        a('s_mul_i32 s83, s67, 36')
        a('s_add_u32 s66, s66, s83')
        a('s_cmp_eq_u32 s%d, 3' % su)
        a('s_cselect_b32 s82, s66, s82')
        a('s_lshl_b32 s82, s82, 7')
        a('v_lshl_add_u32 v165, v%d, 7, s82' % LANE)
        a('buffer_load_dword v163, v165, %s, 0 offen' % srd(sWD))
        a('s_mov_b64 exec, 0xff')
        a('v_add_u32 v165, 8192, v165')
        a('buffer_load_dword v163, v165, %s, 0 offen' % srd(sWD))
        a('s_mov_b64 exec, -1')

    def go_flag(self):
        a = self.a
        a('s_lshl_b32 s82, s%d, 7' % CG)
        a('s_add_u32 s82, s82, %d' % GO)
        a('s_mov_b32 exec_hi, 0')
        a('buffer_store_dword v167, v%d, %s, s82 offen sc1' % (vL4, srd(sWS)))
        a('s_mov_b64 exec, -1')

    def gu_prefetch(self, v=41, st=72):
        a = self.a
        a('s_and_b32 s70, s2, 7')
        a('s_lshr_b32 s71, s2, 3')
        a('v_and_b32 v%d, 3, v0' % v)
        a('v_lshl_add_u32 v%d, v%d, 3, s70' % (v + 1, v))
        a('s_lshr_b32 s%d, s70, 1' % st)
        a('s_add_u32 s%d, s%d, 24' % (st, st))
        a('v_min_u32 v%d, s%d, v%d' % (v + 1, st, v + 1))
        a('v_lshlrev_b32 v%d, 7, v%d' % (v + 1, v + 1))
        a('v_lshrrev_b32 v%d, 2, v%d' % (v, LANE))
        self.mad(v, v, 3456, v + 1)
        a('s_bitcmp1_b32 s75, 0')
        a('s_cselect_b64 s[%d:%d], s[%d:%d], s[%d:%d]' % (sWG, sWG + 1, sWU, sWU + 1, sWG, sWG + 1))
        a('s_lshr_b32 s%d, s75, 1' % st)
        a('s_lshl1_add_u32 s%d, s71, s%d' % (st, st))
        a('s_mul_i32 s%d, s%d, %d' % (st, st, 16 * 3456))
        a('buffer_load_dword v163, v%d, %s, s%d offen' % (v, srd(sWG), st))

    def flag_probe(self, soff, v):
        self.a('s_mov_b64 exec, 0xffff')
        self.a('buffer_load_dword v%d, v%d, %s, s%d offen sc1' % (v, vC128, srd(sWS), soff))
        self.a('s_mov_b64 exec, -1')

    def flag_confirm(self, name, soff, v):
        a = self.a
        a('s_mov_b64 exec, 0xffff')
        l, d = self.spin_head(name)
        a('v_cmp_ne_u32 vcc, s%d, v%d' % (TAG, v))
        a('s_and_b64 exec, vcc, vcc')
        a('s_cbranch_scc0 %s' % d)
        a('buffer_load_dword v%d, v%d, %s, s%d offen sc1' % (v, vC128, srd(sWS), soff))
        a('s_add_u32 s79, s79, 1')
        a('s_cmp_gt_u32 s79, %d' % SPIN)
        a('s_waitcnt vmcnt(0)')
        a('s_cbranch_scc0 %s' % l)
        a('%s:' % d)
        a('s_mov_b64 exec, -1')

    def data_confirm(self, name, loads, r0, r1, count_stamp):
        a = self.a
        l, d = self.spin_head(name)
        a('s_waitcnt vmcnt(0)')
        a('v_cmp_eq_u32 vcc, s82, v%d' % r0)
        a('v_cmp_eq_u32 s[70:71], s82, v%d' % r1)
        a('s_or_b64 exec, vcc, s[70:71]')
        a('s_cbranch_scc0 %s' % d)
        loads()
        a('s_add_u32 s79, s79, 1')
        a('s_cmp_gt_u32 s79, %d' % SPIN)
        a('s_cbranch_scc0 %s' % l)
        a('s_waitcnt vmcnt(0)')
        a('%s:' % d)
        a('s_mov_b64 exec, -1')
        if self.diag is True and count_stamp is not None and not self.opt['hdiag']:
            a('s_mul_i32 s79, s79, 100')
            a('s_add_u32 s%d, s84, s79' % (84 + count_stamp))

    def conv_addresses(self):
        a = self.a
        a('s_mul_i32 s72, s74, %d' % (4 * KPITCH))
        a('v_lshl_add_u32 v%d, v%d, 4, s72' % (vKW, vKI))
        a('s_mul_i32 s72, s%d, 192' % WV)
        a('s_add_u32 s72, s72, %d' % (RV + 4084 - 3840 - 9 * 192))
        a('v_lshrrev_b32 v43, 2, v%d' % LANE)
        a('v_mul_u32_u24 v43, 12, v43')
        a('v_sub_u32 v43, s72, v43')
        a('v_and_b32 v45, 3, v0')
        self.mad(vKVL, 45, RPITCH, 43)
        a('v_and_b32 v45, 1, v0')
        a('s_and_b32 s72, s%d, 3' % WV)
        a('s_mul_i32 s72, s72, 640')
        a('s_add_u32 s72, s72, %d' % ZS)
        a('v_lshl_add_u32 v43, v45, 2, s72')
        a('v_lshl_add_u32 v43, v%d, 3, v43' % L8)
        self.mad(vZG0, 44, 160, 43)
        a('v_add_u32 v%d, 64, v%d' % (vZG1, vZG0))
        self.mad(vZST, L8, 20480, P16)
        a('s_cmp_ge_u32 s%d, 4' % WV)
        a('s_cbranch_scc1 L_nomf')
        for i in range(32):
            a('v_mov_b32 v%d, 0' % (64 + i))
        a('s_mul_i32 s72, s%d, %d' % (WV, RPITCH))
        a('s_add_u32 s76, s72, %d' % (RV + 4096))
        a('v_min_u32 v43, 59, v%d' % LANE)
        a('v_lshl_add_u32 v43, v43, 3, s76')
        a('ds_write_b64 v43, v[64:65]')
        a('s_add_u32 s72, s72, %d' % (RV + 480))
        a('v_lshl_add_u32 v%d, v%d, 4, s72' % (vB, R4))
        a('v_lshlrev_b32 v43, 5, v%d' % C16)
        a('v_sub_u32 v%d, v%d, v43' % (vB, vB))
        a('v_lshl_add_u32 v43, v%d, 3, v%d' % (R4, C16))
        a('v_add_u32 v43, 1, v43')
        a('v_and_b32 v45, 3, v43')
        a('s_mul_i32 s72, s%d, %d' % (WV, 4 * KPITCH))
        a('v_lshl_add_u32 v43, v43, 1, s72')
        self.mad(vA, 45, KPITCH - 2, 43)
        a('s_mul_i32 s72, s%d, 5120' % WV)
        a('s_add_u32 s72, s72, %d' % ZS)
        a('v_lshl_add_u32 v43, v%d, 3, s72' % C16)
        self.mad(vZW, R4, 160, 43)
        a('L_nomf:')
        self.mad(vOST, L8, 1280, P16)

    def row_addresses(self):
        a = self.a
        a('s_lshl_b32 s72, s%d, 7' % WV)
        a('s_add_u32 s72, s72, %d' % QS)
        a('v_lshl_add_u32 v43, v%d, 4, s72' % L8)
        self.mad(vQS, P8, 2 * QPITCH, 43)
        a('v_add_u32 v43, s72, v%d' % P16)
        self.mad(vORD, L8, QPITCH, 43)
        a('v_add_u32 v%d, %d, v%d' % (vST1, ST1, P16))
        a('s_lshl_b32 s72, s%d, 8' % WV)
        a('s_add_u32 s73, s72, %d' % PAR)
        a('v_lshl_add_u32 v%d, v%d, 5, s73' % (vPAR, L8))
        a('s_add_u32 s73, s72, %d' % PS)
        a('v_lshl_add_u32 v%d, v%d, 5, s73' % (vH2, L8))
        a('v_lshl_add_u32 v%d, v%d, 3, s73' % (vBASE, LANE))
        a('v_lshl_add_u32 v%d, v%d, 8, v%d' % (vZLD, L8, P16))
        a('v_mul_u32_u24 v43, 48, v%d' % P8)
        a('v_add_u32 v%d, %d, v43' % (vSRD, ST2))
        a('v_bfe_u32 v43, v0, 4, 1')
        a('v_bfe_u32 v45, v0, 3, 1')
        a('v_lshl_add_u32 v43, v45, 1, v43')
        a('v_min_u32 v43, 2, v43')
        a('v_lshl_add_u32 v43, v43, 4, v%d' % vSRD)
        a('v_bfe_u32 v45, v0, 5, 1')
        a('v_lshl_add_u32 v%d, v45, 3, v43' % vSADD)
        a('s_lshl_b32 s72, s%d, 4' % RW)
        a('s_sub_u32 s72, 2047, s72')
        a('v_lshlrev_b32 v43, 1, v%d' % P8)
        a('v_sub_u32 v%d, s72, v43' % vIDX)

    def kprep(self, rho):
        a = self.a
        d, t = (48, 120) if rho == 0 else (56, 132)
        a('s_lshl_b32 s72, s%d, 16' % (68 + rho))
        a('s_and_b32 s73, s%d, s%d' % (68 + rho, HI))
        a('s_cmp_ge_u32 s%d, 5' % WV)
        a('s_cselect_b32 s72, s73, s72')
        a('v_lshlrev_b32 v40, 16, v%d' % d)
        a('v_add_f32 v40, s72, v40')
        a('v_cvt_pk_bf16_f32 v40, v40, v40')
        a('v_bfi_b32 v40, s%d, v%d, v40' % (HI, d))
        a('v_cndmask_b32 v%d, v%d, v40, s[64:65]' % (d, d))
        a('v_mov_b32_dpp v%d, v%d wave_shl:1 %s' % (d + 5, d + 1, DPP))
        a('v_mov_b32_dpp v%d, v%d wave_shl:1 %s' % (d + 4, d, DPP))
        for i in range(4):
            a('v_alignbit_b32 v%d, v%d, v%d, 16' % (t + i, d + i + 1, d + i))
            a('v_mov_b32 v%d, v%d' % (t + 4 + i, d + i + 1))
            a('v_alignbit_b32 v%d, v%d, v%d, 16' % (t + 8 + i, d + i + 2, d + i + 1))
        a('s_mov_b32 exec_hi, 0xfffff')
        for s, r in enumerate((d, t, t + 4, t + 8)):
            a('ds_write_b128 v%d, %s offset:%d' % (vKW, vr(r, 4), KC + (8 * rho + s) * KPITCH))
        a('s_mov_b32 exec_hi, -1')

    def conv(self):
        a, o = self.a, self.opt
        a('s_mul_i32 s72, s%d, %d' % (CG, KVREG))
        a('s_sub_u32 s73, 9, s%d' % WV)
        a('s_lshl_b32 s73, s73, 10')
        a('s_add_u32 s72, s72, s73')
        a('s_add_u32 s80, s72, %d' % KVX)
        a('s_add_u32 s81, s80, 10240')
        a('s_add_u32 s82, s80, 20480')
        a('s_mov_b64 s[70:71], -1')
        a('s_mov_b64 s[76:77], -1')
        a('s_cmp_eq_u32 s%d, 8' % WV)
        a('s_cselect_b32 s74, 0xffffff, 0')
        a('s_mov_b32 s75, 0')
        a('s_cmp_eq_u32 s%d, 9' % WV)
        a('s_cselect_b64 s[74:75], -1, s[74:75]')
        a('s_mov_b64 s[66:67], s[74:75]')
        a('v_mov_b32 v47, v167')
        a('v_cmp_eq_u32 s[64:65], 2, v%d' % vKI)

        def kvloads():
            l = a.label('no3')
            a('s_mov_b64 exec, s[70:71]')
            a('buffer_load_dwordx4 v[32:35], v%d, %s, s80 offen sc1' % (vL16, srd(sWS)))
            a('s_mov_b64 exec, s[76:77]')
            a('buffer_load_dwordx4 v[36:39], v%d, %s, s81 offen sc1' % (vL16, srd(sWS)))
            a('s_and_b64 exec, s[66:67], s[66:67]')
            a('s_cbranch_scc0 %s' % l)
            a('buffer_load_dwordx4 v[44:47], v%d, %s, s82 offen sc1' % (vL16, srd(sWS)))
            a('%s:' % l)
            a('s_mov_b64 exec, -1')
        self.kprep(0)
        if o['pace'] != 2:
            self.kprep(1)
        if o['pace'] == 3:
            a('s_waitcnt vmcnt(0)')
        a('s_cmp_lt_u32 s%d, %d' % (WV, 8 if o['adv'] else 10))
        a('s_cbranch_scc1 L_paced')
        a('s_mov_b32 exec_hi, 0x7ff')
        l, d = self.spin_head('adv')
        a('buffer_load_dword v30, v31, %s, s78 offen sc1' % srd(sWS))
        self.spin_bound(d)
        a('s_waitcnt vmcnt(0)')
        a('v_cmp_ne_u32 vcc, v167, v30')
        a('s_and_b64 exec, vcc, vcc')
        a('s_cbranch_scc1 %s' % l)
        a('%s:' % d)
        a('s_mov_b64 exec, -1')
        a('L_paced:')
        self.hstamp(13)
        a('s_waitcnt lgkmcnt(0)')
        a('s_barrier')
        self.stamp(2)
        kvloads()
        if o['pace'] == 2:
            self.kprep(1)
            a('s_waitcnt lgkmcnt(0)')
            a('s_barrier')
        A = lambda i: 96 + 4 * i
        B = lambda j: 128 + 4 * j

        def ldA(i, nxt):
            off = 512 * i + (64 if nxt else 0)
            return ['ds_read_b64 %s, v%d offset:%d' % (vr(A(i), 2), vA, off),
                    'ds_read_b64 %s, v%d offset:%d' % (vr(A(i) + 2, 2), vA, off + 8)]

        def ldB(j, nxt):
            return ['ds_read_b128 %s, v%d offset:%d' % (vr(B(j), 4), vB, 512 * (7 - j) + (64 if nxt else 0))]

        a('s_cmp_ge_u32 s%d, 4' % WV)
        a('s_cbranch_scc1 L_noA')
        for i in range(7, 0, -1):
            for l in ldA(i, False):
                a(l)
        a('L_noA:')
        l, d = self.spin_head('kv')
        a('s_waitcnt vmcnt(0)')
        a('v_cmp_ne_u32 s[70:71], v167, v35')
        a('v_cmp_ne_u32 s[76:77], v167, v39')
        a('v_cmp_ne_u32 s[66:67], v167, v47')
        a('s_or_b64 vcc, s[70:71], s[76:77]')
        a('s_or_b64 vcc, vcc, s[66:67]')
        a('s_cbranch_scc0 %s' % d)
        kvloads()
        a('s_add_u32 s79, s79, 1')
        a('s_cmp_gt_u32 s79, %d' % SPIN)
        a('s_cbranch_scc0 %s' % l)
        a('s_waitcnt vmcnt(0)')
        a('%s:' % d)
        if self.diag is True:
            a('s_mul_i32 s79, s79, 100')
            a('s_add_u32 s98, s84, s79')
        self.stamp(4)
        for r, off in ((32, 3840), (36, 1920)):
            for k in range(3):
                a('ds_write_b32 v%d, v%d offset:%d' % (vKVL, r + k, off + 4 * k))
        a('s_and_b64 exec, s[74:75], s[74:75]')
        a('s_cbranch_scc0 L_now3')
        for k in range(3):
            a('ds_write_b32 v%d, v%d offset:%d' % (vKVL, 44 + k, 4 * k))
        if o['wmpf'] == 1:
            a('s_mov_b64 exec, -1')
            self.wm_prefetch(0)
        a('L_now3:')
        a('s_mov_b64 exec, -1')
        a('L_kvdone:')
        a('s_and_b32 s75, s%d, 3' % WV)
        a('s_mul_i32 s72, s75, %d' % (16 * 20480))
        a('s_lshl_b32 s78, s%d, 7' % CG)
        a('s_add_u32 s72, s72, s78')
        a('s_add_u32 s80, s72, %d' % ZX)
        a('s_add_u32 s81, s80, %d' % (8 * 20480))
        a('s_add_u32 s76, s80, %d' % (64 * 20480))
        a('s_add_u32 s77, s81, %d' % (64 * 20480))
        a('v_mov_b32 v30, %d' % ZCNT)
        a('v_mov_b32 v31, 1')
        a('s_mov_b32 s72, 0')
        a('s_cmp_ge_u32 s%d, 4' % WV)
        a('s_waitcnt lgkmcnt(0)')
        a('s_barrier')
        if self.diag or self.amp:
            self.stamp(5)
            a('s_cmp_ge_u32 s%d, 4' % WV)
        a('s_cbranch_scc1 L_helper')
        for j in range(4):
            a(ldB(j, False)[0])
        if o['prio']:
            a('s_setprio 3')
        order = [(7, 0), (6, 0), (5, 0), (4, 0), (6, 1), (5, 1), (4, 1), (5, 2), (4, 2), (4, 3)]
        order += [(i, j) for j in range(4) for i in (3, 2, 1, 0)]
        order += [(3, 4), (2, 4), (2, 5), (1, 4), (1, 5), (1, 6), (0, 4), (0, 5), (0, 6), (0, 7)]
        after = {}
        for slot, kind, idx, nxt in [(1, 'A', 0, 0), (3, 'A', 7, 1), (5, 'A', 6, 1), (7, 'B', 4, 0), (8, 'A', 5, 1), (10, 'A', 4, 1),
                                     (12, 'B', 5, 0), (13, 'B', 6, 0), (14, 'B', 0, 1), (15, 'B', 7, 0), (18, 'B', 1, 1), (22, 'B', 2, 1),
                                     (26, 'B', 3, 1), (27, 'A', 3, 1), (29, 'A', 2, 1), (32, 'A', 1, 1)]:
            for k, l in enumerate((ldA if kind == 'A' else ldB)(idx, nxt)):
                after.setdefault(slot + k, []).append((kind + str(idx), l))
        issued, last, done = 0, {}, 0
        waits, hist = {}, []
        for it in range(4):
            for slot, (i, j) in enumerate(order, 1):
                needed = max(last.get('A%d' % i, 0), last.get('B%d' % j, 0))
                if needed > done:
                    n = min(issued - needed, sum(hist[-8:]))
                    done = issued - n
                    waits.setdefault(it, {})[slot] = n
                hist.append(len(after.get(slot, [])))
                for key, l in after.get(slot, []):
                    issued += 1
                    last[key] = issued
        assert waits[2] == waits[3]
        waits = waits[3]
        a('.p2align 5')
        a('s_nop 0')
        a('s_waitcnt lgkmcnt(0)')
        a('L_mfma:')
        for slot, (i, j) in enumerate(order, 1):
            if slot in waits:
                a('s_waitcnt lgkmcnt(%d)' % waits[slot])
            g = 64 + 4 * (i + j)
            a('v_mfma_f32_16x16x32_bf16 %s, %s, %s, %s' % (vr(g, 4), vr(A(i), 4), vr(B(j), 4), vr(g, 4)))
            for key, l in after.get(slot, []):
                a(l)
            if slot == 34:
                a('v_add_u32 v%d, 64, v%d' % (vA, vA))
                a('v_add_u32 v%d, 64, v%d' % (vB, vB))
            if slot == 35:
                a('s_add_u32 s72, s72, 1')
                a('s_cmp_lt_u32 s72, %d' % (7 if o['peel'] else 8))
        a('s_cbranch_scc1 L_mfma')

        def emit(g):
            r = 64 + 4 * g
            a('v_cvt_pk_bf16_f32 v%d, v%d, v%d' % (44 + 2 * g, r, r + 1))
            a('v_cvt_pk_bf16_f32 v%d, v%d, v%d' % (45 + 2 * g, r + 2, r + 3))
            a('ds_write_b64 v%d, %s offset:%d' % (vZW, vr(44 + 2 * g, 2), 640 * g))
        if o['peel']:
            last = order[:26] + [(0, 4), (1, 4), (0, 5), (2, 4), (1, 5), (0, 6), (3, 4), (2, 5), (1, 6), (0, 7)]
            cur = {1: ldA(0, 0)[:1], 2: ldA(0, 0)[1:], 3: ldB(4, 0), 4: ldB(5, 0), 5: ldB(6, 0), 6: ldB(7, 0)}
            out = {22: 0, 25: 1, 28: 2, 30: 3, 32: 4, 34: 5}
            for slot, (i, j) in enumerate(last, 1):
                if slot == 8:
                    a('s_waitcnt lgkmcnt(6)')
                if slot == 14:
                    a('s_waitcnt lgkmcnt(0)')
                g = 64 + 4 * (i + j)
                a('v_mfma_f32_16x16x32_bf16 %s, %s, %s, %s' % (vr(g, 4), vr(A(i), 4), vr(B(j), 4), vr(g, 4)))
                for l in cur.get(slot, []):
                    a(l)
                if slot in out:
                    emit(out[slot])
            self.stamp(6)
            emit(6)
            emit(7)
        else:
            self.stamp(6)
            for g in range(8):
                emit(g)
        a('s_mov_b64 exec, 1')
        a('ds_add_rtn_u32 v60, v30, v31')
        a('s_mov_b32 s72, 7')
        l, d = self.spin_head('zs')
        a('s_waitcnt lgkmcnt(0)')
        a('v_cmp_eq_u32 vcc, s72, v60')
        a('s_cbranch_vccnz %s' % d)
        a('ds_read_b32 v60, v30')
        a('s_mov_b32 s72, 8')
        a('s_add_u32 s79, s79, 1')
        a('s_cmp_gt_u32 s79, %d' % (SPIN * 16))
        a('s_cbranch_scc0 %s' % l)
        a('%s:' % d)
        a('s_mov_b64 exec, -1')
        self.stamp(7)
        for k, (va, off) in enumerate(((vZG0, 0), (vZG1, 0), (vZG0, 10), (vZG1, 10))):
            a('ds_read2st64_b32 %s, v%d offset0:%d offset1:%d' % (vr(80 + 4 * k, 2), va, off, off + 20))
            a('ds_read2st64_b32 %s, v%d offset0:%d offset1:%d' % (vr(82 + 4 * k, 2), va, off + 40, off + 60))
        for k, sreg in enumerate((80, 81, 76, 77)):
            a('s_waitcnt lgkmcnt(%d)' % (6 - 2 * k))
            a('buffer_store_dwordx4 %s, v%d, %s, s%d offen sc1' % (vr(80 + 4 * k, 4), vZST, srd(sWS), sreg))
        if o['prio']:
            a('s_setprio 0')
        a('L_zjoin:')
        a('s_cmp_ge_u32 s2, %d' % N_ROW)
        a('s_cbranch_scc1 L_end')
        self.row_addresses()
        a('s_lshl_b32 s72, s%d, 11' % WV)
        a('s_mul_i32 s73, s%d, 20480' % RW)
        a('s_add_u32 s72, s72, s73')
        a('s_add_u32 s81, s72, %d' % ZX)
        self.stamp(3)
        a('s_waitcnt lgkmcnt(0)' if o['twob'] else 's_waitcnt vmcnt(0) lgkmcnt(0)')
        a('s_barrier')

    def helper(self):
        a = self.a
        o = self.opt
        a('L_helper:')
        a('s_cmp_lg_u32 s%d, 9' % WV)
        a('s_cbranch_scc1 L_hq')
        self.go_flag()
        a('L_hq:')
        a('s_cmp_ge_u32 s%d, 8' % WV)
        a('s_cbranch_scc1 L_hq1')
        for i in range(4):
            a('v_mov_b32 v%d, %s' % (44 + i, MARK))
        for sreg in (80, 81, 76, 77):
            a('buffer_store_dwordx4 v[44:47], v%d, %s, s%d offen sc1' % (vZST, srd(sWS), sreg))
        a('L_hq1:')
        if o['wrearly']:
            a('v_subrev_u32 v40, 320, v0')
            a('v_lshlrev_b32 v41, 2, v40')
            a('buffer_load_dword v76, v41, %s, 0 offen' % srd(sWR))
        a('v_lshlrev_b32 v48, 4, v%d' % C16)
        self.mad(49, R4, 1280, 48)
        a('v_mov_b32 v50, %s' % OOB)
        a('s_cmp_lt_u32 s2, %d' % N_ROW)
        a('s_cselect_b64 vcc, -1, 0')
        a('s_sub_u32 s74, s%d, 6' % WV)
        a('s_cselect_b64 vcc, 0, vcc')
        a('s_and_b32 s74, s74, 3')
        a('s_lshl2_add_u32 s72, s%d, s74' % RW)
        a('s_mul_i32 s72, s72, 5120')
        a('s_cbranch_vccz L_hq2')
        for i in range(5):
            a('buffer_load_dwordx4 %s, v49, %s, s72 offen offset:%d' % (vr(120 + 4 * i, 4), srd(sQ), 256 * i))
        a('s_cmp_ge_u32 s%d, 8' % WV)
        a('s_cbranch_scc1 L_hmod')
        if o['gupf'] == 5:
            self.gu_prefetch()
        a('s_waitcnt vmcnt(%d)' % (5 + o['wrearly'] + (o['gupf'] == 5)))
        a('s_branch L_hq3')
        a('L_hq2:')
        a('s_cmp_ge_u32 s%d, 8' % WV)
        a('s_cbranch_scc1 L_end')
        if o['gupf'] == 5:
            self.gu_prefetch()
        a('s_waitcnt vmcnt(%d)' % (o['wrearly'] + (o['gupf'] == 5)))
        a('L_hq3:')
        self.hstamp(9)
        a('s_mul_i32 s72, s75, 20480')
        a('s_add_u32 s72, s72, s78')
        a('s_add_u32 s72, s72, %d' % F2)
        a('v_bfe_u32 v40, v0, 5, 1')
        self.mad(40, 40, 4 * 20480 - 128, vL4)
        a('buffer_store_dword v167, v40, %s, s72 offen sc1' % srd(sWS))
        a('s_mov_b64 exec, 1')
        a('ds_add_u32 v30, v31')
        a('s_mov_b64 exec, -1')
        if o['gupf'] == 1:
            self.gu_prefetch()
        if o['gupf'] == 2:
            a('s_cmp_ge_u32 s%d, 6' % WV)
            a('s_cbranch_scc1 L_nogu')
            self.gu_prefetch()
            a('s_add_u32 s72, s72, %d' % (16 * 3456))
            a('buffer_load_dword v163, v41, %s, s72 offen' % srd(sWG))
            a('L_nogu:')
        a('s_cmp_lt_u32 s2, %d' % N_ROW)
        a('s_cbranch_scc1 L_hrow')
        if o['gupf'] in (3, 4):
            self.gu_prefetch()
        if o['dnpf']:
            self.dn_prefetch(75)
        a('s_branch L_end')
        a('L_hrow:')
        a('s_cmp_lg_u32 s%d, 4' % WV)
        a('s_cbranch_scc1 L_hmod')
        a('s_lshr_b32 s72, s%d, 4' % RW)
        a('s_mul_i32 s72, s72, 20480')
        a('s_add_u32 s72, s72, %d' % F2)
        a('s_add_u32 s73, s72, 8192')
        a('s_add_u32 s74, s72, 12288')
        a('v_lshlrev_b32 v40, 7, v%d' % LANE)
        a('s_waitcnt vmcnt(0)')
        l, d = self.spin_head('clr')
        a('s_sleep %d' % o['fsleep'])
        for k in range(3):
            a('buffer_load_dword v%d, v40, %s, s%d offen sc1' % (41 + k, srd(sWS), 72 + k))
        self.spin_bound(d)
        a('s_waitcnt vmcnt(0)')
        a('v_cmp_ne_u32 vcc, s%d, v41' % TAG)
        a('v_cmp_ne_u32 s[70:71], s%d, v42' % TAG)
        a('s_or_b64 s[70:71], s[70:71], vcc')
        a('v_cmp_ne_u32 vcc, s%d, v43' % TAG)
        a('s_or_b64 exec, s[70:71], vcc')
        a('s_cbranch_scc1 %s' % l)
        a('%s:' % d)
        a('s_mov_b64 exec, -1')
        self.stamp(7)
        a('s_branch L_zjoin')
        a('L_hmod:')
        self.hstamp(11)
        a('s_mov_b32 s69, s74')
        a('v_subrev_u32 v40, 320, v0')
        a('v_lshlrev_b32 v41, 2, v40')
        if not o['wrearly']:
            a('buffer_load_dword v76, v41, %s, 0 offen' % srd(sWR))
        a('v_lshlrev_b32 v41, 3, v40')
        a('v_add_u32 v42, %d, v41' % PAR)
        a('s_mov_b32 s72, %d' % MODG)
        a('s_mov_b32 s73, %d' % (MODG + 5120))
        a('s_mov_b32 s74, %d' % (MODG + 10240))

        def modloads():
            for v in range(6):
                a('buffer_load_dwordx2 %s, v41, %s, s%d offen offset:%d sc1' % (vr(64 + 2 * v, 2), srd(sWS), 72 + v // 2, 2560 * (v % 2)))
        a('s_waitcnt vmcnt(0)')
        modloads()
        a('s_cmp_eq_u32 s%d, 5' % WV)
        a('s_cbranch_scc1 L_noqs')
        if o['gupf'] == 3:
            a('s_mov_b32 s75, s69')
            self.gu_prefetch(54, 82)
        a('s_mul_i32 s70, s69, %d' % (4 * QPITCH))
        a('s_add_u32 s70, s70, %d' % QS)
        self.mad(52, R4, QPITCH, 48)
        a('v_add_u32 v52, s70, v52')
        a('s_lshl_b32 s70, s69, 5')
        a('s_add_u32 s70, s70, %d' % ST1)
        a('v_bfe_u32 v43, v0, 5, 1')
        a('v_lshl_add_u32 v43, v43, 4, s70')
        a('v_bfe_u32 v44, v0, 4, 1')
        a('v_lshl_add_u32 v43, v44, 2, v43')
        for i in range(5):
            a('ds_write_b128 v52, %s offset:%d' % (vr(120 + 4 * i, 4), 256 * i))
        for i in range(20):
            self.unpack(50, 51, 120 + i)
            if i == 0:
                a('v_add_f32 v44, v50, v51')
                a('v_mul_f32 v46, v50, v50')
            else:
                a('v_add_f32 v44, v44, v50')
                a('v_fmac_f32 v46, v50, v50')
                a('v_add_f32 v44, v44, v51')
            a('v_fmac_f32 v46, v51, v51')
        self.row_allreduce16([44, 46])
        a('v_mul_f32 v44, 0xbacccccd, v44')
        a('v_mul_f32 v46, 0x3acccccd, v46')
        a('v_fma_f32 v46, -v44, v44, v46')
        a('v_max_f32 v46, 0, v46')
        a('v_add_f32 v46, 0x3727c5ac, v46')
        a('v_rsq_f32 v46, v46')
        a('v_mul_f32 v44, v44, v46')
        a('ds_write2_b32 v43, v46, v44 offset0:0 offset1:2')
        self.stamp(7)
        a('L_noqs:')
        l, d = self.spin_head('mod')
        a('s_waitcnt vmcnt(0)')
        for v in range(6):
            a('v_xor_b32 v%d, s%d, v%d' % (65 + 2 * v, TAG, 65 + 2 * v))
        a('v_or3_b32 v65, v65, v67, v69')
        a('v_or3_b32 v71, v71, v73, v75')
        a('v_or_b32 v65, v65, v71')
        a('v_cmp_ne_u32 vcc, 0, v65')
        a('s_cbranch_vccz %s' % d)
        modloads()
        a('s_add_u32 s79, s79, 1')
        a('s_cmp_gt_u32 s79, %d' % SPIN)
        a('s_cbranch_scc0 %s' % l)
        a('s_waitcnt vmcnt(0)')
        a('%s:' % d)
        self.hstamp(12)
        if o['gupf'] == 4:
            a('s_cmp_eq_u32 s%d, 5' % WV)
            a('s_cbranch_scc1 L_nogu4')
            a('s_mov_b32 s75, s69')
            self.gu_prefetch(54, 82)
            a('L_nogu4:')
        if o['hdiag']:
            a('s_mul_i32 s79, s79, 100')
            a('s_add_u32 s94, s84, s79')
        for v in range(7):
            self.unpack(80 + 2 * v, 81 + 2 * v, 64 + 2 * v)
        for r in (82, 83, 88, 89):
            a('v_add_f32 v%d, 1.0, v%d' % (r, r))
            a('v_cvt_pk_bf16_f32 v%d, 0, v%d' % (r, r))
        for k in range(2):
            a('v_mul_f32 v%d, v%d, v%d' % (82 + k, 82 + k, 84 + k))
            a('v_mul_f32 v%d, v%d, v%d' % (80 + k, 80 + k, 84 + k))
            a('v_mul_f32 v%d, v%d, v%d' % (94 + k, 86 + k, 92 + k))
            a('v_mul_f32 v%d, v%d, v%d' % (92 + k, 88 + k, 92 + k))
        for v, r in enumerate((82, 80, 88, 86, 90, 92)):
            a('ds_write_b64 v42, %s offset:%d' % (vr(r, 2), 2560 * v))
        a('v_add_f32 v44, v92, v93')
        a('v_add_f32 v46, v94, v95')
        self.row_allreduce16([44, 46])
        a('v_cvt_f64_f32 v[44:45], v44')
        a('v_cvt_f64_f32 v[46:47], v46')
        a('v_mov_b32 v42, %d' % CS)
        a('s_mov_b32 exec_lo, 0x00010001')
        a('s_mov_b32 exec_hi, 0x00010001')
        a('ds_add_f64 v42, v[44:45]')
        a('ds_add_f64 v42, v[46:47] offset:8')
        a('s_mov_b64 exec, -1')
        self.stamp(6)
        a('s_branch L_zjoin')

    def rows(self):
        a, o = self.a, self.opt
        Q, P, Z = 96, 112, 136
        sel = lambda s: 'op_sel:[0,%d,%d] op_sel_hi:[1,%d,%d]' % (s, s, s, s)

        def zloads():
            a('buffer_load_dwordx4 v[128:131], v%d, %s, s81 offen sc1' % (vZLD, srd(sWS)))
            a('buffer_load_dwordx4 v[132:135], v%d, %s, s81 offen offset:128 sc1' % (vZLD, srd(sWS)))
        if not o['twob']:
            self.stamp(8)
            zloads()
        a('ds_read_b128 v[32:35], v%d' % vQS)
        a('ds_read_b128 v[36:39], v%d offset:%d' % (vQS, QPITCH))
        a('ds_read_b128 v[40:43], v%d' % vST1)
        par = (136, 144, 44, 52, 60, 68)

        def parload(v):
            a('ds_read_b128 %s, v%d offset:%d' % (vr(par[v], 4), vPAR, 2560 * v))
            a('ds_read_b128 %s, v%d offset:%d' % (vr(par[v] + 4, 4), vPAR, 2560 * v + 16))
        for v in (0, 1):
            parload(v)
        A1, A2, B1, B2, G, W = par
        a('v_mov_b32 v30, %d' % CS)
        a('ds_read_b128 v[76:79], v30')
        a('s_lshl_b32 s72, s%d, 7' % WV)
        a('s_add_u32 s76, s72, s73')
        a('s_add_u32 s77, s76, 10240')
        a('s_mul_i32 s73, s%d, 1280' % RW)
        a('s_add_u32 s73, s73, s72')
        a('s_lshl_b32 s73, s73, 1')
        a('s_add_u32 s74, s73, %d' % H2G)
        a('s_lshl_b32 s73, s73, 1')
        a('s_add_u32 s75, s73, %d' % BASEG)
        a('s_mul_i32 s73, s%d, %d' % (RW, o['kstride']))
        a('s_add_u32 s78, s73, %d' % (KEYR if o['krep'] else KEYS))
        a('v_lshlrev_b32 v85, 15, v%d' % C16)
        a('s_mov_b32 s82, %s' % MARK)
        a('s_mov_b32 s64, 0x3acccccd')
        a('s_mov_b32 s65, 0x3acccccd')
        a('s_mov_b32 s68, 0xfffff800')
        a('s_mov_b32 s69, 0x3727c5ac')
        a('s_waitcnt lgkmcnt(5)')
        for c in range(8):
            for rho in range(2):
                src = 32 + 4 * rho + c // 2
                if c % 2 == 0:
                    a('v_lshlrev_b32 v%d, 16, v%d' % (Q + 2 * c + rho, src))
                else:
                    a('v_and_b32 v%d, v%d, v%d' % (Q + 2 * c + rho, vHI, src))
        for c in range(8):
            a('v_pk_fma_f32 %s, %s, v[40:41], v[42:43]' % (vr(P + 2 * c, 2), vr(Q + 2 * c, 2)))
        a('s_waitcnt lgkmcnt(0)')
        for c in range(8):
            e = c & ~1
            a('v_pk_fma_f32 %s, %s, %s, %s %s' % (vr(P + 2 * c, 2), vr(P + 2 * c, 2), vr(A1 + e, 2), vr(A2 + e, 2), sel(c & 1)))
        a('v_subrev_u32 v31, 1, v%d' % vIDX)
        a('v_cvt_f32_f64 v76, v[76:77]')
        a('v_cvt_f32_f64 v77, v[78:79]')
        a('v_mov_b32 v89, v167')
        a('v_mov_b32 v91, v167')
        a('v_lshlrev_b32 v84, 4, v%d' % L8)
        a('v_sub_u32 v84, v%d, v84' % vH2)
        if o['twob']:
            a('s_waitcnt vmcnt(0)')
            a('s_barrier')
            self.stamp(8)
            zloads()
        for v in (5, 2, 3, 4):
            parload(v)
        self.data_confirm('z', zloads, 128, 132, 10)
        self.stamp(9)
        a('s_waitcnt lgkmcnt(0)')
        S1, S2, S3 = 152, 154, 156
        for h in range(2):
            for c in range(4 * h, 4 * h + 4):
                self.unpack(Z + 2 * c, Z + 2 * c + 1, 128 + c)
            for c in range(4 * h, 4 * h + 4):
                a('v_pk_fma_f32 %s, %s, %s, %s' % (vr(Q + 2 * c, 2), vr(P + 2 * c, 2), vr(Z + 2 * c, 2), vr(Q + 2 * c, 2)))
            for c in range(4 * h, 4 * h + 4):
                x = vr(Q + 2 * c, 2)
                s, e = c & 1, c & ~1
                if c == 0:
                    a('v_pk_mul_f32 %s, %s, %s' % (vr(S2, 2), x, x))
                    a('v_pk_mul_f32 %s, %s, %s op_sel:[0,0] op_sel_hi:[1,0]' % (vr(S3, 2), x, vr(W, 2)))
                else:
                    a('v_pk_add_f32 %s, %s, %s' % (vr(S1, 2), vr(Q, 2) if c == 1 else vr(S1, 2), x))
                    a('v_pk_fma_f32 %s, %s, %s, %s' % (vr(S2, 2), x, x, vr(S2, 2)))
                    a('v_pk_fma_f32 %s, %s, %s, %s op_sel:[0,%d,0] op_sel_hi:[1,%d,1]' % (vr(S3, 2), x, vr(W + e, 2), vr(S3, 2), s, s))
        for s in (S1, S2, S3):
            a('v_permlane32_swap_b32 v%d, v%d' % (s, s + 1))
        for s in (S1, S2, S3):
            a('v_add_f32 v%d, v%d, v%d' % (s, s, s + 1))
        a('v_permlane16_swap_b32 v%d, v%d' % (S1, S2))
        a('v_add_f32_dpp v%d, v%d, v%d row_ror:8 row_mask:0xf bank_mask:0xc' % (S3, S3, S3))
        a('v_add_f32 v%d, v%d, v%d' % (S1, S1, S2))
        a('v_add_f32_dpp v%d, v%d, v%d row_ror:8 row_mask:0xf bank_mask:0x3' % (S3, S1, S1))
        a('v_cvt_f64_f32 %s, v%d' % (vr(S1, 2), S3))
        a('ds_add_f64 v%d, %s' % (vSADD, vr(S1, 2)))
        if o['keyprio']:
            a('s_cmp_lg_u32 s%d, 2' % WV)
            a('s_cbranch_scc1 L_noprio')
            a('s_setprio 3')
            a('L_noprio:')
        a('s_waitcnt lgkmcnt(0)')
        a('s_barrier')
        a('ds_read_b128 v[128:131], v%d' % vSRD)
        a('ds_read_b128 v[132:135], v%d offset:16' % vSRD)
        a('ds_read_b128 v[152:155], v%d offset:32' % vSRD)
        a('s_waitcnt lgkmcnt(1)')
        for i in range(4):
            a('v_cvt_f32_f64 v%d, %s' % (32 + i, vr(128 + 2 * i, 2)))
        a('v_pk_mul_f32 v[32:33], v[32:33], s[64:65]')
        a('v_pk_mul_f32 v[34:35], v[34:35], s[64:65]')
        a('v_pk_fma_f32 v[34:35], v[32:33], v[32:33], v[34:35] neg_lo:[1,0,0] neg_hi:[1,0,0]')
        a('v_max_f32 v34, 0, v34')
        a('v_max_f32 v35, 0, v35')
        a('v_add_f32 v34, s69, v34')
        a('v_add_f32 v35, s69, v35')
        a('v_rsq_f32 v34, v34')
        a('v_rsq_f32 v35, v35')
        a('s_waitcnt lgkmcnt(0)')
        a('v_cvt_f32_f64 v36, v[152:153]')
        a('v_cvt_f32_f64 v37, v[154:155]')
        a('v_pk_fma_f32 v[36:37], v[32:33], v[76:77], v[36:37] op_sel_hi:[1,0,1] neg_lo:[1,0,0] neg_hi:[1,0,0]')
        a('v_pk_fma_f32 v[36:37], v[36:37], v[34:35], v[76:77] op_sel:[0,0,1] op_sel_hi:[1,1,1]')
        for r, t in ((36, 38), (37, 39)):
            a('v_ashrrev_i32 v%d, 31, v%d' % (t, r))
        for r, t in ((36, 38), (37, 39)):
            a('v_or_b32 v%d, 0x80000000, v%d' % (t, t))
        for r, t in ((36, 38), (37, 39)):
            a('v_xor_b32 v%d, v%d, v%d' % (r, r, t))
        for r, ix in ((36, vIDX), (37, 31)):
            a('v_and_or_b32 v%d, v%d, s68, v%d' % (r, r, ix))
        a('v_max_u32 v166, v36, v37')
        a('v_max_u32_dpp v166, v166, v166 quad_perm:[1,0,3,2] %s' % DPP)
        a('v_max_u32_dpp v166, v166, v166 quad_perm:[2,3,0,1] %s' % DPP)
        a('v_max_u32_dpp v166, v166, v166 row_half_mirror %s' % DPP)
        a('s_cmp_lg_u32 s%d, 2' % WV)
        a('s_cbranch_scc1 L_nokey')
        a('s_mov_b64 exec, %d' % (0xff if o['krep'] else 1))
        a('buffer_store_dwordx2 v[166:167], v85, %s, s78 offen sc1' % srd(sWS))
        a('s_mov_b64 exec, -1')
        a('L_nokey:')
        self.stamp(11)
        a('v_readfirstlane_b32 s72, v166')
        a('v_pk_mul_f32 v[32:33], v[32:33], v[34:35] neg_lo:[1,0] neg_hi:[1,0]')
        for c in range(8):
            a('v_pk_fma_f32 %s, %s, v[34:35], v[32:33]' % (vr(Z + 2 * c, 2), vr(Q + 2 * c, 2)))
        for c in range(8):
            e = c & ~1
            a('v_pk_fma_f32 %s, %s, %s, %s %s' % (vr(Z + 2 * c, 2), vr(Z + 2 * c, 2), vr(B1 + e, 2), vr(B2 + e, 2), sel(c & 1)))
        a('s_not_b32 s72, s72')
        a('s_bfe_u32 s73, s72, 0x30001')
        a('s_mov_b32 s70, 0x01010101')
        a('s_mov_b32 s71, 0x01010101')
        a('s_lshl_b64 s[70:71], s[70:71], s73')
        a('s_bitcmp1_b32 s72, 0')
        a('s_cbranch_scc1 L_h2odd')
        for k in range(4):
            a('v_cvt_pk_bf16_f32 v%d, v%d, v%d' % (80 + k, Z + 4 * k, Z + 4 * k + 2))
        a('s_branch L_h2st')
        a('L_h2odd:')
        for k in range(4):
            a('v_cvt_pk_bf16_f32 v%d, v%d, v%d' % (80 + k, Z + 4 * k + 1, Z + 4 * k + 3))
        a('L_h2st:')
        a('s_mov_b64 exec, s[70:71]')
        a('ds_write_b128 v84, v[80:83]')
        a('s_mov_b64 exec, 0xffff')
        a('ds_read_b32 v88, v%d' % vBASE)
        a('ds_read_b32 v90, v%d offset:4' % vBASE)
        a('s_waitcnt lgkmcnt(0)')
        a('buffer_store_dwordx4 v[88:91], v%d, %s, s74 offen sc1' % (vL16, srd(sWS)))
        a('s_mov_b64 exec, -1')
        self.stamp(12)
        if o['h2bar']:
            a('s_barrier')
        for c in range(8):
            e, s = c & ~1, c & 1
            a('v_pk_fma_f32 %s, %s, %s, %s op_sel:[0,%d,0] op_sel_hi:[1,%d,1]' % (vr(P + 2 * c, 2), vr(Z + 2 * c, 2), vr(G + e, 2), vr(Q + 2 * c, 2), s, s))
        for rho in range(2):
            for k in range(4):
                a('v_cvt_pk_bf16_f32 v%d, v%d, v%d' % (32 + 4 * rho + k, P + 4 * k + rho, P + 4 * k + 2 + rho))
        a('ds_write_b128 v%d, v[32:35]' % vQS)
        a('ds_write_b128 v%d, v[36:39] offset:%d' % (vQS, QPITCH))
        a('ds_read_b128 v[128:131], v%d' % vORD)
        a('ds_read_b128 v[132:135], v%d offset:%d' % (vORD, 8 * QPITCH))
        if o['h2wait']:
            a('s_waitcnt vmcnt(0)')
        a('s_waitcnt lgkmcnt(1)')
        a('buffer_store_dwordx4 v[128:131], v%d, %s, s76 offen sc1' % (vOST, srd(sO)))
        a('s_waitcnt lgkmcnt(0)')
        a('buffer_store_dwordx4 v[132:135], v%d, %s, s77 offen sc1' % (vOST, srd(sO)))
        a('s_mov_b64 exec, s[70:71]')
        a('s_bitcmp1_b32 s72, 0')
        a('s_cbranch_scc1 L_bodd')
        for k in range(4):
            a('ds_write2_b32 v%d, v%d, v%d offset0:%d offset1:%d' % (vH2, P + 4 * k, P + 4 * k + 2, 2 * k, 2 * k + 1))
        a('s_branch L_bst')
        a('L_bodd:')
        for k in range(4):
            a('ds_write2_b32 v%d, v%d, v%d offset0:%d offset1:%d' % (vH2, P + 4 * k + 1, P + 4 * k + 3, 2 * k, 2 * k + 1))
        a('L_bst:')
        a('s_mov_b32 exec_lo, -1')
        a('s_mov_b32 exec_hi, 0')
        a('ds_read_b32 v88, v%d' % vBASE)
        a('ds_read_b32 v90, v%d offset:4' % vBASE)
        a('s_waitcnt vmcnt(0) lgkmcnt(0)')
        a('buffer_store_dwordx4 v[88:91], v%d, %s, s75 offen sc1' % (vL16, srd(sWS)))
        a('s_mov_b64 exec, -1')
        self.stamp(13)
        a('s_branch L_end')

    def nonconv(self):
        a = self.a
        MR, MP, GR, DR, GP, DP = 96, 60, 76, 108, 44, 12
        vGUA, vGUR, vXS, vKM = 154, 155, 160, 161
        a('L_nonconv:')
        a('s_mov_b32 s64, 0x05040100')
        a('s_mov_b32 s65, 0x07060302')
        a('v_lshlrev_b32 v131, 3, v%d' % C16)
        a('v_lshlrev_b32 v132, 2, v%d' % C16)
        a('v_mov_b32 v157, v167')
        a('v_mov_b32 v159, v167')
        a('v_bfe_u32 v137, v0, 5, 1')
        a('v_and_b32 v130, 31, v0')
        a('v_lshlrev_b32 v130, 2, v130')
        self.mad(134, R4, 32 * 3456, 132)
        self.mad(135, 137, 16 * 1280, 130)
        a('v_lshl_add_u32 v136, v137, 6, v132')
        a('s_sub_u32 s70, s2, %d' % MOD0)
        a('s_max_u32 s68, s2, %d' % MLP0)
        a('s_sub_u32 s68, s68, %d' % MLP0)
        a('s_and_b32 s73, s68, 7')
        a('s_bfe_u32 s74, s68, 0x10003')
        a('s_lshl_b32 s73, s73, 1')
        a('s_add_u32 s73, s73, s74')
        a('s_and_b32 s74, s68, 0x30')
        a('s_add_u32 s73, s73, s74')
        a('s_cmp_lt_u32 s68, 48')
        a('s_cselect_b32 s68, s73, s68')
        a('s_sub_u32 s69, 9, s%d' % WV)
        a('s_bitcmp1_b32 s68, %d' % (0 if self.opt['rev'] else 8))
        a('s_cselect_b32 s69, s69, s%d' % WV)
        a('s_bitcmp1_b32 s69, 0')
        a('s_cselect_b64 s[%d:%d], s[%d:%d], s[%d:%d]' % (sWG, sWG + 1, sWU, sWU + 1, sWG, sWG + 1))
        a('s_lshr_b32 s71, s69, 1')
        a('s_mul_i32 s74, s71, %d' % (128 * 3456))
        a('s_lshl_b32 s73, s68, 6')
        a('s_add_u32 s74, s74, s73')
        a('s_mul_i32 s76, s68, %d' % (32 * 1280))
        a('s_lshl_b32 s73, s%d, 7' % WV)
        a('s_add_u32 s76, s76, s73')
        a('s_and_b32 s82, s69, 1')
        a('s_lshl_b32 s82, s82, 3')
        a('s_add_u32 s82, s82, %d' % GU)
        a('v_lshl_add_u32 v129, v%d, 5, s82' % C16)
        a('v_lshl_add_u32 v%d, v137, 4, v129' % vGUA)
        a('v_lshlrev_b32 v129, 2, v136')
        a('v_add_u32 v%d, %d, v129' % (vGUR, GU))
        a('s_lshl_b32 s82, s71, 9')
        a('s_add_u32 s82, s82, %d' % H2G)
        a('v_lshl_add_u32 v129, v%d, 7, v%d' % (R4, P16))
        a('v_add_u32 v%d, s82, v129' % vXS)
        a('s_mul_i32 s82, s68, 5120')
        a('s_lshl_b32 s73, s%d, 9' % WV)
        a('s_add_u32 s82, s82, s73')
        a('s_add_u32 s81, s82, %d' % PART)
        a('v_and_b32 v129, 3, v0')
        a('v_lshlrev_b32 v129, 2, v129')
        a('v_add_u32 v%d, %d, v129' % (vKM, KEYMAX))
        if self.opt['wmpf']:
            a('s_cmp_lt_u32 s2, 224')
            a('s_cbranch_scc1 L_nowm')
            a('s_barrier')
            if self.opt['wmpf'] == 3:
                n = self.opt['wmn']
                a('s_cmp_ge_u32 s%d, %d' % (WV, n))
                a('s_cbranch_scc1 L_nowm')
                self.wm_prefetch(None, n)
            else:
                a('s_cmp_lt_u32 s%d, 8' % WV)
                a('s_cbranch_scc1 L_nowm')
                self.wm_prefetch(8)
            a('L_nowm:')
        a('s_cmp_ge_u32 s2, %d' % (MLP0 + N_MLP))
        a('s_cbranch_scc1 L_end')
        def gowait():
            a('s_cmp_lg_u32 s%d, 1' % WV)
            a('s_cbranch_scc1 L_bggo')
            a('s_and_b32 s80, s2, 7')
            a('s_mul_i32 s80, s80, 2560')
            a('s_add_u32 s80, s80, %d' % GO)
            self.poll16('bg', 80, 148, sleep=self.opt['gsleep'])
            a('L_bggo:')
        if self.opt['bg'] == 1:
            gowait()
        a('s_barrier')
        a('s_cmp_ge_u32 s2, %d' % (MOD0 + N_MOD))
        a('s_cbranch_scc1 L_mlp')
        if self.opt['modearly']:
            a('s_cmp_lt_u32 s2, %d' % (FREE0 + N_FREE))
            a('s_cbranch_scc1 L_modgo')
        self.mod_loads()
        a('L_modgo:')
        a('s_waitcnt vmcnt(32)')
        self.unpack(139, 138, 138)
        self.silu(139, 140)
        self.silu(138, 141)
        a('v_cvt_pk_bf16_f32 v138, v139, v138')
        for i in range(4):
            a('v_mov_b32 v%d, 0' % (140 + i))
        a('v_lshl_add_u32 v129, v130, 2, %d' % 0)
        a('v_lshl_add_u32 v129, v137, 3, v129')
        a('v_add_u32 v129, %d, v129' % MODACC)
        for t in range(16):
            a('s_waitcnt vmcnt(%d)' % (30 - 2 * t))
            self.pair_rows(MP + 2 * t, MR + 2 * t, MR + 1 + 2 * t)
            if t % 2 == 1:
                for u in (t - 1, t):
                    for c in range(2):
                        a('v_dot2c_f32_bf16_dpp v%d, v138, v%d row_newbcast:%d %s' % (140 + 2 * (u & 1) + c, MP + 2 * u + c, u, DPP))
        a('v_pk_add_f32 v[140:141], v[140:141], v[142:143]')
        a('v_permlane32_swap_b32 v140, v141')
        a('v_add_f32 v140, v140, v141')
        a('v_cvt_f64_f32 v[140:141], v140')
        a('ds_add_f64 v129, v[140:141]')
        a('v_lshlrev_b32 v129, 5, v%d' % C16)
        a('v_add_u32 v129, %d, v129' % MODACC)
        a('s_lshl_b32 s72, s70, 8')
        a('s_add_u32 s72, s72, %d' % MODG)
        a('s_cmp_lg_u32 s%d, 0' % WV)
        a('s_waitcnt lgkmcnt(0)')
        a('s_barrier')
        a('s_cbranch_scc1 L_modpub')
        a('s_mov_b64 exec, 0xffff')
        a('ds_read_b128 v[140:143], v129')
        a('ds_read_b128 v[144:147], v129 offset:16')
        a('s_waitcnt lgkmcnt(0)')
        for k in range(4):
            a('v_cvt_f32_f64 v%d, %s' % (140 + 2 * k, vr(140 + 2 * k, 2)))
        a('v_cvt_pk_bf16_f32 v156, v140, v142')
        a('v_cvt_pk_bf16_f32 v158, v144, v146')
        a('buffer_store_dwordx4 v[156:159], v%d, %s, s72 offen sc1' % (vL16, srd(sWS)))
        a('s_mov_b64 exec, -1')
        a('L_modpub:')
        self.stamp(3)
        if self.opt['dnpf']:
            a('s_cmp_ge_u32 s2, %d' % MLP0)
            a('s_cbranch_scc1 L_mlp')
            a('s_barrier')
            a('s_sub_u32 s75, s%d, 6' % WV)
            a('s_cbranch_scc1 L_nodn')
            self.dn_prefetch(75)
            a('L_nodn:')
        a('s_cmp_lt_u32 s2, %d' % (RED0 + N_RED))
        a('s_cbranch_scc1 L_keys')
        a('s_cmp_lt_u32 s2, %d' % MLP0)
        a('s_cbranch_scc1 L_end')
        a('L_mlp:')
        if self.opt['bg'] == 2:
            gowait()
        a('s_barrier')
        for t in range(16):
            a('buffer_load_dword v%d, v134, %s, s74 offen' % (GR + 2 * t, srd(sWG)))
            a('buffer_load_dword v%d, v134, %s, s74 offen offset:3456' % (GR + 1 + 2 * t, srd(sWG)))
            if t < 15:
                a('s_add_u32 s74, s74, 6912')
        if self.opt['dnpf']:
            a('s_barrier')
        for i in range(16):
            a('buffer_load_dword v%d, v135, %s, s76 offen offset:%d' % (DR + i, srd(sWD), 1280 * (i % 4)))
            if i % 4 == 3:
                a('s_add_u32 s76, s76, 5120')
        a('s_waitcnt vmcnt(0)')
        for t in range(16):
            self.pair_rows(GP + 2 * t, GR + 2 * t, GR + 1 + 2 * t)
        for t in range(8):
            self.pair_rows(DP + 2 * t, DR + 2 * t, DR + 1 + 2 * t)
        for i in range(8):
            a('v_mov_b32 v%d, 0' % (140 + i))
        self.stamp(4)
        a('L_keys:')
        a('v_mov_b32 v129, %d' % KEYMAX)
        a('s_cmp_ge_u32 s%d, 8' % WV)
        a('s_cbranch_scc1 L_keyjoin')
        a('s_mul_i32 s72, s%d, %d' % (WV, 16 * self.opt['kstride']))
        a('s_add_u32 s72, s72, %d' % (KEYR if self.opt['krep'] else KEYS))
        if self.opt['krep']:
            a('s_and_b32 s73, s2, 7')
            a('s_lshl_b32 s73, s73, 15')
            a('s_add_u32 s72, s72, s73')
        a('v_mul_u32_u24 v%d, %d, v%d' % (vC128, self.opt['kstride'], C16))
        self.poll16('keys', 72, 148, width=2, sleep=self.opt['ksleep'])
        a('ds_max_u32 v%d, v%d' % (vKM, 148 + 2 * self.opt['depth']))
        a('s_mov_b64 exec, -1')
        a('s_waitcnt lgkmcnt(0)')
        a('L_keyjoin:')
        a('s_barrier')
        a('ds_read_b128 v[132:135], v129')
        a('s_waitcnt lgkmcnt(0)')
        a('v_max3_u32 v132, v132, v133, v134')
        a('v_max_u32 v132, v132, v135')
        a('v_readfirstlane_b32 s74, v132')
        a('s_not_b32 s75, s74')
        a('s_bfe_u32 s76, s75, 0x70004')
        self.stamp(5)
        a('s_cmp_lt_u32 s2, %d' % MLP0)
        a('s_cbranch_scc1 L_red')
        a('s_mul_i32 s77, s76, 2560')
        a('s_mov_b32 exec_lo, 0x00ff00ff')
        a('s_mov_b32 exec_hi, 0x00ff00ff')
        l, d = self.spin_head('xsel')
        a('buffer_load_dwordx4 v[136:139], v%d, %s, s77 offen sc1' % (vXS, srd(sWS)))
        self.spin_bound(d)
        a('s_waitcnt vmcnt(0)')
        a('v_cmp_ne_u32 vcc, s%d, v139' % TAG)
        a('s_cbranch_vccnz %s' % l)
        a('%s:' % d)
        a('s_mov_b64 exec, -1')
        a('s_waitcnt vmcnt(0)')
        self.stamp(6)
        for t in range(16):
            for c in range(2):
                a('v_dot2c_f32_bf16_dpp v%d, v%d, v%d row_newbcast:%d %s' % (140 + 2 * (t & 1) + c, 136 + 2 * (t & 1), GP + 2 * t + c, t >> 1, DPP))
        a('v_pk_add_f32 v[140:141], v[140:141], v[142:143]')
        a('v_permlane32_swap_b32 v140, v141')
        a('v_add_f32 v140, v140, v141')
        a('v_cvt_f64_f32 v[140:141], v140')
        a('ds_add_f64 v%d, v[140:141]' % vGUA)
        a('s_waitcnt lgkmcnt(0)')
        self.stamp(9)
        a('s_barrier')
        self.stamp(10)
        a('ds_read_b128 v[132:135], v%d' % vGUR)
        a('s_waitcnt lgkmcnt(0)')
        a('v_cvt_f32_f64 v138, v[132:133]')
        a('v_cvt_f32_f64 v139, v[134:135]')
        a('v_mul_f32 v137, 0xbfb8aa3b, v138')
        a('v_exp_f32 v137, v137')
        a('v_mul_f32 v138, v138, v139')
        a('v_add_f32 v137, 1.0, v137')
        a('v_rcp_f32 v137, v137')
        a('v_mul_f32 v138, v138, v137')
        a('v_mov_b32_dpp v139, v138 quad_perm:[1,0,3,2] %s' % DPP)
        a('v_cvt_pk_bf16_f32 v138, v138, v139')
        for t in range(8):
            for c in range(2):
                a('v_dot2c_f32_bf16_dpp v%d, v138, v%d row_newbcast:%d %s' % (144 + 2 * (t & 1) + c, DP + 2 * t + c, 2 * t, DPP))
        a('v_pk_add_f32 v[144:145], v[144:145], v[146:147]')
        a('v_permlane32_swap_b32 v144, v145')
        a('v_add_f32 v156, v144, v145')
        a('v_permlane32_swap_b32 v156, v158')
        a('s_mov_b32 exec_hi, 0')
        self.stamp(11)
        a('buffer_store_dwordx4 v[156:159], v%d, %s, s81 offen sc1' % (vL16, srd(sWS)))
        self.stamp(7)
        a('s_branch L_end')
        a('L_red:')
        a('s_cmp_ge_u32 s%d, 7' % WV)
        a('s_cbranch_scc1 L_fin')
        a('s_lshl_b32 s72, s%d, 3' % WV)
        a('v_add_u32 v12, s72, v%d' % R4)
        a('v_add_u32 v13, 4, v12')
        a('v_cmp_gt_u32 s[66:67], %d, v13' % N_MLP)
        a('s_lshl_b32 s72, s70, 8')
        a('s_add_u32 s72, s72, %d' % PART)
        a('v_lshlrev_b32 v14, 4, v%d' % C16)
        self.mad(12, 12, 5120, 14)
        self.mad(13, 13, 5120, 14)
        a('v_bfe_u32 v15, v0, 5, 1')
        a('v_lshl_add_u32 v14, v15, 3, v14')
        a('v_add_u32 v14, %d, v14' % RED)
        a('v_mov_b32 v20, 0')
        a('v_mov_b32 v21, v167')
        a('v_mov_b32 v22, 0')
        a('v_mov_b32 v23, v167')
        a('s_mov_b64 s[68:69], -1')
        l, d = self.spin_head('part')
        a('s_mov_b64 exec, s[68:69]')
        a('buffer_load_dwordx4 v[16:19], v12, %s, s72 offen sc1' % srd(sWS))
        a('s_mov_b64 exec, s[66:67]')
        a('buffer_load_dwordx4 v[20:23], v13, %s, s72 offen sc1' % srd(sWS))
        a('s_mov_b64 exec, -1')
        self.spin_bound(d)
        a('s_waitcnt vmcnt(0)')
        a('v_cmp_ne_u32 s[68:69], v167, v19')
        a('v_cmp_ne_u32 s[66:67], v167, v23')
        a('s_or_b64 vcc, s[66:67], s[68:69]')
        a('s_cbranch_scc1 %s' % l)
        a('%s:' % d)
        a('s_waitcnt vmcnt(0)')
        self.stamp(6)
        a('v_add_f32 v16, v16, v20')
        a('v_add_f32 v18, v18, v22')
        a('v_permlane32_swap_b32 v16, v18')
        a('v_add_f32 v16, v16, v18')
        a('v_cvt_f64_f32 v[16:17], v16')
        a('ds_add_f64 v14, v[16:17]')
        a('s_waitcnt lgkmcnt(0)')
        a('L_redbar:')
        a('s_barrier')
        a('s_branch L_end')
        a('L_fin:')
        a('s_cmp_lg_u32 s%d, 9' % WV)
        a('s_cbranch_scc1 L_redbar')
        a('s_mul_i32 s72, s76, 5120')
        a('s_lshl_b32 s73, s70, 8')
        a('s_add_u32 s72, s72, s73')
        a('s_add_u32 s80, s72, %d' % BASEG)
        a('s_lshl_b32 s73, s70, 7')
        a('s_add_u32 s81, s73, %d' % (MODG + 5 * 2560))
        a('v_add_u32 v14, %d, v%d' % (RED, vL16))
        a('s_and_b32 s75, s75, 0x7ff')
        a('s_mul_i32 s72, s75, 1280')
        a('s_lshl_b32 s73, s70, 6')
        a('s_add_u32 s82, s72, s73')
        a('v_lshlrev_b32 v15, 2, v%d' % C16)
        a('s_and_b32 s72, s74, 0xfffff800')
        a('s_or_b32 s72, s72, 0x400')
        a('s_not_b32 s73, s72')
        a('s_xor_b32 s77, s72, 0x80000000')
        a('s_bitcmp1_b32 s72, 31')
        a('s_cselect_b32 s72, s77, s73')
        a('v_mov_b32 v24, s72')
        a('v_mul_f32 v24, 0xbfb8aa3b, v24')
        a('v_exp_f32 v24, v24')
        a('v_add_f32 v24, 1.0, v24')
        a('v_rcp_f32 v24, v24')
        a('s_mov_b64 exec, 0xffff')
        l, d = self.spin_head('base')
        a('buffer_load_dwordx4 v[16:19], v%d, %s, s80 offen sc1' % (vL16, srd(sWS)))
        a('buffer_load_dwordx2 v[20:21], v131, %s, s81 offen sc1' % srd(sWS))
        self.spin_bound(d)
        a('s_waitcnt vmcnt(0)')
        for r in (17, 19, 21):
            a('v_xor_b32 v%d, s%d, v%d' % (r, TAG, r))
        a('v_or3_b32 v17, v17, v19, v21')
        a('v_cmp_ne_u32 vcc, 0, v17')
        a('s_cbranch_vccnz %s' % l)
        a('%s:' % d)
        a('s_waitcnt vmcnt(0)')
        self.unpack(22, 23, 20)
        a('v_mul_f32 v22, v22, v24')
        a('v_mul_f32 v23, v23, v24')
        self.stamp(8)
        a('s_barrier')
        a('ds_read_b128 v[32:35], v14')
        a('s_waitcnt lgkmcnt(0)')
        a('v_cvt_f32_f64 v32, v[32:33]')
        a('v_cvt_f32_f64 v33, v[34:35]')
        a('v_fmac_f32 v16, v22, v32')
        a('v_fmac_f32 v18, v23, v33')
        a('v_cvt_pk_bf16_f32 v16, v16, v18')
        a('buffer_store_dword v16, v15, %s, s82 offen' % srd(sO))
        a('s_cmp_lg_u32 s70, 0')
        a('s_cbranch_scc1 L_noepoch')
        a('v_mov_b32 v25, 0')
        a('buffer_store_dword v167, v25, %s, 0 offen' % srd(sWS))
        a('L_noepoch:')
        a('s_mov_b64 exec, -1')
        self.stamp(7)

    def finish(self):
        a = self.a
        a('L_end:')
        if self.amp:
            lo, hi, j = self.amp
            self.stamp(15)
            a('s_cmp_lt_u32 s2, %d' % lo)
            a('s_cbranch_scc1 L_exit')
            a('s_cmp_ge_u32 s2, %d' % hi)
            a('s_cbranch_scc1 L_exit')
            a('s_cmp_eq_u32 s%d, 0' % (84 + j))
            a('s_cbranch_scc1 L_exit')
            a('s_sub_u32 s72, s%d, s84' % (84 + j))
            a('s_min_u32 s72, s72, 3000')
            a('s_mul_i32 s72, s72, 10')
            a('s_add_u32 s72, s72, 3000')
            a('L_amp:')
            a('s_sleep 8')
            a('s_memrealtime s[100:101]')
            a('s_waitcnt lgkmcnt(0)')
            a('s_sub_u32 s73, s100, s84')
            a('s_cmp_lt_u32 s73, s72')
            a('s_cbranch_scc1 L_amp')
        if self.diag:
            self.stamp(15)
            a('L_dwait:')
            a('s_sleep 16')
            a('s_memrealtime s[100:101]')
            a('s_waitcnt lgkmcnt(0)')
            a('s_sub_u32 s73, s100, s84')
            a('s_cmp_lt_u32 s73, 2500')
            a('s_cbranch_scc1 L_dwait')
            a('s_mov_b64 exec, -1')
            a('s_mul_i32 s72, s2, 640')
            a('s_add_u32 s72, s72, s%d' % T64)
            a('s_add_u32 s72, s72, %d' % DIAG)
            a('v_mov_b32 v2, s72')
            for i in range(16):
                a('v_mov_b32 v%d, s%d' % (8 + i, 84 + i))
            a('s_mov_b64 exec, 1')
            for i in range(4):
                a('buffer_store_dwordx4 %s, v2, %s, 0 offen offset:%d' % (vr(8 + 4 * i, 4), srd(sWS), 16 * i))
        a('L_exit:')
        a('s_endpgm')
        a('L_code_end:')

    def text(self):
        self.prologue()
        self.conv()
        self.rows()
        self.helper()
        self.nonconv()
        self.finish()
        body = self.a.body().replace('CODE_LIMIT', 'L_code_end-%s_kernel-8' % NAME)
        code, desc = kernel_text(NAME + '_kernel', body, 168)
        return (HEADER + '; @launch grid=(256,1,1) block=(640,1,1) lds=%d\n' % LDS_BYTES +
                '.amdgcn_target "amdgcn-amd-amdhsa--gfx950"\n' + code + desc)


def parse_args(args):
    kw = {}
    for x in args:
        if x == 'diag':
            kw['diag'] = True
        elif x.startswith('amp='):
            kw['amp'] = tuple(int(y) for y in x[4:].split(','))
        else:
            k, v = x.split('=')
            kw[k] = int(v)
    return kw


if __name__ == '__main__':
    open(sys.argv[1], 'w').write(Gen(**parse_args(sys.argv[2:])).text())
```

```python
import sys
sys.path.insert(0, 'gen')
from asmlib import *

NAME = 'adaLN_cond__ssm_conv_h3__moe_arch_mod__prompt'
HEADER = open('cdna_kernels/%s.s.ref' % NAME).read().split('; Override launch')[0]

MODG, KEYS = 0x1000, 0x8000
H2G, BASEG, PART = 0x10000, 0x60000, 0x100000
F1, F2, GO = 0x150000, 0x1a0000, 0x1d0000
KVX, DIAG, KEYR = 0x200000, 0x600000, 0x150000
ZREUSE = True
KVREG = 344 * 64
WS_BYTES = 0x700000
KC, KPITCH = 0, 4160
RV, RPITCH = 66624, 4640
PS = 85248
ZS = 100224
QS, QPITCH = 120704, 1312
PAR = 141696
ACC = 157056
ST2, CS, GU, MODACC, RED, KEYMAX = ACC, ACC + 384, ACC + 512, ACC + 1024, ACC + 1536, ACC + 1792
ZCNT = ACC + 1824
ST1 = ACC + 2560
LDS_BYTES = ST1 + 128

N_CONV, N_ROW = 160, 128
FREE0, N_FREE = 160, 41
MOD0, N_MOD = 160, 60
MLP0, N_MLP = 200, 54
RED0, N_RED = 160, 20
SPIN = 1 << 16
GROUPS = [('row', slice(0, 128)), ('conv', slice(128, 160)), ('red', slice(160, 180)), ('mod', slice(180, 200)),
          ('mm', slice(200, 220)), ('mlp', slice(220, 254))]

sK, sV, sSH, sWS, sSK, sO, sQ, sWR, sWG, sWU, sWD, sC, sWM, sD = [4 + 4 * i for i in range(14)]
SIZES = {sK: 2621440, sV: 2621440, sSH: 5120, sWS: WS_BYTES, sSK: 2621440, sQ: 2621440, sWR: 1280,
         sWG: 2211840, sWU: 2211840, sWD: 2211840, sC: 1280, sWM: 4915200, sO: 2621440}
SLOT = {sQ: 0, sK: 1, sV: 2, sSH: 3, sSK: 4, sD: 5, sWR: 7, sWG: 8, sWU: 9, sWD: 10, sC: 11, sWM: 12, sO: 13, sWS: 15}
TAG, WV, T64, HI = 60, 61, 62, 63
CG, RW = 3, 59
OOB = '0x7ffffff0'
MARK = '0x7f817f81'
DPP = 'row_mask:0xf bank_mask:0xf'

LANE, R4, C16, L8, P8, P16 = 1, 2, 3, 4, 5, 6
vPW, vPR, vKVST, vC128, vL16 = 7, 8, 9, 10, 11
vKI, vKW, vKVL, vZG0, vZG1, vZST = 12, 13, 14, 15, 16, 17
vQS, vST1, vPAR, vZLD, vSADD, vSRD, vIDX, vH2, vBASE, vORD, vOST = 18, 19, 20, 21, 22, 23, 24, 25, 26, 27, 28
vA, vB, vZW, vL4, vHI = 160, 161, 162, 164, 29


def srd(s):
    return 's[%d:%d]' % (s, s + 3)


def vr(a, n):
    return 'v[%d:%d]' % (a, a + n - 1)


class Gen:
    def __init__(self, diag=False, amp=None, **opt):
        self.a = Asm()
        self.diag = diag
        self.amp = amp
        self.opt = dict(prio=1, h2wait=0, pf=2, depth=1, keyprio=0, bg=0, klate=0, kstride=256, full=1,
                        ksleep=0, gsleep=2, fsleep=2, dnpf=1, rev=1, gupf=5, hdiag=0, peel=1, twob=0, krep=1,
                        h2bar=1, kpos=2, modearly=0, wmpf=1, adv=0, wmn=1, wrearly=1, pace=5, modafter=0, zack=1, dry=1, hoist=0, modwait=0, qfirst=0, finsc=0, spec=96, kd=1, ks=0, free0=215, iters=7, f2wait=0)
        self.opt.update(opt)
        global FREE0
        FREE0 = self.opt['free0']

    def hstamp(self, i):
        if self.opt['hdiag']:
            self.stamp(i, True)

    def stamp(self, i, force=False):
        if self.opt['hdiag'] and 9 <= i <= 13 and not force:
            return
        if self.diag is True or (self.diag and (i in (0, 15) or i in self.diag)) or (self.amp and i in (0, self.amp[2])):
            a = self.a
            a('s_memrealtime s[100:101]')
            a('s_waitcnt lgkmcnt(0)')
            a('s_mov_b32 s%d, s100' % (84 + i))

    def srd_tail(self, regs):
        for s in regs:
            self.a('s_mov_b32 s%d, %d' % (s + 2, SIZES[s]))
            self.a('s_mov_b32 s%d, 0x20000' % (s + 3))

    def ptrs(self, regs):
        for s in regs:
            self.a('s_load_dwordx2 s[%d:%d], s[0:1], %d' % (s, s + 1, 8 * SLOT[s]))

    def mad(self, dst, src, const, add):
        self.a('s_mov_b32 s83, %d' % const)
        self.a('v_mad_u32_u24 v%d, v%d, s83, v%d' % (dst, src, add))

    def unpack(self, dst_lo, dst_hi, src):
        self.a('v_lshlrev_b32 v%d, 16, v%d' % (dst_lo, src))
        self.a('v_and_b32 v%d, v%d, v%d' % (dst_hi, vHI, src))

    def spin_head(self, name):
        a = self.a
        l, d = a.label(name), a.label(name + '_done')
        a('s_mov_b32 s79, 0')
        a('%s:' % l)
        return l, d

    def spin_bound(self, d):
        a = self.a
        a('s_add_u32 s79, s79, 1')
        a('s_cmp_gt_u32 s79, %d' % SPIN)
        a('s_cbranch_scc1 %s' % d)

    def poll16(self, name, soff, vtmp, width=1, sleep=0, vaddr=vC128, mask='0xffff'):
        a = self.a
        depth = self.opt['depth']
        op = 'buffer_load_dword' if width == 1 else 'buffer_load_dwordx2'
        reg = lambda k: ('v%d' % (vtmp + k)) if width == 1 else vr(vtmp + 2 * k, 2)
        ld = lambda k: a('%s %s, v%d, %s, s%d offen sc1' % (op, reg(k), vaddr, srd(sWS), soff))
        a('s_mov_b64 exec, %s' % mask)
        for k in range(depth - 1):
            ld(k)
        l, d = self.spin_head(name)
        for k in range(depth):
            ld((k + depth - 1) % depth)
            if sleep:
                a('s_sleep %d' % sleep)
            a('s_waitcnt vmcnt(%d)' % (depth - 1))
            if width == 2:
                a('v_mov_b32 v%d, v%d' % (vtmp + 2 * depth, vtmp + 2 * k))
            a('v_cmp_ne_u32 vcc, s%d, v%d' % (TAG, vtmp + k if width == 1 else vtmp + 2 * k + 1))
            a('s_and_b64 exec, vcc, vcc')
            a('s_cbranch_scc0 %s' % d)
        self.spin_bound(d)
        a('s_branch %s' % l)
        a('%s:' % d)
        a('s_mov_b64 exec, %s' % ('-1' if width == 1 else '0xffff'))

    def barrier_flag(self, soff, wait):
        a = self.a
        l, e = a.label('flagwave'), a.label('flagged')
        a('s_cmp_eq_u32 s%d, 9' % WV)
        a('s_cbranch_scc1 %s' % l)
        a(wait)
        a('s_barrier')
        a('s_branch %s' % e)
        a('%s:' % l)
        a('s_mov_b64 exec, 1')
        a(wait)
        a('s_barrier')
        a('buffer_store_dword v167, v%d, %s, s%d offen sc1' % (vC128, srd(sWS), soff))
        a('s_mov_b64 exec, -1')
        a('%s:' % e)

    def silu(self, x, t):
        a = self.a
        a('v_mul_f32 v%d, 0xbfb8aa3b, v%d' % (t, x))
        a('v_exp_f32 v%d, v%d' % (t, t))
        a('v_add_f32 v%d, 1.0, v%d' % (t, t))
        a('v_rcp_f32 v%d, v%d' % (t, t))
        a('v_mul_f32 v%d, v%d, v%d' % (x, x, t))

    def row_allreduce16(self, regs):
        for sh in (1, 2, 4, 8):
            for r in regs:
                self.a('v_add_f32_dpp v%d, v%d, v%d row_ror:%d %s' % (r, r, r, sh, DPP))

    def reduce4x4(self, r):
        a = self.a
        a('v_permlane32_swap_b32 v%d, v%d' % (r, r + 2))
        a('v_permlane32_swap_b32 v%d, v%d' % (r + 1, r + 3))
        a('v_add_f32 v%d, v%d, v%d' % (r, r, r + 2))
        a('v_add_f32 v%d, v%d, v%d' % (r + 1, r + 1, r + 3))
        a('v_permlane16_swap_b32 v%d, v%d' % (r, r + 1))
        a('v_add_f32 v%d, v%d, v%d' % (r, r, r + 1))

    def pair_rows(self, dst, x, y):
        self.a('v_perm_b32 v%d, v%d, v%d, s64' % (dst, y, x))
        self.a('v_perm_b32 v%d, v%d, v%d, s65' % (dst + 1, y, x))

    def prologue(self):
        a, o = self.a, self.opt
        KR, VR, SR, W, KP, VP, AC, OUT, OUT2 = 96, 105, 112, 116, 124, 124, 142, 96, 104
        a('s_getpc_b64 s[66:67]')
        self.ptrs((sK, sV, sSH, sWS, sSK))
        if self.diag or self.amp:
            for i in range(16):
                a('s_mov_b32 s%d, 0' % (84 + i))
        self.stamp(0)
        a('s_cmp_ge_u32 s2, 256')
        a('s_cbranch_scc1 L_exit')
        if o['pf'] == 2:
            a('s_sub_u32 s72, s2, %d' % ((FREE0 + 7) // 8 * 8))
            a('s_cmp_lt_u32 s72, 40')
            a('s_cbranch_scc0 L_pfdone')
            a('s_lshr_b32 s72, s72, 3')
            a('v_mad_u32_u24 v43, v0, 5, s72')
            a('v_lshlrev_b32 v43, 7, v43')
            a('v_cmp_gt_u32 vcc, CODE_LIMIT, v43')
            a('s_and_saveexec_b64 s[68:69], vcc')
            a('s_cbranch_execz L_nopf')
            a('v_mov_b32 v165, s67')
            a('v_add_co_u32 v164, vcc, s66, v43')
            a('v_addc_co_u32 v165, vcc, 0, v165, vcc')
            a('global_load_dword v163, v[164:165], off')
            a('L_nopf:')
            a('s_mov_b64 exec, -1')
            a('L_pfdone:')
        a('v_readfirstlane_b32 s%d, v0' % T64)
        a('s_lshr_b32 s74, s2, 3')
        if o['pf'] == 1:
            a('v_lshl_add_u32 v43, v0, 5, s74')
            a('v_lshlrev_b32 v43, 7, v43')
            a('v_cmp_gt_u32 vcc, CODE_LIMIT, v43')
            a('s_and_saveexec_b64 s[68:69], vcc')
            a('s_cbranch_execz L_nopf')
            a('v_mov_b32 v165, s67')
            a('v_add_co_u32 v164, vcc, s66, v43')
            a('v_addc_co_u32 v165, vcc, 0, v165, vcc')
            a('global_load_dword v163, v[164:165], off')
            a('L_nopf:')
            a('s_mov_b64 exec, -1')
        a('v_bfe_u32 v%d, v0, 4, 2' % R4)
        a('v_and_b32 v%d, 15, v0' % C16)
        a('s_lshr_b32 s%d, s%d, 6' % (WV, T64))
        a('s_sub_u32 s71, s2, %d' % N_FREE)
        a('s_cmp_lt_u32 s2, %d' % FREE0)
        a('s_cselect_b32 s71, s2, s71')
        a('s_mul_i32 s70, s71, 205')
        a('s_lshr_b32 s70, s70, 10')
        a('s_mul_i32 s72, s70, 5')
        a('s_sub_u32 s71, s71, s72')
        a('s_lshr_b32 s72, s%d, 2' % WV)
        a('s_lshl1_add_u32 s70, s70, s72')
        a('s_and_b32 s72, s%d, 3' % WV)
        a('s_lshl2_add_u32 s71, s71, s72')
        a('s_mul_i32 s72, s70, 30720')
        a('s_lshl_b32 s73, s71, 6')
        a('s_add_u32 s72, s72, s73')
        a('v_mul_u32_u24 v40, 7680, v%d' % R4)
        a('v_lshl_add_u32 v40, v%d, 2, v40' % C16)
        a('v_add_u32 v40, s72, v40')
        a('v_subrev_u32 v41, 3840, v40')
        a('v_add_u32 v43, 3840, v40')
        a('v_lshlrev_b32 v42, 4, v%d' % C16)
        a('s_lshl_b32 s73, s73, 2')
        self.srd_tail((sK, sV, sSH))
        a('s_sub_u32 s72, s2, %d' % FREE0)
        a('s_cmp_lt_u32 s72, %d' % N_FREE)
        a('s_cselect_b32 s58, 8, s%d' % WV)
        a('s_cmp_ge_u32 s58, 8')
        a('s_waitcnt lgkmcnt(0)')
        a('s_cbranch_scc1 %s' % ('L_free' if o['modearly'] else 'L_shadow'))
        a('buffer_load_dwordx4 %s, v42, %s, s73 offen' % (vr(SR, 4), srd(sSH)))
        for i in range(9):
            a('buffer_load_dword v%d, v%d, %s, 0 offen offset:%d' % (KR + i, (41, 40, 43)[i // 3], srd(sK), 1280 * (i % 3)))
        for i in range(6):
            a('buffer_load_dword v%d, v%d, %s, 0 offen offset:%d' % (VR + i, (40, 43)[i // 3], srd(sV), 1280 * (i % 3)))
        a('L_shadow:')
        a('s_load_dword s%d, s[%d:%d], 0' % (TAG, sWS, sWS + 1))
        self.ptrs((sD, sWM, sC, sQ, sWR))
        a('v_and_b32 v%d, 63, v0' % LANE)
        a('s_and_b32 s75, s2, 7')
        a('s_mul_i32 s%d, s75, 20' % CG)
        a('s_add_u32 s%d, s%d, s74' % (CG, CG))
        a('s_lshl4_add_u32 s%d, s75, s74' % RW)
        self.srd_tail((sSK,))
        a('s_cmp_ge_u32 s%d, 5' % WV)
        a('s_cselect_b32 s74, 1, 0')
        a('s_mul_i32 s75, s74, 5')
        a('s_sub_u32 s75, s%d, s75' % WV)
        a('s_mul_i32 s75, s75, 52')
        a('v_add_u32 v%d, s75, v%d' % (vKI, LANE))
        a('s_lshl2_add_u32 s75, s%d, s74' % CG)
        a('s_lshl_b32 s76, s75, 12')
        a('s_sub_u32 s76, s76, 32')
        a('v_lshl_add_u32 v46, v%d, 4, s76' % vKI)
        a('v_subrev_u32 v43, 2, v%d' % vKI)
        a('v_cmp_gt_u32 vcc, 256, v43')
        a('s_and_b32 vcc_hi, vcc_hi, 0x1fffff')
        a('s_cmp_lt_u32 s2, %d' % N_CONV)
        a('s_cselect_b64 vcc, vcc, 0')
        a('v_mov_b32 v47, %s' % OOB)
        a('v_cndmask_b32 v46, v47, v46, vcc')
        a('s_movk_i32 s77, 0x2000')

        def kloads():
            a('buffer_load_dwordx4 v[48:51], v46, %s, 0 offen' % srd(sSK))
            a('buffer_load_dwordx4 v[56:59], v46, %s, s77 offen' % srd(sSK))
        if o['kpos'] == 0:
            kloads()
        self.srd_tail([s for s in SIZES if s not in (sK, sV, sSH, sSK)])
        a('s_mov_b32 s%d, 0xffff0000' % HI)
        a('v_mov_b32 v%d, 0xffff0000' % vHI)
        a('v_bfe_u32 v%d, v0, 3, 3' % L8)
        a('v_and_b32 v%d, 0x70, v42' % P16)
        a('v_and_b32 v%d, 7, v0' % P8)
        a('v_lshlrev_b32 v%d, 7, v%d' % (vC128, C16))
        a('v_lshlrev_b32 v%d, 4, v%d' % (vL16, LANE))
        a('v_lshlrev_b32 v%d, 2, v%d' % (vL4, LANE))
        self.mad(vKVST, R4, KVREG, 42)
        a('s_mul_i32 s72, s71, %d' % (8 * KVREG))
        a('s_lshl_b32 s73, s70, 8')
        a('s_add_u32 s72, s72, s73')
        a('s_add_u32 s80, s72, %d' % KVX)
        a('s_add_u32 s81, s80, %d' % (4 * KVREG))
        a('s_mul_i32 s72, s%d, 2560' % WV)
        a('s_add_u32 s72, s72, %d' % ZS)
        self.mad(vPW, R4, 640, 42)
        a('v_add_u32 v%d, s72, v%d' % (vPW, vPW))
        a('v_lshl_add_u32 v43, v%d, 5, s72' % R4)
        a('v_bfe_u32 v44, v0, 2, 2')
        a('v_mad_u32_u24 v43, v44, s83, v43')
        a('v_bfe_u32 v44, v0, 1, 1')
        a('v_lshl_add_u32 v43, v44, 4, v43')
        a('v_and_b32 v44, 1, v0')
        self.mad(vPR, 44, 320, 43)
        a('v_lshrrev_b32 v44, 1, v%d' % P8)
        a('v_lshlrev_b32 v43, 2, v0')
        a('v_add_u32 v43, %d, v43' % ACC)
        a('v_mov_b32 v45, 0')
        a('ds_write_b32 v43, v45')
        if o['kpos'] == 1:
            kloads()
        self.conv_addresses()
        if o['kpos'] == 2:
            kloads()
        a('s_waitcnt lgkmcnt(0)')
        self.ptrs((sWU, sWD, sO, sWG))
        a('s_min_u32 s72, s%d, %d' % (CG, N_CONV - 1))
        a('s_lshl_b32 s72, s72, 3')
        a('s_load_dwordx2 s[68:69], s[%d:%d], s72' % (sD, sD + 1))
        a('s_mul_i32 s%d, s%d, 0x9e3779b1' % (TAG, TAG))
        a('s_add_u32 s%d, s%d, 0x7f4a7c15' % (TAG, TAG))
        a('s_and_b32 s%d, s%d, 0x1fffff' % (TAG, TAG))
        a('s_or_b32 s%d, s%d, 0x7fa00000' % (TAG, TAG))
        a('v_mov_b32 v167, s%d' % TAG)
        self.stamp(14)
        a('s_cmp_ge_u32 s58, 8')
        a('s_cbranch_scc1 L_notile')
        a('s_waitcnt vmcnt(17)')
        for j in range(4):
            for dst, src in ((W + 2 * j, SR + j // 2), (W + 1 + 2 * j, SR + 2 + j // 2)):
                if j % 2 == 0:
                    a('v_lshlrev_b32 v%d, 16, v%d' % (dst, src))
                else:
                    a('v_and_b32 v%d, v%d, v%d' % (dst, vHI, src))
        adv = o['adv']
        if adv == 1:
            self.wave_flag(78, 8)
        else:
            a('s_waitcnt vmcnt(8)')
        for i in range(9):
            self.unpack(KP + 2 * i, KP + 1 + 2 * i, KR + i)
        a('v_mov_b32 v%d, v167' % (OUT + 3))
        a('v_mov_b32 v%d, v167' % (OUT + 7))
        for j in range(4):
            for r in range(6):
                kp = KP + 2 * (r + 3 - j)
                if j == 0:
                    a('v_pk_mul_f32 %s, %s, %s' % (vr(AC + 2 * r, 2), vr(W, 2), vr(kp, 2)))
                else:
                    a('v_pk_fma_f32 %s, %s, %s, %s' % (vr(AC + 2 * r, 2), vr(W + 2 * j, 2), vr(kp, 2), vr(AC + 2 * r, 2)))
        if adv == 2:
            self.wave_flag(78, 2)
        else:
            a('s_waitcnt vmcnt(%d)' % (3 if adv == 1 else 2))
        for i in range(6):
            self.unpack(VP + 2 * i, VP + 1 + 2 * i, VR + i)
        for r in range(6):
            a('v_pk_mul_f32 %s, %s, %s' % (vr(AC + 2 * r, 2), vr(AC + 2 * r, 2), vr(VP + 2 * r, 2)))
        for c in range(2):
            for k in range(3):
                a('v_cvt_pk_bf16_f32 v%d, v%d, v%d' % (OUT + 4 * c + k, AC + 10 - 4 * k + c, AC + 8 - 4 * k + c))
            a('ds_write_b128 v%d, %s offset:%d' % (vPW, vr(OUT + 4 * c, 4), 320 * c))
        a('ds_read_b128 %s, v%d' % (vr(OUT2, 4), vPR))
        a('ds_read_b128 %s, v%d offset:128' % (vr(OUT2 + 4, 4), vPR))
        a('s_waitcnt lgkmcnt(0)')
        a('buffer_store_dwordx4 %s, v%d, %s, s80 offen sc1' % (vr(OUT2, 4), vKVST, srd(sWS)))
        a('buffer_store_dwordx4 %s, v%d, %s, s81 offen sc1' % (vr(OUT2 + 4, 4), vKVST, srd(sWS)))
        if adv == 3:
            self.wave_flag(78, 4)
        self.stamp(1)
        a('s_waitcnt vmcnt(%d)' % (3 if adv else 2))
        a('s_branch L_tiled')
        a('L_notile:')
        a('s_cmp_ge_u32 s2, %d' % N_CONV)
        a('s_waitcnt lgkmcnt(0)')
        a('s_cbranch_scc1 L_nonconv')
        a('s_waitcnt vmcnt(0)')
        a('L_tiled:')
        a('s_cmp_ge_u32 s2, %d' % N_CONV)
        a('s_cbranch_scc1 L_nonconv')

    def mod_loads(self):
        a = self.a
        a('v_bfe_u32 v137, v0, 5, 1')
        a('v_and_b32 v130, 31, v0')
        a('v_lshlrev_b32 v130, 2, v130')
        self.mad(133, 137, 32 * 7680, 130)
        a('v_lshlrev_b32 v132, 2, v%d' % C16)
        a('v_lshl_add_u32 v136, v137, 6, v132')
        a('s_sub_u32 s73, s2, %d' % MOD0)
        a('s_lshl_b32 s73, s73, 7')
        a('s_mul_i32 s72, s%d, %d' % (WV, 64 * 7680))
        a('s_add_u32 s72, s72, s73')
        a('s_lshl_b32 s73, s%d, 7' % WV)
        a('buffer_load_dword v138, v136, %s, s73 offen' % srd(sC))
        for i in range(32):
            a('buffer_load_dword v%d, v133, %s, s72 offen' % (96 + i, srd(sWM)))
            if i < 31:
                a('s_add_u32 s72, s72, 7680')

    def wave_flag(self, soff, cnt=0):
        a = self.a
        if self.opt['full']:
            a('s_mov_b32 exec_hi, 0')
        else:
            a('s_mov_b64 exec, 1')
        a('s_waitcnt vmcnt(%d)' % cnt)
        a('buffer_store_dword v167, v%d, %s, s%d offen sc1' % (vL4, srd(sWS), soff))
        a('s_mov_b64 exec, -1')

    def wm_prefetch(self, sub, n=0):
        a = self.a
        a('s_lshr_b32 s82, s2, 3')
        if n:
            a('s_lshl2_add_u32 s82, s%d, s82' % WV)
            a('s_add_u32 s82, s82, %d' % (80 - 4 * n - 28))
        else:
            a('s_lshl1_add_u32 s82, s82, s%d' % WV)
            a('s_add_u32 s82, s82, %d' % (32 - 8 - 2 * sub))
        a('s_mul_i32 s82, s82, %d' % (8 * 7680))
        a('s_and_b32 s83, s2, 7')
        a('s_lshl_b32 s83, s83, 7')
        a('s_add_u32 s82, s82, s83')
        a('v_lshlrev_b32 v165, 10, v%d' % P8)
        self.mad(165, L8, 7680, 165)
        a('buffer_load_dword v163, v165, %s, s82 offen' % srd(sWM))

    def dn_prefetch(self, su):
        a = self.a
        a('s_and_b32 s66, s2, 7')
        a('s_lshr_b32 s67, s2, 3')
        a('s_sub_u32 s67, s67, 16')
        a('s_lshl3_add_u32 s82, s%d, s66' % su)
        a('s_mul_i32 s82, s82, 640')
        a('s_mul_i32 s83, s67, 72')
        a('s_add_u32 s82, s82, s83')
        a('s_add_u32 s66, s66, 48')
        a('s_mul_i32 s66, s66, 320')
        a('s_mul_i32 s83, s67, 36')
        a('s_add_u32 s66, s66, s83')
        a('s_cmp_eq_u32 s%d, 3' % su)
        a('s_cselect_b32 s82, s66, s82')
        a('s_lshl_b32 s82, s82, 7')
        a('v_lshl_add_u32 v165, v%d, 7, s82' % LANE)
        a('buffer_load_dword v163, v165, %s, 0 offen' % srd(sWD))
        a('s_mov_b64 exec, 0xff')
        a('v_add_u32 v165, 8192, v165')
        a('buffer_load_dword v163, v165, %s, 0 offen' % srd(sWD))
        a('s_mov_b64 exec, -1')

    def go_flag(self):
        a = self.a
        a('s_lshl_b32 s82, s%d, 7' % CG)
        a('s_add_u32 s82, s82, %d' % F2)
        for i in range(4):
            a('v_mov_b32 v%d, v167' % (44 + i))
        a('buffer_store_dwordx4 v[44:47], v%d, %s, s82 offen sc1' % (vZST, srd(sWS)))

    def gu_prefetch(self, v=41, st=72, shift=0):
        a = self.a
        a('s_and_b32 s70, s2, 7')
        a('s_lshr_b32 s71, s2, 3')
        if shift:
            a('s_sub_u32 s71, s71, %d' % shift)
        a('v_and_b32 v%d, 3, v0' % v)
        a('v_lshl_add_u32 v%d, v%d, 3, s70' % (v + 1, v))
        a('s_lshr_b32 s%d, s70, 1' % st)
        a('s_add_u32 s%d, s%d, 24' % (st, st))
        a('v_min_u32 v%d, s%d, v%d' % (v + 1, st, v + 1))
        a('v_lshlrev_b32 v%d, 7, v%d' % (v + 1, v + 1))
        a('v_lshrrev_b32 v%d, 2, v%d' % (v, LANE))
        self.mad(v, v, 3456, v + 1)
        a('s_bitcmp1_b32 s75, 0')
        a('s_cselect_b64 s[%d:%d], s[%d:%d], s[%d:%d]' % (sWG, sWG + 1, sWU, sWU + 1, sWG, sWG + 1))
        a('s_lshr_b32 s%d, s75, 1' % st)
        a('s_lshl1_add_u32 s%d, s71, s%d' % (st, st))
        a('s_mul_i32 s%d, s%d, %d' % (st, st, 16 * 3456))
        a('buffer_load_dword v163, v%d, %s, s%d offen' % (v, srd(sWG), st))

    def mm_gu_prefetch(self):
        a = self.a
        l1, l2 = a.label('g1'), a.label('g2')
        a('s_and_b32 s70, s2, 7')
        a('s_lshr_b32 s71, s2, 3')
        a('s_mul_i32 s71, s71, 6')
        a('s_add_u32 s71, s71, s%d' % WV)
        a('s_sub_u32 s71, s71, 100')
        a('s_bitcmp1_b32 s71, 0')
        a('s_cselect_b64 s[%d:%d], s[%d:%d], s[%d:%d]' % (sWG, sWG + 1, sWU, sWU + 1, sWG, sWG + 1))
        a('v_mul_u32_u24 v41, 3456, v%d' % LANE)
        a('s_lshr_b32 s72, s71, 1')
        a('s_mul_i32 s72, s72, %d' % (64 * 3456))
        a('s_lshl_b32 s73, s70, 7')
        a('s_add_u32 s72, s72, s73')
        a('s_cmp_ge_u32 s71, 20')
        a('s_cbranch_scc1 %s' % l1)
        a('buffer_load_dword v163, v41, %s, s72 offen' % srd(sWG))
        a('%s:' % l1)
        a('s_cmp_ge_u32 s70, 4')
        a('s_cbranch_scc1 %s' % l2)
        a('s_cmp_lt_u32 s71, 14')
        a('s_cbranch_scc1 %s' % l2)
        a('s_sub_u32 s72, s72, %d' % (7 * 64 * 3456 - 1024))
        a('buffer_load_dword v163, v41, %s, s72 offen' % srd(sWG))
        a('%s:' % l2)

    def mm_dn_prefetch(self):
        a = self.a
        l = a.label('d')
        a('s_and_b32 s66, s2, 7')
        a('s_lshr_b32 s67, s2, 3')
        a('s_sub_u32 s67, s67, 20')
        a('s_lshl1_add_u32 s82, s67, s75')
        a('s_add_u32 s83, s67, 80')
        a('s_cmp_lt_u32 s75, 2')
        a('s_cselect_b32 s82, s82, s83')
        a('s_mul_i32 s83, s66, 10')
        a('s_add_u32 s82, s82, s83')
        a('s_lshl_b32 s82, s82, 13')
        a('s_lshr_b32 s83, s66, 2')
        a('s_add_u32 s83, s83, s75')
        a('s_cmp_ge_u32 s83, 3')
        a('s_cbranch_scc1 %s' % l)
        a('v_lshlrev_b32 v165, 7, v%d' % LANE)
        a('buffer_load_dword v163, v165, %s, s82 offen' % srd(sWD))
        a('%s:' % l)

    def flag_probe(self, soff, v):
        self.a('s_mov_b64 exec, 0xffff')
        self.a('buffer_load_dword v%d, v%d, %s, s%d offen sc1' % (v, vC128, srd(sWS), soff))
        self.a('s_mov_b64 exec, -1')

    def flag_confirm(self, name, soff, v):
        a = self.a
        a('s_mov_b64 exec, 0xffff')
        l, d = self.spin_head(name)
        a('v_cmp_ne_u32 vcc, s%d, v%d' % (TAG, v))
        a('s_and_b64 exec, vcc, vcc')
        a('s_cbranch_scc0 %s' % d)
        a('buffer_load_dword v%d, v%d, %s, s%d offen sc1' % (v, vC128, srd(sWS), soff))
        a('s_add_u32 s79, s79, 1')
        a('s_cmp_gt_u32 s79, %d' % SPIN)
        a('s_waitcnt vmcnt(0)')
        a('s_cbranch_scc0 %s' % l)
        a('%s:' % d)
        a('s_mov_b64 exec, -1')

    def data_confirm(self, name, loads, r0, r1, count_stamp):
        a = self.a
        l, d = self.spin_head(name)
        a('s_waitcnt vmcnt(0)')
        a('v_cmp_eq_u32 vcc, s82, v%d' % r0)
        a('v_cmp_eq_u32 s[70:71], s82, v%d' % r1)
        a('s_or_b64 exec, vcc, s[70:71]')
        a('s_cbranch_scc0 %s' % d)
        loads()
        a('s_add_u32 s79, s79, 1')
        a('s_cmp_gt_u32 s79, %d' % SPIN)
        a('s_cbranch_scc0 %s' % l)
        a('s_waitcnt vmcnt(0)')
        a('%s:' % d)
        a('s_mov_b64 exec, -1')
        if self.diag is True and count_stamp is not None and not self.opt['hdiag']:
            a('s_mul_i32 s79, s79, 100')
            a('s_add_u32 s%d, s84, s79' % (84 + count_stamp))

    def conv_addresses(self):
        a = self.a
        a('s_mul_i32 s72, s74, %d' % (4 * KPITCH))
        a('v_lshl_add_u32 v%d, v%d, 4, s72' % (vKW, vKI))
        a('s_mul_i32 s72, s%d, 192' % WV)
        a('s_add_u32 s72, s72, %d' % (RV + 4084 - 3840 - 9 * 192))
        a('v_lshrrev_b32 v43, 2, v%d' % LANE)
        a('v_mul_u32_u24 v43, 12, v43')
        a('v_sub_u32 v43, s72, v43')
        a('v_and_b32 v45, 3, v0')
        self.mad(vKVL, 45, RPITCH, 43)
        a('v_and_b32 v45, 1, v0')
        a('s_and_b32 s72, s%d, 3' % WV)
        a('s_mul_i32 s72, s72, 640')
        a('s_add_u32 s72, s72, %d' % ZS)
        a('v_lshl_add_u32 v43, v45, 2, s72')
        a('v_lshl_add_u32 v43, v%d, 3, v43' % L8)
        self.mad(vZG0, 44, 160, 43)
        a('v_add_u32 v%d, 64, v%d' % (vZG1, vZG0))
        self.mad(vZST, L8, 20480, P16)
        a('s_cmp_ge_u32 s%d, 4' % WV)
        a('s_cbranch_scc1 L_nomf')
        for i in range(32):
            a('v_mov_b32 v%d, 0' % (64 + i))
        a('s_mul_i32 s72, s%d, %d' % (WV, RPITCH))
        a('s_add_u32 s76, s72, %d' % (RV + 4096))
        a('v_min_u32 v43, 59, v%d' % LANE)
        a('v_lshl_add_u32 v43, v43, 3, s76')
        a('ds_write_b64 v43, v[64:65]')
        a('s_add_u32 s72, s72, %d' % (RV + 480))
        a('v_lshl_add_u32 v%d, v%d, 4, s72' % (vB, R4))
        a('v_lshlrev_b32 v43, 5, v%d' % C16)
        a('v_sub_u32 v%d, v%d, v43' % (vB, vB))
        a('v_lshl_add_u32 v43, v%d, 3, v%d' % (R4, C16))
        a('v_add_u32 v43, 1, v43')
        a('v_and_b32 v45, 3, v43')
        a('s_mul_i32 s72, s%d, %d' % (WV, 4 * KPITCH))
        a('v_lshl_add_u32 v43, v43, 1, s72')
        self.mad(vA, 45, KPITCH - 2, 43)
        a('s_mul_i32 s72, s%d, 5120' % WV)
        a('s_add_u32 s72, s72, %d' % ZS)
        a('v_lshl_add_u32 v43, v%d, 3, s72' % C16)
        self.mad(vZW, R4, 160, 43)
        a('L_nomf:')
        self.mad(vOST, L8, 1280, P16)

    def row_addresses(self):
        a = self.a
        a('s_lshl_b32 s72, s%d, 7' % WV)
        a('s_add_u32 s72, s72, %d' % QS)
        a('v_lshl_add_u32 v43, v%d, 4, s72' % L8)
        self.mad(vQS, P8, 2 * QPITCH, 43)
        a('v_add_u32 v43, s72, v%d' % P16)
        self.mad(vORD, L8, QPITCH, 43)
        a('v_add_u32 v%d, %d, v%d' % (vST1, ST1, P16))
        a('s_lshl_b32 s72, s%d, 8' % WV)
        a('s_add_u32 s73, s72, %d' % PAR)
        a('v_lshl_add_u32 v%d, v%d, 5, s73' % (vPAR, L8))
        a('s_add_u32 s73, s72, %d' % PS)
        a('v_lshl_add_u32 v%d, v%d, 5, s73' % (vH2, L8))
        a('v_lshl_add_u32 v%d, v%d, 3, s73' % (vBASE, LANE))
        self.mad(vZLD, L8, 2 * KVREG, P16)
        a('v_mul_u32_u24 v43, 48, v%d' % P8)
        a('v_add_u32 v%d, %d, v43' % (vSRD, ST2))
        a('v_bfe_u32 v43, v0, 4, 1')
        a('v_bfe_u32 v45, v0, 3, 1')
        a('v_lshl_add_u32 v43, v45, 1, v43')
        a('v_min_u32 v43, 2, v43')
        a('v_lshl_add_u32 v43, v43, 4, v%d' % vSRD)
        a('v_bfe_u32 v45, v0, 5, 1')
        a('v_lshl_add_u32 v%d, v45, 3, v43' % vSADD)
        a('s_lshl_b32 s72, s%d, 4' % RW)
        a('s_sub_u32 s72, 2047, s72')
        a('v_lshlrev_b32 v43, 1, v%d' % P8)
        a('v_sub_u32 v%d, s72, v43' % vIDX)

    def kprep(self, rho):
        a = self.a
        d, t = (48, 120) if rho == 0 else (56, 132)
        a('s_lshl_b32 s72, s%d, 16' % (68 + rho))
        a('s_and_b32 s73, s%d, s%d' % (68 + rho, HI))
        a('s_cmp_ge_u32 s%d, 5' % WV)
        a('s_cselect_b32 s72, s73, s72')
        a('v_lshlrev_b32 v40, 16, v%d' % d)
        a('v_add_f32 v40, s72, v40')
        a('v_cvt_pk_bf16_f32 v40, v40, v40')
        a('v_bfi_b32 v40, s%d, v%d, v40' % (HI, d))
        a('v_cndmask_b32 v%d, v%d, v40, s[64:65]' % (d, d))
        a('v_mov_b32_dpp v%d, v%d wave_shl:1 %s' % (d + 5, d + 1, DPP))
        a('v_mov_b32_dpp v%d, v%d wave_shl:1 %s' % (d + 4, d, DPP))
        for i in range(4):
            a('v_alignbit_b32 v%d, v%d, v%d, 16' % (t + i, d + i + 1, d + i))
            a('v_mov_b32 v%d, v%d' % (t + 4 + i, d + i + 1))
            a('v_alignbit_b32 v%d, v%d, v%d, 16' % (t + 8 + i, d + i + 2, d + i + 1))
        a('s_mov_b32 exec_hi, 0xfffff')
        for s, r in enumerate((d, t, t + 4, t + 8)):
            a('ds_write_b128 v%d, %s offset:%d' % (vKW, vr(r, 4), KC + (8 * rho + s) * KPITCH))
        a('s_mov_b32 exec_hi, -1')

    def conv(self):
        a, o = self.a, self.opt
        a('s_mul_i32 s72, s%d, %d' % (CG, KVREG))
        a('s_sub_u32 s73, 9, s%d' % WV)
        a('s_lshl_b32 s73, s73, 10')
        a('s_add_u32 s72, s72, s73')
        a('s_add_u32 s80, s72, %d' % KVX)
        a('s_add_u32 s81, s80, 10240')
        a('s_add_u32 s82, s80, 20480')
        a('s_mov_b64 s[70:71], -1')
        a('s_mov_b64 s[76:77], -1')
        a('s_cmp_eq_u32 s%d, 8' % WV)
        a('s_cselect_b32 s74, 0xffffff, 0')
        a('s_mov_b32 s75, 0')
        a('s_cmp_eq_u32 s%d, 9' % WV)
        a('s_cselect_b64 s[74:75], -1, s[74:75]')
        a('s_mov_b64 s[66:67], s[74:75]')
        a('v_mov_b32 v47, v167')
        a('v_cmp_eq_u32 s[64:65], 2, v%d' % vKI)

        def kvloads():
            l = a.label('no3')
            a('s_mov_b64 exec, s[70:71]')
            a('buffer_load_dwordx4 v[32:35], v%d, %s, s80 offen sc1' % (vL16, srd(sWS)))
            a('s_mov_b64 exec, s[76:77]')
            a('buffer_load_dwordx4 v[36:39], v%d, %s, s81 offen sc1' % (vL16, srd(sWS)))
            a('s_and_b64 exec, s[66:67], s[66:67]')
            a('s_cbranch_scc0 %s' % l)
            a('buffer_load_dwordx4 v[44:47], v%d, %s, s82 offen sc1' % (vL16, srd(sWS)))
            a('%s:' % l)
            a('s_mov_b64 exec, -1')
        self.kprep(0)
        if o['pace'] != 2:
            self.kprep(1)
        if o['pace'] == 3:
            a('s_waitcnt vmcnt(0)')
        self.hstamp(13)
        a('s_waitcnt lgkmcnt(0)')
        a('s_barrier')
        self.stamp(2)
        kvloads()
        if o['pace'] == 2:
            self.kprep(1)
            a('s_waitcnt lgkmcnt(0)')
            a('s_barrier')
        A = lambda i: 96 + 4 * i
        B = lambda j: 128 + 4 * j

        def ldA(i, nxt):
            off = 512 * i + (64 if nxt else 0)
            return ['ds_read_b64 %s, v%d offset:%d' % (vr(A(i), 2), vA, off),
                    'ds_read_b64 %s, v%d offset:%d' % (vr(A(i) + 2, 2), vA, off + 8)]

        def ldB(j, nxt):
            return ['ds_read_b128 %s, v%d offset:%d' % (vr(B(j), 4), vB, 512 * (7 - j) + (64 if nxt else 0))]

        a('s_cmp_ge_u32 s%d, 4' % WV)
        a('s_cbranch_scc1 L_noA')
        for i in range(7, 0, -1):
            for l in ldA(i, False):
                a(l)
        a('L_noA:')
        l, d = self.spin_head('kv')
        a('s_waitcnt vmcnt(0)')
        a('v_cmp_ne_u32 s[70:71], v167, v35')
        a('v_cmp_ne_u32 s[76:77], v167, v39')
        a('v_cmp_ne_u32 s[66:67], v167, v47')
        a('s_or_b64 vcc, s[70:71], s[76:77]')
        a('s_or_b64 vcc, vcc, s[66:67]')
        a('s_cbranch_scc0 %s' % d)
        kvloads()
        a('s_add_u32 s79, s79, 1')
        a('s_cmp_gt_u32 s79, %d' % SPIN)
        a('s_cbranch_scc0 %s' % l)
        a('s_waitcnt vmcnt(0)')
        a('%s:' % d)
        if self.diag is True:
            a('s_mul_i32 s79, s79, 100')
            a('s_add_u32 s98, s84, s79')
        self.stamp(4)
        for r, off in ((32, 3840), (36, 1920)):
            for k in range(3):
                a('ds_write_b32 v%d, v%d offset:%d' % (vKVL, r + k, off + 4 * k))
        a('s_and_b64 exec, s[74:75], s[74:75]')
        a('s_cbranch_scc0 L_now3')
        for k in range(3):
            a('ds_write_b32 v%d, v%d offset:%d' % (vKVL, 44 + k, 4 * k))
        if o['wmpf'] == 1:
            a('s_mov_b64 exec, -1')
            self.wm_prefetch(0)
        a('L_now3:')
        a('s_mov_b64 exec, -1')
        a('L_kvdone:')
        a('s_and_b32 s75, s%d, 3' % WV)
        a('s_mul_i32 s72, s%d, %d' % (CG, KVREG))
        a('s_lshl_b32 s73, s75, 11')
        a('s_add_u32 s72, s72, s73')
        a('s_add_u32 s80, s72, %d' % KVX)
        a('s_add_u32 s81, s80, 8192')
        a('v_mov_b32 v30, %d' % ZCNT)
        a('v_mov_b32 v31, 1')
        a('s_mov_b32 s72, 0')
        a('s_cmp_ge_u32 s%d, 4' % WV)
        a('s_waitcnt lgkmcnt(0)')
        a('s_barrier')
        if self.diag or self.amp:
            self.stamp(5)
            a('s_cmp_ge_u32 s%d, 4' % WV)
        a('s_cbranch_scc1 L_helper')
        for j in range(4):
            a(ldB(j, False)[0])
        if o['prio']:
            a('s_setprio 3')
        order = [(7, 0), (6, 0), (5, 0), (4, 0), (6, 1), (5, 1), (4, 1), (5, 2), (4, 2), (4, 3)]
        order += [(i, j) for j in range(4) for i in (3, 2, 1, 0)]
        order += [(3, 4), (2, 4), (2, 5), (1, 4), (1, 5), (1, 6), (0, 4), (0, 5), (0, 6), (0, 7)]
        after = {}
        for slot, kind, idx, nxt in [(1, 'A', 0, 0), (3, 'A', 7, 1), (5, 'A', 6, 1), (7, 'B', 4, 0), (8, 'A', 5, 1), (10, 'A', 4, 1),
                                     (12, 'B', 5, 0), (13, 'B', 6, 0), (14, 'B', 0, 1), (15, 'B', 7, 0), (18, 'B', 1, 1), (22, 'B', 2, 1),
                                     (26, 'B', 3, 1), (27, 'A', 3, 1), (29, 'A', 2, 1), (32, 'A', 1, 1)]:
            for k, l in enumerate((ldA if kind == 'A' else ldB)(idx, nxt)):
                after.setdefault(slot + k, []).append((kind + str(idx), l))
        issued, last, done = 0, {}, 0
        waits, hist = {}, []
        for it in range(4):
            for slot, (i, j) in enumerate(order, 1):
                needed = max(last.get('A%d' % i, 0), last.get('B%d' % j, 0))
                if needed > done:
                    n = min(issued - needed, sum(hist[-8:]))
                    done = issued - n
                    waits.setdefault(it, {})[slot] = n
                hist.append(len(after.get(slot, [])))
                for key, l in after.get(slot, []):
                    issued += 1
                    last[key] = issued
        assert waits[2] == waits[3]
        waits = waits[3]
        a('.p2align 5')
        a('s_nop 0')
        a('s_waitcnt lgkmcnt(0)')
        a('L_mfma:')
        for slot, (i, j) in enumerate(order, 1):
            if slot in waits:
                a('s_waitcnt lgkmcnt(%d)' % waits[slot])
            g = 64 + 4 * (i + j)
            a('v_mfma_f32_16x16x32_bf16 %s, %s, %s, %s' % (vr(g, 4), vr(A(i), 4), vr(B(j), 4), vr(g, 4)))
            for key, l in after.get(slot, []):
                a(l)
            if slot == 34:
                a('v_add_u32 v%d, 64, v%d' % (vA, vA))
                a('v_add_u32 v%d, 64, v%d' % (vB, vB))
            if slot == 35:
                a('s_add_u32 s72, s72, 1')
                a('s_cmp_lt_u32 s72, %d' % o['iters'])
        a('s_cbranch_scc1 L_mfma')

        def emit(g):
            r = 64 + 4 * g
            a('v_cvt_pk_bf16_f32 v%d, v%d, v%d' % (44 + 2 * g, r, r + 1))
            a('v_cvt_pk_bf16_f32 v%d, v%d, v%d' % (45 + 2 * g, r + 2, r + 3))
            a('ds_write_b64 v%d, %s offset:%d' % (vZW, vr(44 + 2 * g, 2), 640 * g))
        if o['peel']:
            last = order[:26] + [(0, 4), (1, 4), (0, 5), (2, 4), (1, 5), (0, 6), (3, 4), (2, 5), (1, 6), (0, 7)]
            cur = {1: ldA(0, 0)[:1], 2: ldA(0, 0)[1:], 3: ldB(4, 0), 4: ldB(5, 0), 5: ldB(6, 0), 6: ldB(7, 0)}
            out = {22: 0, 25: 1, 28: 2, 30: 3, 32: 4, 34: 5}
            for slot, (i, j) in enumerate(last, 1):
                if slot == 8:
                    a('s_waitcnt lgkmcnt(6)')
                if slot == 14:
                    a('s_waitcnt lgkmcnt(0)')
                g = 64 + 4 * (i + j)
                a('v_mfma_f32_16x16x32_bf16 %s, %s, %s, %s' % (vr(g, 4), vr(A(i), 4), vr(B(j), 4), vr(g, 4)))
                for l in cur.get(slot, []):
                    a(l)
                if slot in out:
                    emit(out[slot])
            self.stamp(6)
            emit(6)
            emit(7)
        else:
            self.stamp(6)
            for g in range(8):
                emit(g)
        a('s_mov_b64 exec, 1')
        a('ds_add_rtn_u32 v60, v30, v31')
        a('s_mov_b32 s72, 3')
        l, d = self.spin_head('zs')
        a('s_waitcnt lgkmcnt(0)')
        a('v_cmp_eq_u32 vcc, s72, v60')
        a('s_cbranch_vccnz %s' % d)
        a('ds_read_b32 v60, v30')
        a('s_mov_b32 s72, 4')
        a('s_add_u32 s79, s79, 1')
        a('s_cmp_gt_u32 s79, %d' % (SPIN * 16))
        a('s_cbranch_scc0 %s' % l)
        a('%s:' % d)
        a('s_mov_b64 exec, -1')
        self.stamp(7)
        for k, (va, off) in enumerate(((vZG0, 0), (vZG1, 0), (vZG0, 10), (vZG1, 10))):
            a('ds_read2st64_b32 %s, v%d offset0:%d offset1:%d' % (vr(80 + 4 * k, 2), va, off, off + 20))
            a('ds_read2st64_b32 %s, v%d offset0:%d offset1:%d' % (vr(82 + 4 * k, 2), va, off + 40, off + 60))
        for k in range(4):
            a('s_waitcnt lgkmcnt(%d)' % (6 - 2 * k))
            a('buffer_store_dwordx4 %s, v%d, %s, s%d offen offset:%d sc1' % (vr(80 + 4 * k, 4), vL16, srd(sWS), 80 + k // 2, 1024 * (k % 2)))
        if o['prio']:
            a('s_setprio 0')
        a('L_zjoin:')
        a('s_cmp_ge_u32 s2, %d' % N_ROW)
        a('s_cbranch_scc1 L_end')
        self.row_addresses()
        a('L_zjoin2:')
        a('s_mul_i32 s72, s%d, %d' % (WV, 16 * KVREG))
        a('s_lshl_b32 s73, s%d, 7' % RW)
        a('s_add_u32 s72, s72, s73')
        a('s_add_u32 s81, s72, %d' % KVX)
        a('s_add_u32 s80, s81, %d' % KVREG)
        a('s_mul_i32 s73, s%d, 20480' % RW)
        self.stamp(3)
        a('s_waitcnt lgkmcnt(0)' if (o['twob'] or not o['zack']) else 's_waitcnt vmcnt(%d) lgkmcnt(0)' % (o['zack'] - 1))
        a('s_barrier')

    def helper(self):
        a = self.a
        o = self.opt
        a('L_helper:')
        a('s_cmp_lg_u32 s%d, 4' % WV)
        a('s_cbranch_scc1 L_hq')
        self.go_flag()
        a('L_hq:')
        a('L_hq1:')
        if o['wrearly']:
            a('v_subrev_u32 v40, 320, v0')
            a('v_lshlrev_b32 v41, 2, v40')
            a('buffer_load_dword v76, v41, %s, 0 offen' % srd(sWR))
        a('v_lshlrev_b32 v48, 4, v%d' % C16)
        self.mad(49, R4, 1280, 48)
        a('v_mov_b32 v50, %s' % OOB)
        a('s_cmp_lt_u32 s2, %d' % N_ROW)
        a('s_cselect_b64 vcc, -1, 0')
        a('s_sub_u32 s74, s%d, 6' % WV)
        a('s_cselect_b64 vcc, 0, vcc')
        a('s_and_b32 s74, s74, 3')
        a('s_lshl2_add_u32 s72, s%d, s74' % RW)
        a('s_mul_i32 s72, s72, 5120')
        a('s_cbranch_vccz L_hq2')
        for i in range(5):
            a('buffer_load_dwordx4 %s, v49, %s, s72 offen offset:%d' % (vr(120 + 4 * i, 4), srd(sQ), 256 * i))
        a('s_cmp_ge_u32 s%d, 8' % WV)
        a('s_cbranch_scc1 L_hmod')
        if o['gupf'] == 5:
            self.gu_prefetch()
        a('s_branch L_hq3')
        a('L_hq2:')
        a('s_cmp_ge_u32 s%d, 8' % WV)
        a('s_cbranch_scc1 %s' % ('L_hpf' if o['gupf'] == 7 else 'L_end'))
        if o['gupf'] == 5:
            self.gu_prefetch()
        a('L_hq3:')
        self.hstamp(9)
        if o['gupf'] == 1:
            self.gu_prefetch()
        if o['gupf'] == 2:
            a('s_cmp_ge_u32 s%d, 6' % WV)
            a('s_cbranch_scc1 L_nogu')
            self.gu_prefetch()
            a('s_add_u32 s72, s72, %d' % (16 * 3456))
            a('buffer_load_dword v163, v41, %s, s72 offen' % srd(sWG))
            a('L_nogu:')
        a('s_cmp_lt_u32 s2, %d' % N_ROW)
        a('s_cbranch_scc1 L_hrow')
        if o['gupf'] in (3, 4):
            self.gu_prefetch()
        if o['gupf'] == 6:
            self.gu_prefetch(shift=10)
        if o['gupf'] == 7:
            a('L_hpf:')
            self.mm_gu_prefetch()
        elif o['dnpf']:
            self.dn_prefetch(75)
        a('s_branch L_end')
        a('L_hrow:')
        a('s_cmp_lg_u32 s%d, 4' % WV)
        a('s_cbranch_scc1 L_hmod')
        a('s_mul_i32 s72, s%d, 1280' % RW)
        a('s_add_u32 s72, s72, %d' % H2G)
        a('buffer_store_dwordx4 v[44:47], v%d, %s, s72 offen sc1' % (vL16, srd(sWS)))
        a('buffer_store_dword v44, v%d, %s, s72 offen offset:1024 sc1' % (vL4, srd(sWS)))
        if o['hoist']:
            self.row_addresses()
        a('s_lshr_b32 s72, s%d, 4' % RW)
        a('s_mul_i32 s72, s72, 20480')
        a('s_add_u32 s72, s72, %d' % F2)
        a('s_add_u32 s73, s72, 8192')
        a('s_add_u32 s74, s72, 12288')
        a('v_lshlrev_b32 v40, 7, v%d' % LANE)
        if o['f2wait']:
            a('s_waitcnt vmcnt(0)')
        l, d = self.spin_head('clr')
        a('s_sleep %d' % o['fsleep'])
        for k in range(3):
            a('buffer_load_dword v%d, v40, %s, s%d offen sc1' % (41 + k, srd(sWS), 72 + k))
        self.spin_bound(d)
        a('s_waitcnt vmcnt(0)')
        a('v_cmp_ne_u32 vcc, s%d, v41' % TAG)
        a('v_cmp_ne_u32 s[70:71], s%d, v42' % TAG)
        a('s_or_b64 s[70:71], s[70:71], vcc')
        a('v_cmp_ne_u32 vcc, s%d, v43' % TAG)
        a('s_or_b64 exec, s[70:71], vcc')
        a('s_cbranch_scc1 %s' % l)
        a('%s:' % d)
        a('s_mov_b64 exec, -1')
        self.stamp(7)
        a('s_branch %s' % ('L_zjoin2' if o['hoist'] else 'L_zjoin'))
        a('L_hmod:')
        self.hstamp(11)
        a('s_mov_b32 s69, s74')
        if o['hoist']:
            self.row_addresses()
        a('v_subrev_u32 v40, 320, v0')
        a('v_lshlrev_b32 v41, 2, v40')
        if not o['wrearly']:
            a('buffer_load_dword v76, v41, %s, 0 offen' % srd(sWR))
        a('v_lshlrev_b32 v41, 3, v40')
        a('v_add_u32 v42, %d, v41' % PAR)
        a('s_mov_b32 s72, %d' % MODG)
        a('s_mov_b32 s73, %d' % (MODG + 5120))
        a('s_mov_b32 s74, %d' % (MODG + 10240))

        def modloads():
            for v in range(6):
                a('buffer_load_dwordx2 %s, v41, %s, s%d offen offset:%d sc1' % (vr(64 + 2 * v, 2), srd(sWS), 72 + v // 2, 2560 * (v % 2)))
        if o['qfirst']:
            a('s_cmp_lt_u32 s%d, 8' % WV)
            a('s_waitcnt vmcnt(2)')
            a('s_cbranch_scc1 L_qhere')
        a('s_waitcnt vmcnt(0)')
        a('L_qhere:')
        if not o['modafter']:
            modloads()
        a('s_cmp_eq_u32 s%d, 5' % WV)
        a('s_cbranch_scc1 L_noqs')
        if o['gupf'] == 3:
            a('s_mov_b32 s75, s69')
            self.gu_prefetch(54, 82)
        a('s_mul_i32 s70, s69, %d' % (4 * QPITCH))
        a('s_add_u32 s70, s70, %d' % QS)
        self.mad(52, R4, QPITCH, 48)
        a('v_add_u32 v52, s70, v52')
        a('s_lshl_b32 s70, s69, 5')
        a('s_add_u32 s70, s70, %d' % ST1)
        a('v_bfe_u32 v43, v0, 5, 1')
        a('v_lshl_add_u32 v43, v43, 4, s70')
        a('v_bfe_u32 v44, v0, 4, 1')
        a('v_lshl_add_u32 v43, v44, 2, v43')
        for i in range(5):
            a('ds_write_b128 v52, %s offset:%d' % (vr(120 + 4 * i, 4), 256 * i))
        for i in range(20):
            self.unpack(50, 51, 120 + i)
            if i == 0:
                a('v_add_f32 v44, v50, v51')
                a('v_mul_f32 v46, v50, v50')
            else:
                a('v_add_f32 v44, v44, v50')
                a('v_fmac_f32 v46, v50, v50')
                a('v_add_f32 v44, v44, v51')
            a('v_fmac_f32 v46, v51, v51')
        self.row_allreduce16([44, 46])
        a('v_mul_f32 v44, 0xbacccccd, v44')
        a('v_mul_f32 v46, 0x3acccccd, v46')
        a('v_fma_f32 v46, -v44, v44, v46')
        a('v_max_f32 v46, 0, v46')
        a('v_add_f32 v46, 0x3727c5ac, v46')
        a('v_rsq_f32 v46, v46')
        a('v_mul_f32 v44, v44, v46')
        a('ds_write2_b32 v43, v46, v44 offset0:0 offset1:2')
        self.stamp(7)
        a('L_noqs:')
        if o['modafter']:
            modloads()
        l, d = self.spin_head('mod')
        a('s_waitcnt vmcnt(0)')
        for v in range(6):
            a('v_xor_b32 v%d, s%d, v%d' % (65 + 2 * v, TAG, 65 + 2 * v))
        a('v_or3_b32 v65, v65, v67, v69')
        a('v_or3_b32 v71, v71, v73, v75')
        a('v_or_b32 v65, v65, v71')
        a('v_cmp_ne_u32 vcc, 0, v65')
        a('s_cbranch_vccz %s' % d)
        modloads()
        a('s_add_u32 s79, s79, 1')
        a('s_cmp_gt_u32 s79, %d' % SPIN)
        a('s_cbranch_scc0 %s' % l)
        a('s_waitcnt vmcnt(0)')
        a('%s:' % d)
        self.hstamp(12)
        if o['gupf'] == 4:
            a('s_cmp_eq_u32 s%d, 5' % WV)
            a('s_cbranch_scc1 L_nogu4')
            a('s_mov_b32 s75, s69')
            self.gu_prefetch(54, 82)
            a('L_nogu4:')
        if o['hdiag']:
            a('s_mul_i32 s79, s79, 100')
            a('s_add_u32 s94, s84, s79')
        for v in range(7):
            self.unpack(80 + 2 * v, 81 + 2 * v, 64 + 2 * v)
        for r in (82, 83, 88, 89):
            a('v_add_f32 v%d, 1.0, v%d' % (r, r))
            a('v_cvt_pk_bf16_f32 v%d, 0, v%d' % (r, r))
        for k in range(2):
            a('v_mul_f32 v%d, v%d, v%d' % (82 + k, 82 + k, 84 + k))
            a('v_mul_f32 v%d, v%d, v%d' % (80 + k, 80 + k, 84 + k))
            a('v_mul_f32 v%d, v%d, v%d' % (94 + k, 86 + k, 92 + k))
            a('v_mul_f32 v%d, v%d, v%d' % (92 + k, 88 + k, 92 + k))
        for v, r in enumerate((82, 80, 88, 86, 90, 92)):
            a('ds_write_b64 v42, %s offset:%d' % (vr(r, 2), 2560 * v))
        a('v_add_f32 v44, v92, v93')
        a('v_add_f32 v46, v94, v95')
        self.row_allreduce16([44, 46])
        a('v_cvt_f64_f32 v[44:45], v44')
        a('v_cvt_f64_f32 v[46:47], v46')
        a('v_mov_b32 v42, %d' % CS)
        a('s_mov_b32 exec_lo, 0x00010001')
        a('s_mov_b32 exec_hi, 0x00010001')
        a('ds_add_f64 v42, v[44:45]')
        a('ds_add_f64 v42, v[46:47] offset:8')
        a('s_mov_b64 exec, -1')
        self.stamp(6)
        a('s_branch %s' % ('L_zjoin2' if o['hoist'] else 'L_zjoin'))

    def rows(self):
        a, o = self.a, self.opt
        Q, P, Z = 96, 112, 136
        sel = lambda s: 'op_sel:[0,%d,%d] op_sel_hi:[1,%d,%d]' % (s, s, s, s)

        def zloads():
            a('buffer_load_dwordx4 v[128:131], v%d, %s, s81 offen sc1' % (vZLD, srd(sWS)))
            a('buffer_load_dwordx4 v[132:135], v%d, %s, s80 offen sc1' % (vZLD, srd(sWS)))
        if not o['twob']:
            self.stamp(8)
            zloads()
        a('ds_read_b128 v[32:35], v%d' % vQS)
        a('ds_read_b128 v[36:39], v%d offset:%d' % (vQS, QPITCH))
        a('ds_read_b128 v[40:43], v%d' % vST1)
        par = (136, 144, 44, 52, 60, 68)

        def parload(v):
            a('ds_read_b128 %s, v%d offset:%d' % (vr(par[v], 4), vPAR, 2560 * v))
            a('ds_read_b128 %s, v%d offset:%d' % (vr(par[v] + 4, 4), vPAR, 2560 * v + 16))
        for v in (0, 1):
            parload(v)
        A1, A2, B1, B2, G, W = par
        a('v_mov_b32 v30, %d' % CS)
        a('ds_read_b128 v[76:79], v30')
        a('s_lshl_b32 s72, s%d, 7' % WV)
        a('s_add_u32 s76, s72, s73')
        a('s_add_u32 s77, s76, 10240')
        a('s_mul_i32 s73, s%d, 1280' % RW)
        a('s_add_u32 s73, s73, s72')
        a('s_add_u32 s74, s73, %d' % H2G)
        a('s_lshl_b32 s73, s73, 2')
        a('s_add_u32 s75, s73, %d' % BASEG)
        a('s_mul_i32 s73, s%d, %d' % (RW, o['kstride']))
        a('s_add_u32 s78, s73, %d' % (KEYR if o['krep'] else KEYS))
        a('v_lshlrev_b32 v85, 15, v%d' % C16)
        a('s_mov_b32 s82, s%d' % TAG)
        a('s_mov_b32 s64, 0x3acccccd')
        a('s_mov_b32 s65, 0x3acccccd')
        a('s_mov_b32 s68, 0xfffff800')
        a('s_mov_b32 s69, 0x3727c5ac')
        a('s_waitcnt lgkmcnt(5)')
        for c in range(8):
            for rho in range(2):
                src = 32 + 4 * rho + c // 2
                if c % 2 == 0:
                    a('v_lshlrev_b32 v%d, 16, v%d' % (Q + 2 * c + rho, src))
                else:
                    a('v_and_b32 v%d, v%d, v%d' % (Q + 2 * c + rho, vHI, src))
        for c in range(8):
            a('v_pk_fma_f32 %s, %s, v[40:41], v[42:43]' % (vr(P + 2 * c, 2), vr(Q + 2 * c, 2)))
        a('s_waitcnt lgkmcnt(0)')
        for c in range(8):
            e = c & ~1
            a('v_pk_fma_f32 %s, %s, %s, %s %s' % (vr(P + 2 * c, 2), vr(P + 2 * c, 2), vr(A1 + e, 2), vr(A2 + e, 2), sel(c & 1)))
        a('v_subrev_u32 v31, 1, v%d' % vIDX)
        a('v_cvt_f32_f64 v76, v[76:77]')
        a('v_cvt_f32_f64 v77, v[78:79]')
        a('v_mov_b32 v89, v167')
        a('v_mov_b32 v91, v167')
        a('v_lshlrev_b32 v84, 4, v%d' % L8)
        a('v_sub_u32 v84, v%d, v84' % vH2)
        a('v_sub_u32 v86, v%d, v%d' % (vBASE, vL4))
        if o['twob']:
            if o['twob'] == 1:
                a('s_waitcnt vmcnt(0)')
                a('s_barrier')
            self.stamp(8)
            zloads()
        for v in (5, 2, 3, 4):
            parload(v)
        self.data_confirm('z', zloads, 131, 135, 10)
        self.stamp(9)
        a('s_waitcnt lgkmcnt(0)')
        S1, S2, S3 = 152, 154, 156
        for h in range(2):
            for c in range(4 * h, 4 * h + 4):
                self.unpack(Z + 2 * c, Z + 2 * c + 1, 128 + c)
            for c in range(4 * h, 4 * h + 4):
                a('v_pk_fma_f32 %s, %s, %s, %s' % (vr(Q + 2 * c, 2), vr(P + 2 * c, 2), vr(Z + 2 * c, 2), vr(Q + 2 * c, 2)))
            for c in range(4 * h, 4 * h + 4):
                x = vr(Q + 2 * c, 2)
                s, e = c & 1, c & ~1
                if c == 0:
                    a('v_pk_mul_f32 %s, %s, %s' % (vr(S2, 2), x, x))
                    a('v_pk_mul_f32 %s, %s, %s op_sel:[0,0] op_sel_hi:[1,0]' % (vr(S3, 2), x, vr(W, 2)))
                else:
                    a('v_pk_add_f32 %s, %s, %s' % (vr(S1, 2), vr(Q, 2) if c == 1 else vr(S1, 2), x))
                    a('v_pk_fma_f32 %s, %s, %s, %s' % (vr(S2, 2), x, x, vr(S2, 2)))
                    a('v_pk_fma_f32 %s, %s, %s, %s op_sel:[0,%d,0] op_sel_hi:[1,%d,1]' % (vr(S3, 2), x, vr(W + e, 2), vr(S3, 2), s, s))
        for s in (S1, S2, S3):
            a('v_permlane32_swap_b32 v%d, v%d' % (s, s + 1))
        for s in (S1, S2, S3):
            a('v_add_f32 v%d, v%d, v%d' % (s, s, s + 1))
        a('v_permlane16_swap_b32 v%d, v%d' % (S1, S2))
        a('v_add_f32_dpp v%d, v%d, v%d row_ror:8 row_mask:0xf bank_mask:0xc' % (S3, S3, S3))
        a('v_add_f32 v%d, v%d, v%d' % (S1, S1, S2))
        a('v_add_f32_dpp v%d, v%d, v%d row_ror:8 row_mask:0xf bank_mask:0x3' % (S3, S1, S1))
        a('v_cvt_f64_f32 %s, v%d' % (vr(S1, 2), S3))
        a('ds_add_f64 v%d, %s' % (vSADD, vr(S1, 2)))
        if o['keyprio']:
            a('s_cmp_lg_u32 s%d, 2' % WV)
            a('s_cbranch_scc1 L_noprio')
            a('s_setprio 3')
            a('L_noprio:')
        a('s_waitcnt lgkmcnt(0)')
        a('s_barrier')
        a('ds_read_b128 v[128:131], v%d' % vSRD)
        a('ds_read_b128 v[132:135], v%d offset:16' % vSRD)
        a('ds_read_b128 v[152:155], v%d offset:32' % vSRD)
        a('s_waitcnt lgkmcnt(1)')
        for i in range(4):
            a('v_cvt_f32_f64 v%d, %s' % (32 + i, vr(128 + 2 * i, 2)))
        a('v_pk_mul_f32 v[32:33], v[32:33], s[64:65]')
        a('v_pk_mul_f32 v[34:35], v[34:35], s[64:65]')
        a('v_pk_fma_f32 v[34:35], v[32:33], v[32:33], v[34:35] neg_lo:[1,0,0] neg_hi:[1,0,0]')
        a('v_max_f32 v34, 0, v34')
        a('v_max_f32 v35, 0, v35')
        a('v_add_f32 v34, s69, v34')
        a('v_add_f32 v35, s69, v35')
        a('v_rsq_f32 v34, v34')
        a('v_rsq_f32 v35, v35')
        a('s_waitcnt lgkmcnt(0)')
        a('v_cvt_f32_f64 v36, v[152:153]')
        a('v_cvt_f32_f64 v37, v[154:155]')
        a('v_pk_fma_f32 v[36:37], v[32:33], v[76:77], v[36:37] op_sel_hi:[1,0,1] neg_lo:[1,0,0] neg_hi:[1,0,0]')
        a('v_pk_fma_f32 v[36:37], v[36:37], v[34:35], v[76:77] op_sel:[0,0,1] op_sel_hi:[1,1,1]')
        for r, t in ((36, 38), (37, 39)):
            a('v_ashrrev_i32 v%d, 31, v%d' % (t, r))
        for r, t in ((36, 38), (37, 39)):
            a('v_or_b32 v%d, 0x80000000, v%d' % (t, t))
        for r, t in ((36, 38), (37, 39)):
            a('v_xor_b32 v%d, v%d, v%d' % (r, r, t))
        for r, ix in ((36, vIDX), (37, 31)):
            a('v_and_or_b32 v%d, v%d, s68, v%d' % (r, r, ix))
        a('v_max_u32 v166, v36, v37')
        a('v_max_u32_dpp v166, v166, v166 quad_perm:[1,0,3,2] %s' % DPP)
        a('v_max_u32_dpp v166, v166, v166 quad_perm:[2,3,0,1] %s' % DPP)
        a('v_max_u32_dpp v166, v166, v166 row_half_mirror %s' % DPP)
        a('s_cmp_lg_u32 s%d, 2' % WV)
        a('s_cbranch_scc1 L_nokey')
        a('s_mov_b64 exec, %d' % (0xff if o['krep'] else 1))
        a('buffer_store_dwordx2 v[166:167], v85, %s, s78 offen sc1' % srd(sWS))
        a('s_mov_b64 exec, -1')
        a('L_nokey:')
        self.stamp(11)
        a('v_readfirstlane_b32 s72, v166')
        a('v_pk_mul_f32 v[32:33], v[32:33], v[34:35] neg_lo:[1,0] neg_hi:[1,0]')
        for c in range(8):
            a('v_pk_fma_f32 %s, %s, v[34:35], v[32:33]' % (vr(Z + 2 * c, 2), vr(Q + 2 * c, 2)))
        for c in range(8):
            e = c & ~1
            a('v_pk_fma_f32 %s, %s, %s, %s %s' % (vr(Z + 2 * c, 2), vr(Z + 2 * c, 2), vr(B1 + e, 2), vr(B2 + e, 2), sel(c & 1)))
        a('s_not_b32 s72, s72')
        a('s_bfe_u32 s73, s72, 0x30001')
        a('s_mov_b32 s70, 0x01010101')
        a('s_mov_b32 s71, 0x01010101')
        a('s_lshl_b64 s[70:71], s[70:71], s73')
        a('s_bitcmp1_b32 s72, 0')
        a('s_cbranch_scc1 L_h2odd')
        for k in range(4):
            a('v_cvt_pk_bf16_f32 v%d, v%d, v%d' % (80 + k, Z + 4 * k, Z + 4 * k + 2))
        a('s_branch L_h2st')
        a('L_h2odd:')
        for k in range(4):
            a('v_cvt_pk_bf16_f32 v%d, v%d, v%d' % (80 + k, Z + 4 * k + 1, Z + 4 * k + 3))
        a('L_h2st:')
        a('s_mov_b64 exec, s[70:71]')
        a('ds_write_b128 v84, v[80:83]')
        a('s_mov_b32 exec_lo, -1')
        a('s_mov_b32 exec_hi, 0')
        a('ds_read_b32 v87, v86')
        a('s_waitcnt lgkmcnt(0)')
        a('buffer_store_dword v87, v%d, %s, s74 offen sc1' % (vL4, srd(sWS)))
        a('s_mov_b64 exec, -1')
        self.stamp(12)
        if o['h2bar']:
            a('s_barrier')
        for c in range(8):
            e, s = c & ~1, c & 1
            a('v_pk_fma_f32 %s, %s, %s, %s op_sel:[0,%d,0] op_sel_hi:[1,%d,1]' % (vr(P + 2 * c, 2), vr(Z + 2 * c, 2), vr(G + e, 2), vr(Q + 2 * c, 2), s, s))
        for rho in range(2):
            for k in range(4):
                a('v_cvt_pk_bf16_f32 v%d, v%d, v%d' % (32 + 4 * rho + k, P + 4 * k + rho, P + 4 * k + 2 + rho))
        a('ds_write_b128 v%d, v[32:35]' % vQS)
        a('ds_write_b128 v%d, v[36:39] offset:%d' % (vQS, QPITCH))
        a('ds_read_b128 v[128:131], v%d' % vORD)
        a('ds_read_b128 v[132:135], v%d offset:%d' % (vORD, 8 * QPITCH))
        if o['h2wait']:
            a('s_waitcnt vmcnt(0)')
        a('s_waitcnt lgkmcnt(1)')
        a('buffer_store_dwordx4 v[128:131], v%d, %s, s76 offen sc1' % (vOST, srd(sO)))
        a('s_waitcnt lgkmcnt(0)')
        a('buffer_store_dwordx4 v[132:135], v%d, %s, s77 offen sc1' % (vOST, srd(sO)))
        a('s_mov_b64 exec, s[70:71]')
        a('s_bitcmp1_b32 s72, 0')
        a('s_cbranch_scc1 L_bodd')
        for k in range(4):
            a('ds_write2_b32 v%d, v%d, v%d offset0:%d offset1:%d' % (vH2, P + 4 * k, P + 4 * k + 2, 2 * k, 2 * k + 1))
        a('s_branch L_bst')
        a('L_bodd:')
        for k in range(4):
            a('ds_write2_b32 v%d, v%d, v%d offset0:%d offset1:%d' % (vH2, P + 4 * k + 1, P + 4 * k + 3, 2 * k, 2 * k + 1))
        a('L_bst:')
        a('s_mov_b32 exec_lo, -1')
        a('s_mov_b32 exec_hi, 0')
        a('ds_read_b32 v88, v%d' % vBASE)
        a('ds_read_b32 v90, v%d offset:4' % vBASE)
        a('s_waitcnt vmcnt(0) lgkmcnt(0)')
        a('buffer_store_dwordx4 v[88:91], v%d, %s, s75 offen sc1' % (vL16, srd(sWS)))
        a('s_mov_b64 exec, -1')
        self.stamp(13)
        a('s_branch L_end')

    def nonconv(self):
        a = self.a
        MR, MP, GR, DR, GP, DP = 96, 60, 72, 112, 32, 12
        vGUA, vGUR, vXS, vKM, vPT, vRD = 154, 155, 160, 161, 162, 153
        a('L_nonconv:')
        a('s_mov_b32 s64, 0x05040100')
        a('s_mov_b32 s65, 0x07060302')
        a('v_lshlrev_b32 v131, 3, v%d' % C16)
        a('v_lshlrev_b32 v132, 2, v%d' % C16)
        a('v_mov_b32 v157, v167')
        a('v_mov_b32 v159, v167')
        a('v_bfe_u32 v137, v0, 5, 1')
        a('v_and_b32 v130, 31, v0')
        a('v_lshlrev_b32 v130, 2, v130')
        self.mad(134, R4, 40 * 3456, 132)
        self.mad(135, 137, 16 * 1280, 130)
        a('v_lshl_add_u32 v136, v137, 6, v132')
        a('s_sub_u32 s70, s2, %d' % MOD0)
        a('s_max_u32 s68, s2, %d' % MLP0)
        a('s_sub_u32 s68, s68, %d' % MLP0)
        a('s_and_b32 s73, s68, 7')
        a('s_bfe_u32 s74, s68, 0x10003')
        a('s_lshl_b32 s73, s73, 1')
        a('s_add_u32 s73, s73, s74')
        a('s_and_b32 s74, s68, 0x30')
        a('s_add_u32 s73, s73, s74')
        a('s_cmp_lt_u32 s68, 48')
        a('s_cselect_b32 s68, s73, s68')
        a('s_sub_u32 s69, 7, s%d' % WV)
        a('s_bitcmp1_b32 s68, %d' % (0 if self.opt['rev'] else 8))
        a('s_cselect_b32 s69, s69, s%d' % WV)
        a('s_and_b32 s69, s69, 7')
        a('s_bitcmp1_b32 s69, 0')
        a('s_cselect_b64 s[%d:%d], s[%d:%d], s[%d:%d]' % (sWG, sWG + 1, sWU, sWU + 1, sWG, sWG + 1))
        a('s_lshr_b32 s71, s69, 1')
        a('s_mul_i32 s74, s71, %d' % (160 * 3456))
        a('s_lshl_b32 s73, s68, 6')
        a('s_add_u32 s74, s74, s73')
        a('s_mul_i32 s76, s68, %d' % (32 * 1280))
        a('s_lshl_b32 s73, s%d, 7' % WV)
        a('s_add_u32 s76, s76, s73')
        a('s_and_b32 s82, s69, 1')
        a('s_lshl_b32 s82, s82, 3')
        a('s_add_u32 s82, s82, %d' % GU)
        a('v_lshl_add_u32 v129, v%d, 5, s82' % C16)
        a('v_lshl_add_u32 v%d, v137, 4, v129' % vGUA)
        a('v_lshlrev_b32 v129, 2, v136')
        a('v_add_u32 v%d, %d, v129' % (vGUR, GU))
        a('s_mul_i32 s82, s71, 320')
        a('s_add_u32 s82, s82, %d' % H2G)
        a('v_min_u32 v129, 72, v131')
        a('v_add_u32 v129, s82, v129')
        self.mad(vXS, R4, 80, 129)
        a('s_mul_i32 s82, s68, 5120')
        a('s_lshl_b32 s73, s%d, 9' % WV)
        a('s_add_u32 s82, s82, s73')
        a('s_add_u32 s81, s82, %d' % PART)
        a('s_mov_b32 s78, s%d' % TAG)
        if self.opt['wmpf']:
            a('s_cmp_lt_u32 s2, 224')
            a('s_cbranch_scc1 L_nowm')
            a('s_barrier')
            if self.opt['wmpf'] == 3:
                n = self.opt['wmn']
                a('s_cmp_ge_u32 s%d, %d' % (WV, n))
                a('s_cbranch_scc1 L_nowm')
                self.wm_prefetch(None, n)
            else:
                a('s_cmp_lt_u32 s%d, 8' % WV)
                a('s_cbranch_scc1 L_nowm')
                self.wm_prefetch(8)
            a('L_nowm:')
        a('s_cmp_ge_u32 s2, %d' % (MLP0 + N_MLP))
        a('s_cbranch_scc1 L_end')
        def gowait():
            a('s_cmp_lg_u32 s%d, 1' % WV)
            a('s_cbranch_scc1 L_bggo')
            a('s_and_b32 s80, s2, 7')
            a('s_mul_i32 s80, s80, %d' % (2560 + 20480))
            a('s_add_u32 s80, s80, %d' % F2)
            self.poll16('bg', 80, 148, sleep=self.opt['gsleep'])
            a('L_bggo:')
        if self.opt['bg'] == 1:
            gowait()
        if self.opt['modwait']:
            a('s_cmp_ge_u32 s2, %d' % (FREE0 + N_FREE))
            a('s_cbranch_scc1 L_mw')
            a('s_cmp_lg_u32 s%d, 0' % WV)
            a('s_cbranch_scc1 L_mw')
            a('s_mul_i32 s80, s70, %d' % (KVREG + 512))
            a('s_add_u32 s80, s80, %d' % (KVX + 12))
            self.poll16('mw', 80, 148, sleep=2, mask='1')
            a('L_mw:')
        a('s_barrier')
        a('s_cmp_ge_u32 s2, %d' % (MOD0 + N_MOD))
        a('s_cbranch_scc1 L_mlp')
        if self.opt['modearly']:
            a('s_cmp_lt_u32 s2, %d' % (FREE0 + N_FREE))
            a('s_cbranch_scc1 L_modgo')
        self.mod_loads()
        a('L_modgo:')
        a('s_waitcnt vmcnt(32)')
        self.unpack(139, 138, 138)
        self.silu(139, 140)
        self.silu(138, 141)
        a('v_cvt_pk_bf16_f32 v138, v139, v138')
        for i in range(4):
            a('v_mov_b32 v%d, 0' % (140 + i))
        a('v_lshl_add_u32 v129, v130, 2, %d' % 0)
        a('v_lshl_add_u32 v129, v137, 3, v129')
        a('v_add_u32 v129, %d, v129' % MODACC)
        for t in range(16):
            a('s_waitcnt vmcnt(%d)' % (30 - 2 * t))
            self.pair_rows(MP + 2 * t, MR + 2 * t, MR + 1 + 2 * t)
            if t % 2 == 1:
                for u in (t - 1, t):
                    for c in range(2):
                        a('v_dot2c_f32_bf16_dpp v%d, v138, v%d row_newbcast:%d %s' % (140 + 2 * (u & 1) + c, MP + 2 * u + c, u, DPP))
        a('v_pk_add_f32 v[140:141], v[140:141], v[142:143]')
        a('v_permlane32_swap_b32 v140, v141')
        a('v_add_f32 v140, v140, v141')
        a('v_cvt_f64_f32 v[140:141], v140')
        a('ds_add_f64 v129, v[140:141]')
        a('v_lshlrev_b32 v129, 5, v%d' % C16)
        a('v_add_u32 v129, %d, v129' % MODACC)
        a('s_lshl_b32 s72, s70, 8')
        a('s_add_u32 s72, s72, %d' % MODG)
        a('s_cmp_lg_u32 s%d, 0' % WV)
        a('s_waitcnt lgkmcnt(0)')
        a('s_barrier')
        a('s_cbranch_scc1 L_modpub')
        a('s_mov_b64 exec, 0xffff')
        a('ds_read_b128 v[140:143], v129')
        a('ds_read_b128 v[144:147], v129 offset:16')
        a('s_waitcnt lgkmcnt(0)')
        for k in range(4):
            a('v_cvt_f32_f64 v%d, %s' % (140 + 2 * k, vr(140 + 2 * k, 2)))
        a('v_cvt_pk_bf16_f32 v156, v140, v142')
        a('v_cvt_pk_bf16_f32 v158, v144, v146')
        a('buffer_store_dwordx4 v[156:159], v%d, %s, s72 offen sc1' % (vL16, srd(sWS)))
        a('s_mov_b64 exec, -1')
        a('L_modpub:')
        self.stamp(3)
        if self.opt['dnpf']:
            a('s_cmp_ge_u32 s2, %d' % MLP0)
            a('s_cbranch_scc1 L_mlp')
            a('s_barrier')
            a('s_sub_u32 s75, s%d, 6' % WV)
            a('s_cbranch_scc1 L_nodn')
            if self.opt['gupf'] == 6:
                a('s_mov_b32 s78, s70')
                a('s_load_dwordx2 s[%d:%d], s[0:1], %d' % (sWG, sWG + 1, 8 * SLOT[sWG]))
                a('s_waitcnt lgkmcnt(0)')
                self.gu_prefetch(shift=10)
                a('s_mov_b32 s70, s78')
            if self.opt['gupf'] == 7:
                self.mm_dn_prefetch()
            else:
                self.dn_prefetch(75)
            a('L_nodn:')
        a('s_cmp_lt_u32 s2, %d' % (RED0 + N_RED))
        a('s_cbranch_scc1 L_keys')
        a('s_cmp_lt_u32 s2, %d' % MLP0)
        a('s_cbranch_scc1 L_end')
        a('L_mlp:')
        if self.opt['bg'] == 2:
            gowait()
        a('s_barrier')
        a('s_cmp_ge_u32 s%d, 8' % WV)
        a('s_cbranch_scc1 L_nogul')
        for t in range(20):
            a('buffer_load_dword v%d, v134, %s, s74 offen' % (GR + 2 * t, srd(sWG)))
            a('buffer_load_dword v%d, v134, %s, s74 offen offset:3456' % (GR + 1 + 2 * t, srd(sWG)))
            if t < 19:
                a('s_add_u32 s74, s74, 6912')
        a('L_nogul:')
        if self.opt['dnpf']:
            a('s_barrier')
        for i in range(16):
            a('buffer_load_dword v%d, v135, %s, s76 offen offset:%d' % (DR + i, srd(sWD), 1280 * (i % 4)))
            if i % 4 == 3:
                a('s_add_u32 s76, s76, 5120')
        a('s_waitcnt vmcnt(0)')
        for t in range(20):
            self.pair_rows(GP + 2 * t, GR + 2 * t, GR + 1 + 2 * t)
        for t in range(8):
            self.pair_rows(DP + 2 * t, DR + 2 * t, DR + 1 + 2 * t)
        for i in range(8):
            a('v_mov_b32 v%d, 0' % (140 + i))
        self.stamp(4)
        if self.opt['dry']:
            a('s_mov_b64 exec, 0')
            a('s_movk_i32 s73, 128')
            a('s_branch L_expert')
            a('L_dryout:')
            a('s_mov_b64 exec, -1')
        a('L_keys:')
        a('v_mov_b32 v129, %d' % KEYMAX)
        a('s_cmp_lt_u32 s%d, 8' % WV)
        a('s_cbranch_scc1 L_follow')
        a('s_and_b32 s73, s%d, 1' % WV)
        a('s_lshl_b32 s72, s73, 3')
        a('v_add_u32 v%d, s72, v129' % vKM)
        a('s_lshl_b32 s72, s73, 14')
        a('s_and_b32 s73, s2, 7')
        a('s_lshl_b32 s73, s73, 15')
        a('s_add_u32 s72, s72, s73')
        a('s_add_u32 s72, s72, %d' % KEYR)
        a('v_lshlrev_b32 v150, 8, v%d' % LANE)
        D = self.opt['kd']
        kld = lambda k: a('buffer_load_dwordx2 %s, v150, %s, s72 offen sc1' % (vr(72 + 2 * k, 2), srd(sWS)))
        for k in range(D - 1):
            kld(k)
        l, d = self.spin_head('keys')
        a('s_add_u32 s79, s79, 1')
        for k in range(D):
            kld((k + D - 1) % D)
            if self.opt['ks']:
                a('s_sleep %d' % self.opt['ks'])
            a('s_mov_b64 s[66:67], exec')
            a('s_waitcnt vmcnt(%d)' % (D - 1))
            a('v_cmp_ne_u32 vcc, v167, v%d' % (73 + 2 * k))
            a('s_cmp_gt_u32 s79, %d' % SPIN)
            a('s_cselect_b64 vcc, 0, vcc')
            a('s_andn2_b64 exec, s[66:67], vcc')
            a('s_cbranch_scc0 L_nonew%d' % k)
            a('ds_max_u32 v%d, v%d' % (vKM, 72 + 2 * k))
            a('s_bcnt0_i32_b64 s73, vcc')
            a('v_mov_b32 v151, s73')
            a('ds_write_b32 v%d, v151 offset:4' % vKM)
            a('L_nonew%d:' % k)
            a('s_and_b64 exec, vcc, vcc')
            a('s_cbranch_scc%d %s' % ((1, l) if k == D - 1 else (0, d)))
        a('%s:' % d)
        a('s_mov_b64 exec, -1')
        a('s_cmp_ge_u32 s2, %d' % MLP0)
        a('s_waitcnt lgkmcnt(0)')
        a('s_cbranch_scc1 L_stage2')
        a('L_follow:')
        a('s_cmp_ge_u32 s2, %d' % MLP0)
        a('s_cbranch_scc1 L_spec0')
        a('s_barrier')
        a('ds_read_b128 v[132:135], v129')
        a('s_waitcnt lgkmcnt(0)')
        a('v_max_u32 v132, v132, v134')
        a('v_readfirstlane_b32 s74, v132')
        a('s_not_b32 s75, s74')
        a('s_bfe_u32 s76, s75, 0x70004')
        self.stamp(5)
        a('s_branch L_red')
        a('L_spec0:')
        a('s_mov_b32 s75, -1')
        a('s_mov_b32 s79, 0')
        a('L_spec:')
        a('ds_read_b128 v[132:135], v129')
        a('s_add_u32 s79, s79, 1')
        a('s_cmp_gt_u32 s79, %d' % (SPIN * 16))
        a('s_cbranch_scc1 L_stage1done')
        a('s_waitcnt lgkmcnt(0)')
        a('v_max_u32 v132, v132, v134')
        a('v_add_u32 v133, v133, v135')
        a('v_readfirstlane_b32 s74, v132')
        a('v_readfirstlane_b32 s73, v133')
        a('s_not_b32 s74, s74')
        a('s_bfe_u32 s76, s74, 0x70004')
        a('s_cmp_eq_u32 s76, s75')
        a('s_cbranch_scc1 L_same')
        a('s_cmp_lt_u32 s73, %d' % self.opt['spec'])
        a('s_cbranch_scc1 L_spec')
        a('s_mul_i32 s77, s76, 1280')
        a('buffer_load_dwordx2 v[138:139], v%d, %s, s77 offen sc1' % (vXS, srd(sWS)))
        for i in range(4):
            a('v_mov_b32 v%d, 0' % (140 + i))
        a('s_mov_b32 s75, -1')
        a('s_waitcnt vmcnt(0)')
        a('v_cmp_eq_u32 vcc, s78, v138')
        a('v_cmp_eq_u32 s[66:67], s78, v139')
        a('s_or_b64 vcc, vcc, s[66:67]')
        a('s_cbranch_scc1 L_spec')
        a('s_mov_b32 s75, s76')
        self.stamp(6)
        a('L_expert:')
        for t in range(20):
            for c in range(2):
                a('v_dot2c_f32_bf16_dpp v%d, v%d, v%d row_newbcast:%d %s' % (140 + 2 * (t & 1) + c, 138 + (t & 1), GP + 2 * t + c, t >> 1, DPP))
        a('v_pk_add_f32 v[140:141], v[140:141], v[142:143]')
        a('v_permlane32_swap_b32 v140, v141')
        a('v_add_f32 v140, v140, v141')
        a('v_cvt_f64_f32 v[140:141], v140')
        a('L_same:')
        a('s_cmp_lt_u32 s73, 128')
        a('s_cbranch_scc1 L_spec')
        a('L_stage1done:')
        self.stamp(5)
        a('ds_add_f64 v%d, v[140:141]' % vGUA)
        a('s_waitcnt lgkmcnt(0)')
        a('L_stage2:')
        self.stamp(9)
        a('s_barrier')
        self.stamp(10)
        a('ds_read_b128 v[132:135], v%d' % vGUR)
        a('s_waitcnt lgkmcnt(0)')
        a('v_cvt_f32_f64 v138, v[132:133]')
        a('v_cvt_f32_f64 v139, v[134:135]')
        a('v_mul_f32 v137, 0xbfb8aa3b, v138')
        a('v_exp_f32 v137, v137')
        a('v_mul_f32 v138, v138, v139')
        a('v_add_f32 v137, 1.0, v137')
        a('v_rcp_f32 v137, v137')
        a('v_mul_f32 v138, v138, v137')
        a('v_mov_b32_dpp v139, v138 quad_perm:[1,0,3,2] %s' % DPP)
        a('v_cvt_pk_bf16_f32 v138, v138, v139')
        for t in range(8):
            for c in range(2):
                a('v_dot2c_f32_bf16_dpp v%d, v138, v%d row_newbcast:%d %s' % (144 + 2 * (t & 1) + c, DP + 2 * t + c, 2 * t, DPP))
        a('v_pk_add_f32 v[144:145], v[144:145], v[146:147]')
        a('v_permlane32_swap_b32 v144, v145')
        a('v_add_f32 v156, v144, v145')
        if self.opt['dry']:
            a('s_cbranch_execz L_dryout')
        a('v_permlane32_swap_b32 v156, v158')
        a('s_mov_b32 exec_hi, 0')
        self.stamp(11)
        a('buffer_store_dwordx4 v[156:159], v%d, %s, s81 offen sc1' % (vL16, srd(sWS)))
        self.stamp(7)
        a('s_branch L_end')
        a('L_red:')
        a('s_cmp_ge_u32 s%d, 7' % WV)
        a('s_cbranch_scc1 L_fin')
        a('s_lshl_b32 s72, s%d, 3' % WV)
        a('v_add_u32 v12, s72, v%d' % R4)
        a('v_add_u32 v13, 4, v12')
        a('v_cmp_gt_u32 s[66:67], %d, v13' % N_MLP)
        a('s_lshl_b32 s72, s70, 8')
        a('s_add_u32 s72, s72, %d' % PART)
        a('v_lshlrev_b32 v14, 4, v%d' % C16)
        self.mad(12, 12, 5120, 14)
        self.mad(13, 13, 5120, 14)
        a('v_bfe_u32 v15, v0, 5, 1')
        a('v_lshl_add_u32 v14, v15, 3, v14')
        a('v_add_u32 v14, %d, v14' % RED)
        a('v_mov_b32 v20, 0')
        a('v_mov_b32 v21, v167')
        a('v_mov_b32 v22, 0')
        a('v_mov_b32 v23, v167')
        a('s_mov_b64 s[68:69], -1')
        l, d = self.spin_head('part')
        a('s_mov_b64 exec, s[68:69]')
        a('buffer_load_dwordx4 v[16:19], v12, %s, s72 offen sc1' % srd(sWS))
        a('s_mov_b64 exec, s[66:67]')
        a('buffer_load_dwordx4 v[20:23], v13, %s, s72 offen sc1' % srd(sWS))
        a('s_mov_b64 exec, -1')
        self.spin_bound(d)
        a('s_waitcnt vmcnt(0)')
        a('v_cmp_ne_u32 s[68:69], v167, v19')
        a('v_cmp_ne_u32 s[66:67], v167, v23')
        a('s_or_b64 vcc, s[66:67], s[68:69]')
        a('s_cbranch_scc1 %s' % l)
        a('%s:' % d)
        a('s_waitcnt vmcnt(0)')
        self.stamp(6)
        a('v_add_f32 v16, v16, v20')
        a('v_add_f32 v18, v18, v22')
        a('v_permlane32_swap_b32 v16, v18')
        a('v_add_f32 v16, v16, v18')
        a('v_cvt_f64_f32 v[16:17], v16')
        a('ds_add_f64 v14, v[16:17]')
        a('s_waitcnt lgkmcnt(0)')
        a('L_redbar:')
        a('s_barrier')
        a('s_branch L_end')
        a('L_fin:')
        a('s_cmp_lg_u32 s%d, 9' % WV)
        a('s_cbranch_scc1 L_redbar')
        a('s_mul_i32 s72, s76, 5120')
        a('s_lshl_b32 s73, s70, 8')
        a('s_add_u32 s72, s72, s73')
        a('s_add_u32 s80, s72, %d' % BASEG)
        a('s_lshl_b32 s73, s70, 7')
        a('s_add_u32 s81, s73, %d' % (MODG + 5 * 2560))
        a('v_add_u32 v14, %d, v%d' % (RED, vL16))
        a('s_and_b32 s75, s75, 0x7ff')
        a('s_mul_i32 s72, s75, 1280')
        a('s_lshl_b32 s73, s70, 6')
        a('s_add_u32 s82, s72, s73')
        a('v_lshlrev_b32 v15, 2, v%d' % C16)
        a('s_and_b32 s72, s74, 0xfffff800')
        a('s_or_b32 s72, s72, 0x400')
        a('s_not_b32 s73, s72')
        a('s_xor_b32 s77, s72, 0x80000000')
        a('s_bitcmp1_b32 s72, 31')
        a('s_cselect_b32 s72, s77, s73')
        a('v_mov_b32 v24, s72')
        a('v_mul_f32 v24, 0xbfb8aa3b, v24')
        a('v_exp_f32 v24, v24')
        a('v_add_f32 v24, 1.0, v24')
        a('v_rcp_f32 v24, v24')
        a('s_mov_b64 exec, 0xffff')
        l, d = self.spin_head('base')
        a('buffer_load_dwordx4 v[16:19], v%d, %s, s80 offen sc1' % (vL16, srd(sWS)))
        a('buffer_load_dwordx2 v[20:21], v131, %s, s81 offen sc1' % srd(sWS))
        self.spin_bound(d)
        a('s_waitcnt vmcnt(0)')
        for r in (17, 19, 21):
            a('v_xor_b32 v%d, s%d, v%d' % (r, TAG, r))
        a('v_or3_b32 v17, v17, v19, v21')
        a('v_cmp_ne_u32 vcc, 0, v17')
        a('s_cbranch_vccnz %s' % l)
        a('%s:' % d)
        a('s_waitcnt vmcnt(0)')
        self.unpack(22, 23, 20)
        a('v_mul_f32 v22, v22, v24')
        a('v_mul_f32 v23, v23, v24')
        self.stamp(8)
        a('s_barrier')
        a('ds_read_b128 v[32:35], v14')
        a('s_waitcnt lgkmcnt(0)')
        a('v_cvt_f32_f64 v32, v[32:33]')
        a('v_cvt_f32_f64 v33, v[34:35]')
        a('v_fmac_f32 v16, v22, v32')
        a('v_fmac_f32 v18, v23, v33')
        a('v_cvt_pk_bf16_f32 v16, v16, v18')
        a('buffer_store_dword v16, v15, %s, s82 offen%s' % (srd(sO), ' sc1' if self.opt['finsc'] else ''))
        a('s_cmp_lg_u32 s70, 0')
        a('s_cbranch_scc1 L_noepoch')
        a('v_mov_b32 v25, 0')
        a('buffer_store_dword v167, v25, %s, 0 offen%s' % (srd(sWS), ' sc1' if self.opt['finsc'] else ''))
        a('L_noepoch:')
        a('s_mov_b64 exec, -1')
        self.stamp(7)

    def finish(self):
        a = self.a
        a('L_end:')
        if self.amp:
            lo, hi, j = self.amp
            self.stamp(15)
            a('s_cmp_lt_u32 s2, %d' % lo)
            a('s_cbranch_scc1 L_exit')
            a('s_cmp_ge_u32 s2, %d' % hi)
            a('s_cbranch_scc1 L_exit')
            a('s_cmp_eq_u32 s%d, 0' % (84 + j))
            a('s_cbranch_scc1 L_exit')
            a('s_sub_u32 s72, s%d, s84' % (84 + j))
            a('s_min_u32 s72, s72, 3000')
            a('s_mul_i32 s72, s72, 10')
            a('s_add_u32 s72, s72, 3000')
            a('L_amp:')
            a('s_sleep 8')
            a('s_memrealtime s[100:101]')
            a('s_waitcnt lgkmcnt(0)')
            a('s_sub_u32 s73, s100, s84')
            a('s_cmp_lt_u32 s73, s72')
            a('s_cbranch_scc1 L_amp')
        if self.diag:
            self.stamp(15)
            a('L_dwait:')
            a('s_sleep 16')
            a('s_memrealtime s[100:101]')
            a('s_waitcnt lgkmcnt(0)')
            a('s_sub_u32 s73, s100, s84')
            a('s_cmp_lt_u32 s73, 2500')
            a('s_cbranch_scc1 L_dwait')
            a('s_mov_b64 exec, -1')
            a('s_mul_i32 s72, s2, 640')
            a('s_add_u32 s72, s72, s%d' % T64)
            a('s_add_u32 s72, s72, %d' % DIAG)
            a('v_mov_b32 v2, s72')
            for i in range(16):
                a('v_mov_b32 v%d, s%d' % (8 + i, 84 + i))
            a('s_mov_b64 exec, 1')
            for i in range(4):
                a('buffer_store_dwordx4 %s, v2, %s, 0 offen offset:%d' % (vr(8 + 4 * i, 4), srd(sWS), 16 * i))
        a('L_exit:')
        a('s_endpgm')
        a('L_code_end:')

    def text(self):
        self.prologue()
        self.conv()
        self.rows()
        self.helper()
        self.nonconv()
        self.finish()
        body = self.a.body().replace('CODE_LIMIT', 'L_code_end-%s_kernel-8' % NAME)
        code, desc = kernel_text(NAME + '_kernel', body, 168)
        return (HEADER + '; @launch grid=(256,1,1) block=(640,1,1) lds=%d\n' % LDS_BYTES +
                '.amdgcn_target "amdgcn-amd-amdhsa--gfx950"\n' + code + desc)


def parse_args(args):
    kw = {}
    for x in args:
        if x == 'diag':
            kw['diag'] = True
        elif x.startswith('amp='):
            kw['amp'] = tuple(int(y) for y in x[4:].split(','))
        else:
            k, v = x.split('=')
            kw[k] = int(v)
    return kw


if __name__ == '__main__':
    open(sys.argv[1], 'w').write(Gen(**parse_args(sys.argv[2:])).text())
```

```python
import sys
sys.path.insert(0, 'gen')
from asmlib import *

NAME = 'adaLN_cond__ssm_conv_h3__moe_arch_mod__prompt'
HEADER = open('cdna_kernels/%s.s.ref' % NAME).read().split('; Override launch')[0]

MODG, KEYS = 0x1000, 0x8000
H2G, BASEG, PART = 0x10000, 0x60000, 0x100000
F1, F2, GO = 0x150000, 0x1a0000, 0x1d0000
KVX, DIAG, KEYR = 0x200000, 0xf00000, 0x150000
ZREUSE = True
KVREG = 344 * 64
WS_BYTES = 0x1000000
KC, KPITCH = 0, 4160
RV, RPITCH = 66624, 4640
PS = 85248
ZS = 100224
QS, QPITCH = 120704, 1312
PAR = 141696
ACC = 157056
ST2, CS, GU, MODACC, RED, KEYMAX = ACC, ACC + 384, ACC + 512, ACC + 1024, ACC + 1536, ACC + 1792
ZCNT = ACC + 1824
ST1 = ACC + 2560
LDS_BYTES = ST1 + 128

N_CONV, N_ROW = 160, 128
FREE0, N_FREE = 160, 41
MOD0, N_MOD = 160, 60
MLP0, N_MLP = 200, 54
RED0, N_RED = 160, 20
SPIN = 1 << 16
GROUPS = [('row', slice(0, 128)), ('conv', slice(128, 160)), ('red', slice(160, 180)), ('mod', slice(180, 200)),
          ('mm', slice(200, 220)), ('mlp', slice(220, 254))]

sK, sV, sSH, sWS, sSK, sO, sQ, sWR, sWG, sWU, sWD, sC, sWM, sD = [4 + 4 * i for i in range(14)]
SIZES = {sK: 2621440, sV: 2621440, sSH: 5120, sWS: WS_BYTES, sSK: 2621440, sQ: 2621440, sWR: 1280,
         sWG: 2211840, sWU: 2211840, sWD: 2211840, sC: 1280, sWM: 4915200, sO: 2621440}
SLOT = {sQ: 0, sK: 1, sV: 2, sSH: 3, sSK: 4, sD: 5, sWR: 7, sWG: 8, sWU: 9, sWD: 10, sC: 11, sWM: 12, sO: 13, sWS: 15}
TAG, WV, T64, HI = 60, 61, 62, 63
CG, RW = 3, 59
OOB = '0x7ffffff0'
MARK = '0x7f817f81'
DPP = 'row_mask:0xf bank_mask:0xf'

LANE, R4, C16, L8, P8, P16 = 1, 2, 3, 4, 5, 6
vPW, vPR, vKVST, vC128, vL16 = 7, 8, 9, 10, 11
vKI, vKW, vKVL, vZG0, vZG1, vZST = 12, 13, 14, 15, 16, 17
vQS, vST1, vPAR, vZLD, vSADD, vSRD, vIDX, vH2, vBASE, vORD, vOST = 18, 19, 20, 21, 22, 23, 24, 25, 26, 27, 28
vA, vB, vZW, vL4, vHI = 160, 161, 162, 164, 29
vKEY, vIDX1, vHW, vHR, vCS = 7, 8, 9, 12, 13


def srd(s):
    return 's[%d:%d]' % (s, s + 3)


def vr(a, n):
    return 'v[%d:%d]' % (a, a + n - 1)


class Gen:
    def __init__(self, diag=False, amp=None, **opt):
        self.a = Asm()
        self.diag = diag
        self.amp = amp
        self.opt = dict(prio=1, h2wait=1, pf=2, depth=1, keyprio=0, bg=0, klate=0, kstride=256, full=1,
                        ksleep=0, gsleep=2, fsleep=2, dnpf=1, rev=1, gupf=5, hdiag=0, peel=1, twob=0, krep=1,
                        h2bar=1, kpos=2, modearly=0, wmpf=1, adv=0, wmn=1, wrearly=1, pace=5, modafter=0, zack=1, dry=1, hoist=1, modwait=0, qfirst=0, finsc=1, spec=64, kd=1, ks=0, free0=215, f2wait=0, early=1, skipack=1, look=6, ze=2, ord=4, lsleep=3, pat=170, gat=100, nh=4, tA=1, tC=1, tE=1, tF=1, t4=1, t8=1, t9=1, tP=1, tB=0, nred=20, rsl=0, pprio=3, h2x4=1, xd=0, kst=512, rst=65536, kbase=0x600, kvreg=22016, kvx=0x200, pst=5120, pbase=0x100, hst=1280, hbase=0x10,
                        fbase=0x1a0, mbase=0x1, bbase=0x60, koff=0, p0prio=1, w3=4)
        self.opt.update(opt)
        global FREE0, N_RED, KEYR, KVREG, KVX, PART, H2G, F2, MODG, BASEG, PST, HST
        o = self.opt
        KEYR, KVX, PART, H2G, F2, MODG, BASEG = (o[k] << 12 for k in ('kbase', 'kvx', 'pbase', 'hbase', 'fbase', 'mbase', 'bbase'))
        KEYR += o['koff']
        KVREG, PST, HST = o['kvreg'], o['pst'], o['hst']
        spans = sorted([(0, 128), (KEYR, 7 * o['rst'] + 128 * o['kst']), (KVX, 160 * KVREG), (PART, 54 * PST), (H2G, 128 * HST),
                        (F2, 163840), (MODG, 15360), (BASEG, 128 * 5120), (DIAG, 0x30000)])
        assert all(a + n <= b for (a, n), (b, _) in zip(spans, spans[1:])), spans
        N_RED = self.opt['nred']
        FREE0 = self.opt['free0']

    def hstamp(self, i):
        if self.opt['hdiag']:
            self.stamp(i, True)

    def stamp(self, i, force=False):
        if self.opt['hdiag'] and 9 <= i <= 13 and not force:
            return
        if self.diag is True or (self.diag and (i in (0, 15) or i in self.diag)) or (self.amp and i in (0, self.amp[2])):
            a = self.a
            a('s_memrealtime s[100:101]')
            a('s_waitcnt lgkmcnt(0)')
            a('s_mov_b32 s%d, s100' % (84 + i))

    def srd_tail(self, regs):
        for s in regs:
            self.a('s_mov_b32 s%d, %d' % (s + 2, SIZES[s]))
            self.a('s_mov_b32 s%d, 0x20000' % (s + 3))

    def ptrs(self, regs):
        for s in regs:
            self.a('s_load_dwordx2 s[%d:%d], s[0:1], %d' % (s, s + 1, 8 * SLOT[s]))

    def mad(self, dst, src, const, add):
        self.a('s_mov_b32 s83, %d' % const)
        self.a('v_mad_u32_u24 v%d, v%d, s83, v%d' % (dst, src, add))

    def unpack(self, dst_lo, dst_hi, src):
        self.a('v_lshlrev_b32 v%d, 16, v%d' % (dst_lo, src))
        self.a('v_and_b32 v%d, v%d, v%d' % (dst_hi, vHI, src))

    def spin_head(self, name):
        a = self.a
        l, d = a.label(name), a.label(name + '_done')
        a('s_mov_b32 s79, 0')
        a('%s:' % l)
        return l, d

    def spin_bound(self, d):
        a = self.a
        a('s_add_u32 s79, s79, 1')
        a('s_cmp_gt_u32 s79, %d' % SPIN)
        a('s_cbranch_scc1 %s' % d)

    def poll16(self, name, soff, vtmp, width=1, sleep=0, vaddr=vC128, mask='0xffff'):
        a = self.a
        depth = self.opt['depth']
        op = 'buffer_load_dword' if width == 1 else 'buffer_load_dwordx2'
        reg = lambda k: ('v%d' % (vtmp + k)) if width == 1 else vr(vtmp + 2 * k, 2)
        ld = lambda k: a('%s %s, v%d, %s, s%d offen sc1' % (op, reg(k), vaddr, srd(sWS), soff))
        a('s_mov_b64 exec, %s' % mask)
        for k in range(depth - 1):
            ld(k)
        l, d = self.spin_head(name)
        for k in range(depth):
            ld((k + depth - 1) % depth)
            if sleep:
                a('s_sleep %d' % sleep)
            a('s_waitcnt vmcnt(%d)' % (depth - 1))
            if width == 2:
                a('v_mov_b32 v%d, v%d' % (vtmp + 2 * depth, vtmp + 2 * k))
            a('v_cmp_ne_u32 vcc, s%d, v%d' % (TAG, vtmp + k if width == 1 else vtmp + 2 * k + 1))
            a('s_and_b64 exec, vcc, vcc')
            a('s_cbranch_scc0 %s' % d)
        self.spin_bound(d)
        a('s_branch %s' % l)
        a('%s:' % d)
        a('s_mov_b64 exec, %s' % ('-1' if width == 1 else '0xffff'))

    def barrier_flag(self, soff, wait):
        a = self.a
        l, e = a.label('flagwave'), a.label('flagged')
        a('s_cmp_eq_u32 s%d, 9' % WV)
        a('s_cbranch_scc1 %s' % l)
        a(wait)
        a('s_barrier')
        a('s_branch %s' % e)
        a('%s:' % l)
        a('s_mov_b64 exec, 1')
        a(wait)
        a('s_barrier')
        a('buffer_store_dword v167, v%d, %s, s%d offen sc1' % (vC128, srd(sWS), soff))
        a('s_mov_b64 exec, -1')
        a('%s:' % e)

    def silu(self, x, t):
        a = self.a
        a('v_mul_f32 v%d, 0xbfb8aa3b, v%d' % (t, x))
        a('v_exp_f32 v%d, v%d' % (t, t))
        a('v_add_f32 v%d, 1.0, v%d' % (t, t))
        a('v_rcp_f32 v%d, v%d' % (t, t))
        a('v_mul_f32 v%d, v%d, v%d' % (x, x, t))

    def row_allreduce16(self, regs):
        for sh in (1, 2, 4, 8):
            for r in regs:
                self.a('v_add_f32_dpp v%d, v%d, v%d row_ror:%d %s' % (r, r, r, sh, DPP))

    def reduce4x4(self, r):
        a = self.a
        a('v_permlane32_swap_b32 v%d, v%d' % (r, r + 2))
        a('v_permlane32_swap_b32 v%d, v%d' % (r + 1, r + 3))
        a('v_add_f32 v%d, v%d, v%d' % (r, r, r + 2))
        a('v_add_f32 v%d, v%d, v%d' % (r + 1, r + 1, r + 3))
        a('v_permlane16_swap_b32 v%d, v%d' % (r, r + 1))
        a('v_add_f32 v%d, v%d, v%d' % (r, r, r + 1))

    def pair_rows(self, dst, x, y):
        self.a('v_perm_b32 v%d, v%d, v%d, s64' % (dst, y, x))
        self.a('v_perm_b32 v%d, v%d, v%d, s65' % (dst + 1, y, x))

    def prologue(self):
        a, o = self.a, self.opt
        KR, VR, SR, W, KP, VP, AC, OUT, OUT2 = 96, 105, 112, 116, 124, 124, 142, 96, 104
        a('s_getpc_b64 s[66:67]')
        self.ptrs((sK, sV, sSH, sWS, sSK))
        if self.diag or self.amp:
            for i in range(16):
                a('s_mov_b32 s%d, 0' % (84 + i))
        self.stamp(0)
        a('s_cmp_ge_u32 s2, 256')
        a('s_cbranch_scc1 L_exit')
        if o['pf'] == 2:
            a('s_sub_u32 s72, s2, %d' % ((FREE0 + 7) // 8 * 8))
            a('s_cmp_lt_u32 s72, 40')
            a('s_cbranch_scc0 L_pfdone')
            a('s_lshr_b32 s72, s72, 3')
            a('v_mad_u32_u24 v43, v0, 5, s72')
            a('v_lshlrev_b32 v43, 7, v43')
            a('v_cmp_gt_u32 vcc, CODE_LIMIT, v43')
            a('s_and_saveexec_b64 s[68:69], vcc')
            a('s_cbranch_execz L_nopf')
            a('v_mov_b32 v165, s67')
            a('v_add_co_u32 v164, vcc, s66, v43')
            a('v_addc_co_u32 v165, vcc, 0, v165, vcc')
            a('global_load_dword v163, v[164:165], off')
            a('L_nopf:')
            a('s_mov_b64 exec, -1')
            a('L_pfdone:')
        a('v_readfirstlane_b32 s%d, v0' % T64)
        a('s_lshr_b32 s74, s2, 3')
        if o['pf'] == 1:
            a('v_lshl_add_u32 v43, v0, 5, s74')
            a('v_lshlrev_b32 v43, 7, v43')
            a('v_cmp_gt_u32 vcc, CODE_LIMIT, v43')
            a('s_and_saveexec_b64 s[68:69], vcc')
            a('s_cbranch_execz L_nopf')
            a('v_mov_b32 v165, s67')
            a('v_add_co_u32 v164, vcc, s66, v43')
            a('v_addc_co_u32 v165, vcc, 0, v165, vcc')
            a('global_load_dword v163, v[164:165], off')
            a('L_nopf:')
            a('s_mov_b64 exec, -1')
        a('v_bfe_u32 v%d, v0, 4, 2' % R4)
        a('v_and_b32 v%d, 15, v0' % C16)
        a('s_lshr_b32 s%d, s%d, 6' % (WV, T64))
        if o['tF']:
            assert FREE0 + N_FREE == 256
            a('s_mul_i32 s70, s2, 205')
            a('s_lshr_b32 s70, s70, 10')
            a('s_mul_i32 s72, s70, 5')
            a('s_sub_u32 s71, s2, s72')
        else:
            a('s_sub_u32 s71, s2, %d' % N_FREE)
            a('s_cmp_lt_u32 s2, %d' % FREE0)
            a('s_cselect_b32 s71, s2, s71')
            a('s_mul_i32 s70, s71, 205')
            a('s_lshr_b32 s70, s70, 10')
            a('s_mul_i32 s72, s70, 5')
            a('s_sub_u32 s71, s71, s72')
        a('s_lshr_b32 s72, s%d, 2' % WV)
        a('s_lshl1_add_u32 s70, s70, s72')
        a('s_and_b32 s72, s%d, 3' % WV)
        a('s_lshl2_add_u32 s71, s71, s72')
        a('s_mul_i32 s72, s70, 30720')
        a('s_lshl_b32 s73, s71, 6')
        a('s_add_u32 s72, s72, s73')
        a('v_mul_u32_u24 v40, 7680, v%d' % R4)
        a('v_lshl_add_u32 v40, v%d, 2, v40' % C16)
        a('v_add_u32 v40, s72, v40')
        a('v_subrev_u32 v41, 3840, v40')
        a('v_add_u32 v43, 3840, v40')
        a('v_lshlrev_b32 v42, 4, v%d' % C16)
        a('s_lshl_b32 s73, s73, 2')
        if o['tF']:
            self.srd_tail((sK,))
            a('s_mov_b64 s[%d:%d], s[%d:%d]' % (sV + 2, sV + 3, sK + 2, sK + 3))
            a('s_movk_i32 s%d, %d' % (sSH + 2, SIZES[sSH]))
            a('s_mov_b32 s%d, s%d' % (sSH + 3, sK + 3))
            a('s_cmpk_ge_u32 s2, %d' % FREE0)
        else:
            self.srd_tail((sK, sV, sSH))
            a('s_sub_u32 s72, s2, %d' % FREE0)
            a('s_cmp_lt_u32 s72, %d' % N_FREE)
        a('s_cselect_b32 s58, 8, s%d' % WV)
        a('s_cmp_ge_u32 s58, 8')
        a('s_waitcnt lgkmcnt(0)')
        a('s_cbranch_scc1 %s' % ('L_free' if o['modearly'] else 'L_shadow'))
        a('buffer_load_dwordx4 %s, v42, %s, s73 offen' % (vr(SR, 4), srd(sSH)))
        for i in range(9):
            a('buffer_load_dword v%d, v%d, %s, 0 offen offset:%d' % (KR + i, (41, 40, 43)[i // 3], srd(sK), 1280 * (i % 3)))
        for i in range(6):
            a('buffer_load_dword v%d, v%d, %s, 0 offen offset:%d' % (VR + i, (40, 43)[i // 3], srd(sV), 1280 * (i % 3)))
        a('L_shadow:')
        a('s_load_dword s%d, s[%d:%d], 0' % (TAG, sWS, sWS + 1))
        self.ptrs((sD, sWM, sC, sQ, sWR))
        a('v_and_b32 v%d, 63, v0' % LANE)
        a('s_and_b32 s75, s2, 7')
        a('s_mul_i32 s%d, s75, 20' % CG)
        a('s_add_u32 s%d, s%d, s74' % (CG, CG))
        a('s_and_b32 s72, s74, 7')
        a('s_lshl3_add_u32 s72, s75, s72')
        a('s_and_b32 s73, s74, 8')
        a('s_lshl3_add_u32 s%d, s73, s72' % RW)
        self.srd_tail((sSK,))
        a('s_cmp_ge_u32 s%d, 5' % WV)
        a('s_cselect_b32 s74, 1, 0')
        a('s_mul_i32 s75, s74, 5')
        a('s_sub_u32 s75, s%d, s75' % WV)
        a('s_mul_i32 s75, s75, 52')
        a('v_add_u32 v%d, s75, v%d' % (vKI, LANE))
        a('s_lshl2_add_u32 s75, s%d, s74' % CG)
        a('s_lshl_b32 s76, s75, 12')
        a('s_sub_u32 s76, s76, 32')
        a('v_lshl_add_u32 v46, v%d, 4, s76' % vKI)
        a('v_subrev_u32 v43, 2, v%d' % vKI)
        a('v_cmp_gt_u32 vcc, 256, v43')
        a('s_and_b32 vcc_hi, vcc_hi, 0x1fffff')
        a('s_cmp_lt_u32 s2, %d' % N_CONV)
        a('s_cselect_b64 vcc, vcc, 0')
        a('v_mov_b32 v47, %s' % OOB)
        a('v_cndmask_b32 v46, v47, v46, vcc')
        a('s_movk_i32 s77, 0x2000')

        def kloads():
            a('buffer_load_dwordx4 v[48:51], v46, %s, 0 offen' % srd(sSK))
            a('buffer_load_dwordx4 v[56:59], v46, %s, s77 offen' % srd(sSK))
        if o['kpos'] == 0:
            kloads()
        self.srd_tail([s for s in SIZES if s not in (sK, sV, sSH, sSK)])
        a('s_mov_b32 s%d, 0xffff0000' % HI)
        a('v_mov_b32 v%d, 0xffff0000' % vHI)
        a('v_bfe_u32 v%d, v0, 3, 3' % L8)
        a('v_and_b32 v%d, 0x70, v42' % P16)
        a('v_and_b32 v%d, 7, v0' % P8)
        a('v_lshlrev_b32 v%d, 7, v%d' % (vC128, C16))
        a('v_lshlrev_b32 v%d, 4, v%d' % (vL16, LANE))
        a('v_lshlrev_b32 v%d, 2, v%d' % (vL4, LANE))
        self.mad(vKVST, R4, KVREG, 42)
        a('s_mul_i32 s72, s71, %d' % (8 * KVREG))
        a('s_lshl_b32 s73, s70, 8')
        a('s_add_u32 s72, s72, s73')
        a('s_add_u32 s80, s72, %d' % KVX)
        a('s_add_u32 s81, s80, %d' % (4 * KVREG))
        a('s_mul_i32 s72, s%d, 2560' % WV)
        a('s_add_u32 s72, s72, %d' % ZS)
        self.mad(vPW, R4, 640, 42)
        a('v_add_u32 v%d, s72, v%d' % (vPW, vPW))
        a('v_lshl_add_u32 v43, v%d, 5, s72' % R4)
        a('v_bfe_u32 v44, v0, 2, 2')
        a('v_mad_u32_u24 v43, v44, s83, v43')
        a('v_bfe_u32 v44, v0, 1, 1')
        a('v_lshl_add_u32 v43, v44, 4, v43')
        a('v_and_b32 v44, 1, v0')
        self.mad(vPR, 44, 320, 43)
        a('v_lshrrev_b32 v44, 1, v%d' % P8)
        a('v_lshlrev_b32 v43, 2, v0')
        a('v_add_u32 v43, %d, v43' % ACC)
        a('v_mov_b32 v45, 0')
        a('ds_write_b32 v43, v45')
        if o['kpos'] == 1:
            kloads()
        self.conv_addresses()
        if o['kpos'] == 2:
            kloads()
        a('s_waitcnt lgkmcnt(0)')
        self.ptrs((sWU, sWD, sO, sWG))
        a('s_min_u32 s72, s%d, %d' % (CG, N_CONV - 1))
        a('s_lshl_b32 s72, s72, 3')
        a('s_load_dwordx2 s[68:69], s[%d:%d], s72' % (sD, sD + 1))
        a('s_mul_i32 s%d, s%d, 0x9e3779b1' % (TAG, TAG))
        a('s_add_u32 s%d, s%d, 0x7f4a7c15' % (TAG, TAG))
        a('s_and_b32 s%d, s%d, 0x1fffff' % (TAG, TAG))
        a('s_or_b32 s%d, s%d, 0x7fa00000' % (TAG, TAG))
        a('v_mov_b32 v167, s%d' % TAG)
        self.stamp(14)
        a('s_cmp_ge_u32 s58, 8')
        a('s_cbranch_scc1 L_notile')
        if o['p0prio']:
            a('s_setprio 1')
        a('s_waitcnt vmcnt(17)')
        for j in range(4):
            for dst, src in ((W + 2 * j, SR + j // 2), (W + 1 + 2 * j, SR + 2 + j // 2)):
                if j % 2 == 0:
                    a('v_lshlrev_b32 v%d, 16, v%d' % (dst, src))
                else:
                    a('v_and_b32 v%d, v%d, v%d' % (dst, vHI, src))
        adv = o['adv']
        if adv == 1:
            self.wave_flag(78, 8)
        else:
            a('s_waitcnt vmcnt(8)')
        for i in range(9):
            self.unpack(KP + 2 * i, KP + 1 + 2 * i, KR + i)
        a('v_mov_b32 v%d, v167' % (OUT + 3))
        a('v_mov_b32 v%d, v167' % (OUT + 7))
        for j in range(4):
            for r in range(6):
                kp = KP + 2 * (r + 3 - j)
                if j == 0:
                    a('v_pk_mul_f32 %s, %s, %s' % (vr(AC + 2 * r, 2), vr(W, 2), vr(kp, 2)))
                else:
                    a('v_pk_fma_f32 %s, %s, %s, %s' % (vr(AC + 2 * r, 2), vr(W + 2 * j, 2), vr(kp, 2), vr(AC + 2 * r, 2)))
        if adv == 2:
            self.wave_flag(78, 2)
        else:
            a('s_waitcnt vmcnt(%d)' % (3 if adv == 1 else 2))
        for i in range(6):
            self.unpack(VP + 2 * i, VP + 1 + 2 * i, VR + i)
        for r in range(6):
            a('v_pk_mul_f32 %s, %s, %s' % (vr(AC + 2 * r, 2), vr(AC + 2 * r, 2), vr(VP + 2 * r, 2)))
        for c in range(2):
            for k in range(3):
                a('v_cvt_pk_bf16_f32 v%d, v%d, v%d' % (OUT + 4 * c + k, AC + 10 - 4 * k + c, AC + 8 - 4 * k + c))
            a('ds_write_b128 v%d, %s offset:%d' % (vPW, vr(OUT + 4 * c, 4), 320 * c))
        a('ds_read_b128 %s, v%d' % (vr(OUT2, 4), vPR))
        a('ds_read_b128 %s, v%d offset:128' % (vr(OUT2 + 4, 4), vPR))
        a('s_waitcnt lgkmcnt(0)')
        a('buffer_store_dwordx4 %s, v%d, %s, s80 offen sc1' % (vr(OUT2, 4), vKVST, srd(sWS)))
        a('buffer_store_dwordx4 %s, v%d, %s, s81 offen sc1' % (vr(OUT2 + 4, 4), vKVST, srd(sWS)))
        if adv == 3:
            self.wave_flag(78, 4)
        if o['p0prio']:
            a('s_setprio 0')
        self.stamp(1)
        a('s_waitcnt vmcnt(%d)' % (3 if adv else 2))
        a('s_branch L_tiled')
        a('L_notile:')
        a('s_cmp_ge_u32 s2, %d' % N_CONV)
        a('s_waitcnt lgkmcnt(0)')
        a('s_cbranch_scc1 L_nonconv')
        a('s_waitcnt vmcnt(0)')
        a('L_tiled:')
        a('s_cmp_ge_u32 s2, %d' % N_CONV)
        a('s_cbranch_scc1 L_nonconv')

    def mod_loads(self):
        a = self.a
        a('v_bfe_u32 v137, v0, 5, 1')
        a('v_and_b32 v130, 31, v0')
        a('v_lshlrev_b32 v130, 2, v130')
        self.mad(133, 137, 32 * 7680, 130)
        a('v_lshlrev_b32 v132, 2, v%d' % C16)
        a('v_lshl_add_u32 v136, v137, 6, v132')
        a('s_sub_u32 s73, s2, %d' % MOD0)
        a('s_lshl_b32 s73, s73, 7')
        a('s_mul_i32 s72, s%d, %d' % (WV, 64 * 7680))
        a('s_add_u32 s72, s72, s73')
        a('s_lshl_b32 s73, s%d, 7' % WV)
        a('buffer_load_dword v138, v136, %s, s73 offen' % srd(sC))
        for i in range(32):
            a('buffer_load_dword v%d, v133, %s, s72 offen' % (96 + i, srd(sWM)))
            if i < 31:
                a('s_add_u32 s72, s72, 7680')

    def wave_flag(self, soff, cnt=0):
        a = self.a
        if self.opt['full']:
            a('s_mov_b32 exec_hi, 0')
        else:
            a('s_mov_b64 exec, 1')
        a('s_waitcnt vmcnt(%d)' % cnt)
        a('buffer_store_dword v167, v%d, %s, s%d offen sc1' % (vL4, srd(sWS), soff))
        a('s_mov_b64 exec, -1')

    def wm_prefetch(self, sub, n=0):
        a = self.a
        a('s_lshr_b32 s82, s2, 3')
        if n:
            a('s_lshl2_add_u32 s82, s%d, s82' % WV)
            a('s_add_u32 s82, s82, %d' % (80 - 4 * n - 28))
        else:
            a('s_lshl1_add_u32 s82, s82, s%d' % WV)
            a('s_add_u32 s82, s82, %d' % (32 - 8 - 2 * sub))
        a('s_mul_i32 s82, s82, %d' % (8 * 7680))
        a('s_and_b32 s83, s2, 7')
        a('s_lshl_b32 s83, s83, 7')
        a('s_add_u32 s82, s82, s83')
        a('v_lshlrev_b32 v165, 10, v%d' % P8)
        self.mad(165, L8, 7680, 165)
        a('buffer_load_dword v163, v165, %s, s82 offen' % srd(sWM))

    def dn_prefetch(self, su):
        a = self.a
        a('s_and_b32 s66, s2, 7')
        a('s_lshr_b32 s67, s2, 3')
        a('s_sub_u32 s67, s67, 16')
        a('s_lshl3_add_u32 s82, s%d, s66' % su)
        a('s_mul_i32 s82, s82, 640')
        a('s_mul_i32 s83, s67, 72')
        a('s_add_u32 s82, s82, s83')
        a('s_add_u32 s66, s66, 48')
        a('s_mul_i32 s66, s66, 320')
        a('s_mul_i32 s83, s67, 36')
        a('s_add_u32 s66, s66, s83')
        a('s_cmp_eq_u32 s%d, 3' % su)
        a('s_cselect_b32 s82, s66, s82')
        a('s_lshl_b32 s82, s82, 7')
        a('v_lshl_add_u32 v165, v%d, 7, s82' % LANE)
        a('buffer_load_dword v163, v165, %s, 0 offen' % srd(sWD))
        a('s_mov_b64 exec, 0xff')
        a('v_add_u32 v165, 8192, v165')
        a('buffer_load_dword v163, v165, %s, 0 offen' % srd(sWD))
        a('s_mov_b64 exec, -1')

    def go_flag(self):
        a = self.a
        a('s_lshl_b32 s82, s%d, 7' % CG)
        a('s_add_u32 s82, s82, %d' % F2)
        for i in range(4):
            a('v_mov_b32 v%d, v167' % (44 + i))
        a('buffer_store_dwordx4 v[44:47], v%d, %s, s82 offen sc1' % (vZST, srd(sWS)))

    def gu_prefetch(self, v=41, st=72, shift=0):
        a = self.a
        a('s_and_b32 s70, s2, 7')
        a('s_lshr_b32 s71, s2, 3')
        if shift:
            a('s_sub_u32 s71, s71, %d' % shift)
        a('v_and_b32 v%d, 3, v0' % v)
        a('v_lshl_add_u32 v%d, v%d, 3, s70' % (v + 1, v))
        a('s_lshr_b32 s%d, s70, 1' % st)
        a('s_add_u32 s%d, s%d, 24' % (st, st))
        a('v_min_u32 v%d, s%d, v%d' % (v + 1, st, v + 1))
        a('v_lshlrev_b32 v%d, 7, v%d' % (v + 1, v + 1))
        a('v_lshrrev_b32 v%d, 2, v%d' % (v, LANE))
        self.mad(v, v, 3456, v + 1)
        a('s_bitcmp1_b32 s75, 0')
        a('s_cselect_b64 s[%d:%d], s[%d:%d], s[%d:%d]' % (sWG, sWG + 1, sWU, sWU + 1, sWG, sWG + 1))
        a('s_lshr_b32 s%d, s75, 1' % st)
        a('s_lshl1_add_u32 s%d, s71, s%d' % (st, st))
        a('s_mul_i32 s%d, s%d, %d' % (st, st, 16 * 3456))
        a('buffer_load_dword v163, v%d, %s, s%d offen' % (v, srd(sWG), st))

    def mm_gu_prefetch(self):
        a = self.a
        l1, l2 = a.label('g1'), a.label('g2')
        a('s_and_b32 s70, s2, 7')
        a('s_lshr_b32 s71, s2, 3')
        a('s_mul_i32 s71, s71, 6')
        a('s_add_u32 s71, s71, s%d' % WV)
        a('s_sub_u32 s71, s71, 100')
        a('s_bitcmp1_b32 s71, 0')
        a('s_cselect_b64 s[%d:%d], s[%d:%d], s[%d:%d]' % (sWG, sWG + 1, sWU, sWU + 1, sWG, sWG + 1))
        a('v_mul_u32_u24 v41, 3456, v%d' % LANE)
        a('s_lshr_b32 s72, s71, 1')
        a('s_mul_i32 s72, s72, %d' % (64 * 3456))
        a('s_lshl_b32 s73, s70, 7')
        a('s_add_u32 s72, s72, s73')
        a('s_cmp_ge_u32 s71, 20')
        a('s_cbranch_scc1 %s' % l1)
        a('buffer_load_dword v163, v41, %s, s72 offen' % srd(sWG))
        a('%s:' % l1)
        a('s_cmp_ge_u32 s70, 4')
        a('s_cbranch_scc1 %s' % l2)
        a('s_cmp_lt_u32 s71, 14')
        a('s_cbranch_scc1 %s' % l2)
        a('s_sub_u32 s72, s72, %d' % (7 * 64 * 3456 - 1024))
        a('buffer_load_dword v163, v41, %s, s72 offen' % srd(sWG))
        a('%s:' % l2)

    def mm_dn_prefetch(self):
        a = self.a
        l = a.label('d')
        a('s_and_b32 s66, s2, 7')
        a('s_lshr_b32 s67, s2, 3')
        a('s_sub_u32 s67, s67, 20')
        a('s_lshl1_add_u32 s82, s67, s75')
        a('s_add_u32 s83, s67, 80')
        a('s_cmp_lt_u32 s75, 2')
        a('s_cselect_b32 s82, s82, s83')
        a('s_mul_i32 s83, s66, 10')
        a('s_add_u32 s82, s82, s83')
        a('s_lshl_b32 s82, s82, 13')
        a('s_lshr_b32 s83, s66, 2')
        a('s_add_u32 s83, s83, s75')
        a('s_cmp_ge_u32 s83, 3')
        a('s_cbranch_scc1 %s' % l)
        a('v_lshlrev_b32 v165, 7, v%d' % LANE)
        a('buffer_load_dword v163, v165, %s, s82 offen' % srd(sWD))
        a('%s:' % l)

    def part_address(self):
        a = self.a
        a('s_lshl_b32 s72, s%d, 3' % WV)
        if N_RED == 20:
            a('v_add_u32 v12, s72, v%d' % R4)
            a('v_add_u32 v13, 4, v12')
            a('v_cmp_gt_u32 s[66:67], %d, v13' % N_MLP)
            a('v_lshlrev_b32 v14, 4, v%d' % C16)
            self.mad(12, 12, PST, 14)
            self.mad(13, 13, PST, 14)
            a('s_mov_b64 s[68:69], -1')
            a('s_lshl_b32 s72, s70, 8')
        else:
            a('v_add_u32 v12, s72, v%d' % L8)
            a('v_cmp_gt_u32 s[66:67], %d, v12' % N_MLP)
            a('v_mov_b32 v14, v%d' % P16)
            self.mad(12, 12, PST, 14)
            a('s_lshl_b32 s72, s70, 7')
        a('s_add_u32 s72, s72, %d' % PART)

    def part_loads(self):
        a = self.a
        if N_RED == 20:
            a('s_mov_b64 exec, s[68:69]')
            a('buffer_load_dwordx4 v[16:19], v12, %s, s72 offen sc1' % srd(sWS))
            a('s_mov_b64 exec, s[66:67]')
            a('buffer_load_dwordx4 v[20:23], v13, %s, s72 offen sc1' % srd(sWS))
        else:
            a('s_mov_b64 exec, s[66:67]')
            a('buffer_load_dwordx4 v[16:19], v12, %s, s72 offen sc1' % srd(sWS))
        a('s_mov_b64 exec, -1')

    def flag_probe(self, soff, v):
        self.a('s_mov_b64 exec, 0xffff')
        self.a('buffer_load_dword v%d, v%d, %s, s%d offen sc1' % (v, vC128, srd(sWS), soff))
        self.a('s_mov_b64 exec, -1')

    def flag_confirm(self, name, soff, v):
        a = self.a
        a('s_mov_b64 exec, 0xffff')
        l, d = self.spin_head(name)
        a('v_cmp_ne_u32 vcc, s%d, v%d' % (TAG, v))
        a('s_and_b64 exec, vcc, vcc')
        a('s_cbranch_scc0 %s' % d)
        a('buffer_load_dword v%d, v%d, %s, s%d offen sc1' % (v, vC128, srd(sWS), soff))
        a('s_add_u32 s79, s79, 1')
        a('s_cmp_gt_u32 s79, %d' % SPIN)
        a('s_waitcnt vmcnt(0)')
        a('s_cbranch_scc0 %s' % l)
        a('%s:' % d)
        a('s_mov_b64 exec, -1')

    def data_confirm(self, name, loads, r0, r1, count_stamp):
        a = self.a
        l, d = self.spin_head(name)
        a('s_waitcnt vmcnt(0)')
        a('v_cmp_eq_u32 vcc, s82, v%d' % r0)
        a('v_cmp_eq_u32 s[70:71], s82, v%d' % r1)
        a('s_or_b64 exec, vcc, s[70:71]')
        a('s_cbranch_scc0 %s' % d)
        loads()
        a('s_add_u32 s79, s79, 1')
        a('s_cmp_gt_u32 s79, %d' % SPIN)
        a('s_cbranch_scc0 %s' % l)
        a('s_waitcnt vmcnt(0)')
        a('%s:' % d)
        a('s_mov_b64 exec, -1')
        if self.diag is True and count_stamp is not None and not self.opt['hdiag']:
            a('s_mul_i32 s79, s79, 100')
            a('s_add_u32 s%d, s84, s79' % (84 + count_stamp))

    def conv_addresses(self):
        a = self.a
        a('s_mul_i32 s72, s74, %d' % (4 * KPITCH))
        a('v_lshl_add_u32 v%d, v%d, 4, s72' % (vKW, vKI))
        if self.opt['w3']:
            a('s_sub_u32 s78, s%d, %d' % (WV, self.opt['w3']))
            a('s_cselect_b32 s72, 10, 0')
            a('s_add_u32 s78, s78, s72')
        else:
            a('s_sub_u32 s78, 9, s%d' % WV)
        a('s_mul_i32 s72, s78, 192')
        a('s_sub_u32 s72, %d, s72' % (RV + 4084 - 3840))
        a('v_lshrrev_b32 v43, 2, v%d' % LANE)
        a('v_mul_u32_u24 v43, 12, v43')
        a('v_sub_u32 v43, s72, v43')
        a('v_and_b32 v45, 3, v0')
        self.mad(vKVL, 45, RPITCH, 43)
        a('v_and_b32 v45, 1, v0')
        a('s_and_b32 s72, s%d, 3' % WV)
        a('s_mul_i32 s72, s72, 640')
        a('s_add_u32 s72, s72, %d' % ZS)
        a('v_lshl_add_u32 v43, v45, 2, s72')
        a('v_lshl_add_u32 v43, v%d, 3, v43' % L8)
        self.mad(vZG0, 44, 160, 43)
        a('v_add_u32 v%d, 64, v%d' % (vZG1, vZG0))
        self.mad(vZST, L8, 20480, P16)
        a('s_cmp_ge_u32 s%d, 4' % WV)
        a('s_cbranch_scc1 L_nomf')
        for i in range(32):
            a('v_mov_b32 v%d, 0' % (64 + i))
        a('s_mul_i32 s72, s%d, %d' % (WV, RPITCH))
        a('s_add_u32 s76, s72, %d' % (RV + 4096))
        a('v_min_u32 v43, 59, v%d' % LANE)
        a('v_lshl_add_u32 v43, v43, 3, s76')
        a('ds_write_b64 v43, v[64:65]')
        a('s_add_u32 s72, s72, %d' % (RV + 480))
        a('v_lshl_add_u32 v%d, v%d, 4, s72' % (vB, R4))
        a('v_lshlrev_b32 v43, 5, v%d' % C16)
        a('v_sub_u32 v%d, v%d, v43' % (vB, vB))
        a('v_lshl_add_u32 v43, v%d, 3, v%d' % (R4, C16))
        a('v_add_u32 v43, 1, v43')
        a('v_and_b32 v45, 3, v43')
        a('s_mul_i32 s72, s%d, %d' % (WV, 4 * KPITCH))
        a('v_lshl_add_u32 v43, v43, 1, s72')
        self.mad(vA, 45, KPITCH - 2, 43)
        a('s_mul_i32 s72, s%d, 5120' % WV)
        a('s_add_u32 s72, s72, %d' % ZS)
        a('v_lshl_add_u32 v43, v%d, 3, s72' % C16)
        self.mad(vZW, R4, 160, 43)
        a('L_nomf:')
        self.mad(vOST, L8, 1280, P16)

    def row_addresses(self):
        a = self.a
        a('s_lshl_b32 s72, s%d, 7' % WV)
        a('s_add_u32 s72, s72, %d' % QS)
        a('v_lshl_add_u32 v43, v%d, 4, s72' % L8)
        self.mad(vQS, P8, 2 * QPITCH, 43)
        a('v_add_u32 v43, s72, v%d' % P16)
        self.mad(vORD, L8, QPITCH, 43)
        a('v_add_u32 v%d, %d, v%d' % (vST1, ST1, P16))
        a('s_lshl_b32 s72, s%d, 8' % WV)
        a('s_add_u32 s73, s72, %d' % PAR)
        a('v_lshl_add_u32 v%d, v%d, 5, s73' % (vPAR, L8))
        a('s_add_u32 s73, s72, %d' % PS)
        a('v_lshl_add_u32 v%d, v%d, 5, s73' % (vH2, L8))
        a('v_lshl_add_u32 v%d, v%d, 3, s73' % (vBASE, LANE))
        self.mad(vZLD, L8, 2 * KVREG, P16)
        a('v_mul_u32_u24 v43, 48, v%d' % P8)
        a('v_add_u32 v%d, %d, v43' % (vSRD, ST2))
        a('v_bfe_u32 v43, v0, 4, 1')
        a('v_bfe_u32 v45, v0, 3, 1')
        a('v_lshl_add_u32 v43, v45, 1, v43')
        a('v_min_u32 v43, 2, v43')
        a('v_lshl_add_u32 v43, v43, 4, v%d' % vSRD)
        a('v_bfe_u32 v45, v0, 5, 1')
        a('v_lshl_add_u32 v%d, v45, 3, v43' % vSADD)
        a('s_lshl_b32 s72, s%d, 4' % RW)
        if self.opt['tC']:
            a('v_lshl_add_u32 v%d, v%d, 1, s72' % (vIDX, P8))
            if self.opt['t8']:
                self.row_vconsts()
        else:
            a('s_sub_u32 s72, 2047, s72')
            a('v_lshlrev_b32 v43, 1, v%d' % P8)
            a('v_sub_u32 v%d, s72, v43' % vIDX)

    def kprep(self, rho):
        a = self.a
        d, t = (48, 120) if rho == 0 else (56, 132)
        if self.opt['t4']:
            a('s_cmp_eq_u64 s[64:65], 0')
            a('s_cbranch_scc1 L_nofold%d' % rho)
        a('s_lshl_b32 s72, s%d, 16' % (68 + rho))
        a('s_and_b32 s73, s%d, s%d' % (68 + rho, HI))
        a('s_cmp_ge_u32 s%d, 5' % WV)
        a('s_cselect_b32 s72, s73, s72')
        a('v_lshlrev_b32 v40, 16, v%d' % d)
        a('v_add_f32 v40, s72, v40')
        a('v_cvt_pk_bf16_f32 v40, v40, v40')
        a('v_bfi_b32 v40, s%d, v%d, v40' % (HI, d))
        a('v_cndmask_b32 v%d, v%d, v40, s[64:65]' % (d, d))
        a('L_nofold%d:' % rho)
        a('v_mov_b32_dpp v%d, v%d wave_shl:1 %s' % (d + 5, d + 1, DPP))
        a('v_mov_b32_dpp v%d, v%d wave_shl:1 %s' % (d + 4, d, DPP))
        for i in range(4):
            a('v_alignbit_b32 v%d, v%d, v%d, 16' % (t + i, d + i + 1, d + i))
            a('v_mov_b32 v%d, v%d' % (t + 4 + i, d + i + 1))
            a('v_alignbit_b32 v%d, v%d, v%d, 16' % (t + 8 + i, d + i + 2, d + i + 1))
        a('s_mov_b32 exec_hi, 0xfffff')
        for s, r in enumerate((d, t, t + 4, t + 8)):
            a('ds_write_b128 v%d, %s offset:%d' % (vKW, vr(r, 4), KC + (8 * rho + s) * KPITCH))
        a('s_mov_b32 exec_hi, -1')

    def mfma_plan(self):
        X = [(7, 0), (6, 0), (5, 0), (4, 0), (6, 1), (5, 1), (4, 1), (5, 2), (4, 2), (4, 3)]
        Y = [(i, j) for i in (3, 2, 1, 0) for j in range(4)]
        Zs = [(0, 4), (1, 4), (0, 5), (2, 4), (1, 5), (0, 6), (3, 4), (2, 5), (1, 6), (0, 7)]
        nh = self.opt['nh']
        if self.opt['early'] and nh:
            low = [(0, 0), (1, 0), (0, 1), (2, 0), (1, 1), (0, 2), (3, 0), (2, 1), (1, 2), (0, 3)]
            mid = [(i, j) for i, j in Y if i + j > 3]
            seq = [(1, r, i, j) for r in range(8 - nh) for i, j in X + Y + Zs]
            seq += [(2, r, i, j) for r in range(7, 8 - nh, -1) for i, j in low]
            seq += [(1, 8 - nh, i, j) for i, j in low + mid + X + Zs]
            seq += [(1, r, i, j) for r in range(9 - nh, 8) for i, j in X + mid + Zs]
        elif self.opt['early']:
            seq = [(1, r, i, j) for r in range(8) for i, j in X + Y] + [(2, r, i, j) for r in range(8) for i, j in Zs]
        else:
            seq = [(1, r, i, j) for r in range(8) for i, j in X + Y + Zs]
        first, last = {}, {}
        for n, (st, r, i, j) in enumerate(seq):
            for key in (('A', st, r, i), ('B', st, r, j)):
                first.setdefault(key, n)
                last[key] = n
        return seq, first, last

    def ld_operand(self, key, reg):
        kind, st, r, x = key
        if kind == 'A':
            off = 512 * x + 64 * r
            return ['ds_read_b64 %s, v%d offset:%d' % (vr(reg, 2), vA, off),
                    'ds_read_b64 %s, v%d offset:%d' % (vr(reg + 2, 2), vA, off + 8)]
        return ['ds_read_b128 %s, v%d offset:%d' % (vr(reg, 4), vB, 512 * (7 - x) + 64 * r)]

    def mfma_preload(self):
        seq, first, last = self.mfma_plan()
        self.pre = {('A', 1, 0, i): 96 + 4 * k for k, i in enumerate((7, 6, 5, 4, 3, 2, 1))}
        for key, reg in self.pre.items():
            for l in self.ld_operand(key, reg):
                self.a(l)

    def emit_lines(self, g):
        r = 64 + 4 * g
        return ['v_cvt_pk_bf16_f32 v%d, v%d, v%d' % (44 + 2 * g, r, r + 1),
                'v_cvt_pk_bf16_f32 v%d, v%d, v%d' % (45 + 2 * g, r + 2, r + 3),
                'ds_write_b64 v%d, %s offset:%d' % (vZW, vr(44 + 2 * g, 2), 640 * g)]

    def mfma_body(self, gate=None):
        a, o = self.a, self.opt
        seq, first, last = self.mfma_plan()
        where = dict(self.pre)
        free = [r for r in range(96, 160, 4) if r not in where.values()]
        todo = sorted((k for k in first if k not in where), key=lambda k: (first[k], k[0] == 'A'))
        issued, stamp_of, done, hist = 0, {k: 0 for k in where}, 0, []
        pending = []
        fin = {}
        for n, (st, r, i, j) in enumerate(seq):
            fin[i + j] = n
        extra = {}
        if o['early']:
            e0 = fin[3] + (4 if not o['nh'] else -2)
            for g in range(4):
                extra.setdefault(e0 + 3 * g, []).extend(self.emit_lines(g))
            extra[e0 + 9] += ['s_mov_b64 exec, 1', 'ds_add_u32 v30, v31 offset:4', 's_mov_b64 exec, -1']
            for g, n in ((4, 283), (5, 285)):
                extra.setdefault(n, []).extend(self.emit_lines(g))
        else:
            for g, n in zip(range(6), (281, 282, 283, 284, 285, 286)):
                extra.setdefault(n, []).extend(self.emit_lines(g))
        if o['ord'] >= 6:
            extra.setdefault(o['pat'], []).extend(['s_mov_b64 exec, 1', 'ds_add_u32 v30, v31 offset:12', 's_mov_b64 exec, -1'])
            extra.setdefault(o['gat'], []).extend(['s_mov_b64 exec, 1', 'ds_add_u32 v30, v31 offset:16', 's_mov_b64 exec, -1'])
        gate_at = None
        if gate:
            gate_at = 192
            extra.setdefault(gate_at - 8, []).append('ds_read_b32 v61, v30 offset:8')

        def issue(line):
            nonlocal issued
            a(line)
            if line.startswith('ds_'):
                issued += 1
                hist[-1] += 1

        def refill(n, budget):
            while budget > 0:
                if not pending:
                    if not todo or not free:
                        return
                    key = todo[0]
                    if gate_at is not None and key[0] == 'B' and key[1] == 2 and n < gate_at:
                        return
                    todo.pop(0)
                    where[key] = free.pop(0)
                    pending.extend((key, l) for l in self.ld_operand(key, where[key]))
                key, l = pending.pop(0)
                issue(l)
                stamp_of[key] = issued
                budget -= 1
        hist.append(0)
        refill(-1, 4)
        gate_stamp = None
        for n, (st, r, i, j) in enumerate(seq):
            ka, kb = ('A', st, r, i), ('B', st, r, j)
            assert ka in where and kb in where and not any(k in (ka, kb) for k, _ in pending), n
            needed = max(stamp_of[ka], stamp_of[kb])
            if gate_at is not None and n == gate_at - 2:
                needed = max(needed, gate_stamp)
            if needed > done:
                w = min(issued - needed, sum(hist[-o['look']:]), 14)
                done = issued - w
                a('s_waitcnt lgkmcnt(%d)' % w)
            g = 64 + 4 * (i + j)
            a('v_mfma_f32_16x16x32_bf16 %s, %s, %s, %s' % (vr(g, 4), vr(where[ka], 4), vr(where[kb], 4), vr(g, 4)))
            hist.append(0)
            for key in (ka, kb):
                if last[key] == n:
                    free.append(where[key])
            if gate_at is not None and n == gate_at - 2:
                a('v_readfirstlane_b32 s72, v61')
            if gate_at is not None and n == gate_at:
                gate()
            ex = extra.get(n, [])
            for l in ex:
                issue(l)
            if gate_at is not None and n == gate_at - 8:
                gate_stamp = issued
            nxt = pending[0][0] if pending else (todo[0] if todo else None)
            urgent = nxt is not None and first[nxt] - n <= 11
            refill(n, (2 if urgent else 1) if len(ex) < 2 else (1 if urgent else 0))
        assert not todo and not pending
        self.stamp(6)
        for g in (6, 7):
            for l in self.emit_lines(g):
                a(l)

    def lds_wait(self, name, off, first, full):
        a = self.a
        a('s_mov_b32 s72, %d' % first)
        l, d = self.spin_head(name)
        a('s_waitcnt lgkmcnt(0)')
        a('v_cmp_eq_u32 vcc, s72, v60')
        a('s_cbranch_vccnz %s' % d)
        if first == full:
            a('s_sleep %d' % self.opt['lsleep'])
        a('ds_read_b32 v60, v30 offset:%d' % off)
        a('s_mov_b32 s72, %d' % full)
        a('s_add_u32 s79, s79, 1')
        a('s_cmp_gt_u32 s79, %d' % (SPIN * 16))
        a('s_cbranch_scc0 %s' % l)
        a('%s:' % d)
        a('s_mov_b64 exec, -1')

    def z_out(self, parts, base=80):
        a = self.a
        for k, (off, sreg) in enumerate(parts):
            for h, va in enumerate((vZG0, vZG1)):
                r = base + 8 * k + 4 * h
                a('ds_read2st64_b32 %s, v%d offset0:%d offset1:%d' % (vr(r, 2), va, off, off + 20))
                a('ds_read2st64_b32 %s, v%d offset0:%d offset1:%d' % (vr(r + 2, 2), va, off + 40, off + 60))
        n = 2 * len(parts)
        for k in range(n):
            a('s_waitcnt lgkmcnt(%d)' % (2 * (n - 1 - k)))
            a('buffer_store_dwordx4 %s, v%d, %s, s%d offen offset:%d sc1' % (vr(base + 4 * k, 4), vL16, srd(sWS), parts[k // 2][1], 1024 * (k % 2)))

    def z_early(self, name, both=False):
        a = self.a
        a('s_add_u32 s81, s80, 4096')
        a('s_mov_b64 exec, 1')
        a('ds_read_b32 v60, v30 offset:4')
        self.lds_wait(name, 4, 4, 4)
        if self.opt['ze'] == 2:
            self.z_out(((0, 80),))
            return
        self.z_out(((0, 80), (5, 81)))
        if both:
            a('v_add_u32 v%d, 640, v%d' % (vZG0, vZG0))
            a('v_add_u32 v%d, 640, v%d' % (vZG1, vZG1))
            a('s_add_u32 s80, s80, 2048')
            a('s_add_u32 s81, s81, 2048')
            self.z_out(((0, 80), (5, 81)), 96)

    def conv(self):
        a, o = self.a, self.opt
        a('s_mul_i32 s72, s%d, %d' % (CG, KVREG))
        a('s_lshl_b32 s73, s78, 10')
        a('s_add_u32 s72, s72, s73')
        a('s_add_u32 s80, s72, %d' % KVX)
        a('s_add_u32 s81, s80, 10240')
        a('s_add_u32 s82, s80, 20480')
        a('s_mov_b64 s[70:71], -1')
        a('s_mov_b64 s[76:77], -1')
        a('s_cmp_eq_u32 s78, 1')
        a('s_cselect_b32 s74, 0xffffff, 0')
        a('s_mov_b32 s75, 0')
        a('s_cmp_eq_u32 s78, 0')
        a('s_cselect_b64 s[74:75], -1, s[74:75]')
        a('s_mov_b64 s[66:67], s[74:75]')
        a('v_mov_b32 v47, v167')
        a('v_cmp_eq_u32 s[64:65], 2, v%d' % vKI)

        def kvloads():
            l = a.label('no3')
            a('s_mov_b64 exec, s[70:71]')
            a('buffer_load_dwordx4 v[32:35], v%d, %s, s80 offen sc1' % (vL16, srd(sWS)))
            a('s_mov_b64 exec, s[76:77]')
            a('buffer_load_dwordx4 v[36:39], v%d, %s, s81 offen sc1' % (vL16, srd(sWS)))
            a('s_and_b64 exec, s[66:67], s[66:67]')
            a('s_cbranch_scc0 %s' % l)
            a('buffer_load_dwordx4 v[44:47], v%d, %s, s82 offen sc1' % (vL16, srd(sWS)))
            a('%s:' % l)
            a('s_mov_b64 exec, -1')
        self.kprep(0)
        if o['pace'] != 2:
            self.kprep(1)
        if o['pace'] == 3:
            a('s_waitcnt vmcnt(0)')
        self.hstamp(13)
        a('s_waitcnt lgkmcnt(0)')
        a('s_barrier')
        self.stamp(2)
        kvloads()
        if o['pace'] == 2:
            self.kprep(1)
            a('s_waitcnt lgkmcnt(0)')
            a('s_barrier')
        a('s_cmp_ge_u32 s%d, 4' % WV)
        a('s_cbranch_scc1 L_noA')
        self.mfma_preload()
        a('L_noA:')
        if o['tA']:
            a('v_mov_b32 v30, %d' % ZCNT)
            a('v_mov_b32 v31, 1')
            a('v_add_u32 v41, 1920, v%d' % vKVL)
            a('v_add_u32 v42, 3840, v%d' % vKVL)
        l, d = self.spin_head('kv')
        a('s_waitcnt vmcnt(0)')
        a('v_cmp_ne_u32 s[70:71], v167, v35')
        a('v_cmp_ne_u32 s[76:77], v167, v39')
        a('v_cmp_ne_u32 s[66:67], v167, v47')
        a('s_or_b64 vcc, s[70:71], s[76:77]')
        a('s_or_b64 vcc, vcc, s[66:67]')
        a('s_cbranch_scc0 %s' % d)
        kvloads()
        a('s_add_u32 s79, s79, 1')
        a('s_cmp_gt_u32 s79, %d' % SPIN)
        a('s_cbranch_scc0 %s' % l)
        a('s_waitcnt vmcnt(0)')
        a('%s:' % d)
        if self.diag is True:
            a('s_mul_i32 s79, s79, 100')
            a('s_add_u32 s98, s84, s79')
        self.stamp(4)

        def zoff():
            a('s_and_b32 s75, s%d, 3' % WV)
            a('s_mul_i32 s72, s%d, %d' % (CG, KVREG))
            a('s_lshl_b32 s73, s75, 11')
            a('s_add_u32 s72, s72, s73')
            a('s_add_u32 s80, s72, %d' % KVX)
            a('s_add_u32 s81, s80, 8192')
        if o['tA']:
            for r, va in ((32, 42), (36, 41), (44, vKVL)):
                if r == 44:
                    a('s_and_b64 exec, s[74:75], s[74:75]')
                    a('s_cbranch_scc0 L_now3')
                a('ds_write2_b32 v%d, v%d, v%d offset0:0 offset1:1' % (va, r, r + 1))
                a('ds_write_b32 v%d, v%d offset:8' % (va, r + 2))
            a('L_now3:')
            a('s_mov_b64 exec, -1')
            zoff()
        else:
            for r, off in ((32, 3840), (36, 1920)):
                for k in range(3):
                    a('ds_write_b32 v%d, v%d offset:%d' % (vKVL, r + k, off + 4 * k))
            a('s_and_b64 exec, s[74:75], s[74:75]')
            a('s_cbranch_scc0 L_now3')
            for k in range(3):
                a('ds_write_b32 v%d, v%d offset:%d' % (vKVL, 44 + k, 4 * k))
            a('s_mov_b64 exec, -1')
            self.wm_prefetch(0)
            a('L_now3:')
            a('s_mov_b64 exec, -1')
            zoff()
            a('v_mov_b32 v30, %d' % ZCNT)
            a('v_mov_b32 v31, 1')
        a('s_cmp_ge_u32 s%d, 4' % WV)
        a('s_waitcnt lgkmcnt(0)')
        a('s_barrier')
        if self.diag or self.amp:
            self.stamp(5)
            a('s_cmp_ge_u32 s%d, 4' % WV)
        a('s_cbranch_scc1 L_helper')
        if o['prio']:
            a('s_setprio 3')
        self.mfma_body()
        a('s_mov_b64 exec, 1')
        a('ds_add_rtn_u32 v60, v30, v31')
        self.lds_wait('zs', 0, 3, 4)
        self.stamp(7)
        self.z_out(((10, 81),) if o['early'] else ((0, 80), (10, 81)))
        if o['prio']:
            a('s_setprio 0')
        a('L_zjoin:')
        a('s_cmp_ge_u32 s2, %d' % N_ROW)
        a('s_cbranch_scc1 L_end')
        self.row_addresses()
        a('L_zjoin2:')
        a('s_mul_i32 s72, s%d, %d' % (WV, 16 * KVREG))
        a('s_lshl_b32 s73, s%d, 7' % RW)
        a('s_add_u32 s72, s72, s73')
        a('s_add_u32 s81, s72, %d' % KVX)
        a('s_add_u32 s80, s81, %d' % KVREG)
        a('s_mul_i32 s73, s%d, 20480' % RW)
        self.stamp(3)
        if o['early'] and o['skipack']:
            a('s_cmp_lt_u32 s%d, 64' % RW)
            a('s_cbranch_scc1 L_noack')
        a('s_waitcnt vmcnt(0)')
        a('L_noack:')
        a('s_waitcnt lgkmcnt(0)')
        a('s_barrier')

    def helper(self):
        a = self.a
        o = self.opt
        a('L_helper:')
        a('s_cmp_lg_u32 s%d, 4' % WV)
        a('s_cbranch_scc1 L_hq')
        self.go_flag()
        a('L_hq:')
        if o['tA']:
            a('s_cmp_ge_u32 s%d, 6' % WV)
            a('s_cbranch_scc1 L_hq1')
            self.wm_prefetch(-2)
        a('L_hq1:')
        if o['wrearly']:
            a('v_subrev_u32 v40, 320, v0')
            a('v_lshlrev_b32 v41, 2, v40')
            a('buffer_load_dword v76, v41, %s, 0 offen' % srd(sWR))
        a('v_lshlrev_b32 v48, 4, v%d' % C16)
        self.mad(49, R4, 1280, 48)
        a('v_mov_b32 v50, %s' % OOB)
        a('s_cmp_lt_u32 s2, %d' % N_ROW)
        a('s_cselect_b64 vcc, -1, 0')
        a('s_sub_u32 s74, s%d, 6' % WV)
        a('s_cselect_b64 vcc, 0, vcc')
        a('s_and_b32 s74, s74, 3')
        a('s_lshl2_add_u32 s72, s%d, s74' % RW)
        a('s_mul_i32 s72, s72, 5120')
        a('s_cbranch_vccz L_hq2')
        for i in range(5):
            a('buffer_load_dwordx4 %s, v49, %s, s72 offen offset:%d' % (vr(120 + 4 * i, 4), srd(sQ), 256 * i))
        if o['ord'] >= 6:
            a('s_branch L_hmod')
        elif o['ord'] >= 4:
            a('s_cmp_lt_u32 s%d, 8' % WV)
            a('s_cbranch_scc1 L_hmod')
            self.gu_prefetch()
            a('s_add_u32 s72, s72, %d' % (16 * 3456))
            a('buffer_load_dword v163, v41, %s, s72 offen' % srd(sWG))
            a('s_branch L_hmod')
        elif o['ord']:
            self.gu_prefetch()
            a('s_branch L_hmod')
        else:
            a('s_cmp_ge_u32 s%d, 8' % WV)
            a('s_cbranch_scc1 L_hmod')
            if o['gupf'] == 5:
                self.gu_prefetch()
            a('s_branch L_hq3')
        a('L_hq2:')
        if o['ord']:
            a('s_cmp_lt_u32 s2, %d' % N_ROW)
            a('s_cbranch_scc1 L_hrow')
        a('s_cmp_ge_u32 s%d, 8' % WV)
        a('s_cbranch_scc1 %s' % ('L_hpf' if o['gupf'] == 7 else 'L_end'))
        if o['ord'] >= 6:
            a('s_mov_b64 exec, 1')
            a('ds_read_b32 v60, v30 offset:16')
            self.lds_wait('gp0', 16, 4, 4)
        if o['gupf'] == 5:
            self.gu_prefetch()
        a('L_hq3:')
        self.hstamp(9)
        if o['gupf'] == 1:
            self.gu_prefetch()
        if o['gupf'] == 2:
            a('s_cmp_ge_u32 s%d, 6' % WV)
            a('s_cbranch_scc1 L_nogu')
            self.gu_prefetch()
            a('s_add_u32 s72, s72, %d' % (16 * 3456))
            a('buffer_load_dword v163, v41, %s, s72 offen' % srd(sWG))
            a('L_nogu:')
        a('s_cmp_lt_u32 s2, %d' % N_ROW)
        a('s_cbranch_scc1 L_hrow')
        if o['gupf'] in (3, 4):
            self.gu_prefetch()
        if o['gupf'] == 6:
            self.gu_prefetch(shift=10)
        if o['gupf'] == 7:
            a('L_hpf:')
            self.mm_gu_prefetch()
        elif o['dnpf']:
            self.dn_prefetch(75)
        if o['early']:
            if o['ze'] != 2:
                a('s_cmp_ge_u32 s%d, 6' % WV)
                a('s_cbranch_scc1 L_end')
            self.z_early('ze0')
        a('s_branch L_end')
        a('L_hrow:')
        a('s_cmp_lg_u32 s%d, 4' % WV)
        a('s_cbranch_scc1 L_hmod')
        a('s_mul_i32 s72, s%d, %d' % (RW, HST))
        a('s_add_u32 s72, s72, %d' % H2G)
        a('buffer_store_dwordx4 v[44:47], v%d, %s, s72 offen sc1' % (vL16, srd(sWS)))
        a('buffer_store_dword v44, v%d, %s, s72 offen offset:1024 sc1' % (vL4, srd(sWS)))
        if o['tB']:
            a('s_mul_i32 s72, s%d, 2560' % RW)
            a('s_add_u32 s72, s72, %d' % BASEG)
            for off in (0, 1024, 1536):
                a('buffer_store_dwordx4 v[44:47], v%d, %s, s72 offen offset:%d sc1' % (vL16, srd(sWS), off))
        if o['hoist']:
            self.row_addresses()
        a('s_and_b32 s72, s2, 7')
        a('s_mul_i32 s72, s72, 20480')
        a('s_add_u32 s72, s72, %d' % F2)
        a('s_add_u32 s73, s72, 8192')
        a('s_add_u32 s74, s72, 12288')
        a('v_lshlrev_b32 v40, 7, v%d' % LANE)
        if o['early'] and o['ze'] == 0:
            a('s_mov_b32 s78, s72')
            self.z_early('ze1')
            a('s_mov_b32 s72, s78')
        if o['f2wait']:
            a('s_waitcnt vmcnt(0)')
        l, d = self.spin_head('clr')
        a('s_sleep %d' % o['fsleep'])
        for k in range(3):
            a('buffer_load_dword v%d, v40, %s, s%d offen sc1' % (41 + k, srd(sWS), 72 + k))
        self.spin_bound(d)
        a('s_waitcnt vmcnt(0)')
        a('v_cmp_ne_u32 vcc, s%d, v41' % TAG)
        a('v_cmp_ne_u32 s[70:71], s%d, v42' % TAG)
        a('s_or_b64 s[70:71], s[70:71], vcc')
        a('v_cmp_ne_u32 vcc, s%d, v43' % TAG)
        a('s_or_b64 exec, s[70:71], vcc')
        a('s_cbranch_scc1 %s' % l)
        a('%s:' % d)
        a('s_mov_b64 exec, -1')
        if o['early'] and o['ze'] >= 1:
            self.z_early('ze1', True)
        self.stamp(7)
        a('s_branch %s' % ('L_zjoin2' if o['hoist'] else 'L_zjoin'))
        a('L_hmod:')
        self.hstamp(11)
        a('s_mov_b32 s69, s74')
        if o['hoist']:
            self.row_addresses()
        if o['early'] and o['ze'] == 0:
            a('s_cmp_lg_u32 s%d, 5' % WV)
            a('s_cbranch_scc1 L_noze')
            self.z_early('ze2')
            a('L_noze:')
        a('v_subrev_u32 v40, 320, v0')
        a('v_lshlrev_b32 v41, 2, v40')
        if not o['wrearly']:
            a('buffer_load_dword v76, v41, %s, 0 offen' % srd(sWR))
        a('v_lshlrev_b32 v41, 3, v40')
        a('v_add_u32 v42, %d, v41' % PAR)
        a('s_mov_b32 s72, %d' % MODG)
        a('s_mov_b32 s73, %d' % (MODG + 5120))
        a('s_mov_b32 s74, %d' % (MODG + 10240))

        def modloads():
            for v in range(6):
                a('buffer_load_dwordx2 %s, v41, %s, s%d offen offset:%d sc1' % (vr(64 + 2 * v, 2), srd(sWS), 72 + v // 2, 2560 * (v % 2)))
        if o['ord']:
            a('s_cmp_eq_u32 s%d, 5' % WV)
            a('s_cbranch_scc1 %s' % ('L_gu5' if o['ord'] >= 6 else 'L_noqs'))
            if o['ord'] >= 6:
                a('s_waitcnt vmcnt(0)')
            elif o['ord'] >= 4:
                a('s_cmp_ge_u32 s%d, 8' % WV)
                a('s_waitcnt vmcnt(2)')
                a('s_cbranch_scc1 L_qgo')
                a('s_waitcnt vmcnt(0)')
                a('L_qgo:')
            else:
                a('s_waitcnt vmcnt(1)')
        else:
            if o['early'] and o['ze'] == 0:
                a('s_cmp_eq_u32 s%d, 5' % WV)
                a('s_cbranch_scc1 L_qhere')
            a('s_waitcnt vmcnt(0)')
            a('L_qhere:')
            modloads()
            a('s_cmp_eq_u32 s%d, 5' % WV)
            a('s_cbranch_scc1 L_noqs')
        if o['gupf'] == 3:
            a('s_mov_b32 s75, s69')
            self.gu_prefetch(54, 82)
        a('s_mul_i32 s70, s69, %d' % (4 * QPITCH))
        a('s_add_u32 s70, s70, %d' % QS)
        self.mad(52, R4, QPITCH, 48)
        a('v_add_u32 v52, s70, v52')
        a('s_lshl_b32 s70, s69, 5')
        a('s_add_u32 s70, s70, %d' % ST1)
        a('v_bfe_u32 v43, v0, 5, 1')
        a('v_lshl_add_u32 v43, v43, 4, s70')
        a('v_bfe_u32 v44, v0, 4, 1')
        a('v_lshl_add_u32 v43, v44, 2, v43')
        for i in range(5):
            a('ds_write_b128 v52, %s offset:%d' % (vr(120 + 4 * i, 4), 256 * i))
        for i in range(20):
            self.unpack(50, 51, 120 + i)
            if i == 0:
                a('v_add_f32 v44, v50, v51')
                a('v_mul_f32 v46, v50, v50')
            else:
                a('v_add_f32 v44, v44, v50')
                a('v_fmac_f32 v46, v50, v50')
                a('v_add_f32 v44, v44, v51')
            a('v_fmac_f32 v46, v51, v51')
        self.row_allreduce16([44, 46])
        a('v_mul_f32 v44, 0xbacccccd, v44')
        a('v_mul_f32 v46, 0x3acccccd, v46')
        a('v_fma_f32 v46, -v44, v44, v46')
        a('v_max_f32 v46, 0, v46')
        a('v_add_f32 v46, 0x3727c5ac, v46')
        a('v_rsq_f32 v46, v46')
        a('v_mul_f32 v44, v44, v46')
        a('ds_write2_b32 v43, v46, v44 offset0:0 offset1:2')
        self.stamp(7)
        if o['ord'] >= 6:
            a('s_branch L_noqs')
            a('L_gu5:')
            a('s_mov_b64 exec, 1')
            a('ds_read_b32 v60, v30 offset:16')
            self.lds_wait('gp1', 16, 4, 4)
            a('s_mov_b32 s75, 0')
            self.gu_prefetch(54, 82)
            a('buffer_load_dword v163, v54, %s, s82 offen' % srd(sWU))
            a('s_add_u32 s82, s82, %d' % (16 * 3456))
            a('buffer_load_dword v163, v54, %s, s82 offen' % srd(sWG))
            a('buffer_load_dword v163, v54, %s, s82 offen' % srd(sWU))
        a('L_noqs:')
        if o['ord']:
            if o['ord'] == 1:
                a('s_cmp_lg_u32 s%d, 5' % WV)
                a('s_cbranch_scc1 L_nopace')
            if o['ord'] == 4:
                a('s_cmp_ge_u32 s%d, 8' % WV)
                a('s_cbranch_scc1 L_nopace')
            if o['ord'] != 3:
                a('s_mov_b64 exec, 1')
                off = 12 if o['ord'] >= 6 else 4
                a('ds_read_b32 v60, v30 offset:%d' % off)
                self.lds_wait('mp', off, 4, 4)
                a('s_mov_b32 s72, %d' % MODG)
                if o['ze'] == 2:
                    assert o['ord'] == 4
                    self.z_out(((0, 80),))
                    a('s_branch L_modld')
            a('L_nopace:')
            if o['ord'] in (1, 4):
                a('s_waitcnt vmcnt(0)')
            a('L_modld:')
            modloads()
        l, d = self.spin_head('mod')
        a('s_waitcnt vmcnt(0)')
        for v in range(6):
            a('v_xor_b32 v%d, s%d, v%d' % (65 + 2 * v, TAG, 65 + 2 * v))
        a('v_or3_b32 v65, v65, v67, v69')
        a('v_or3_b32 v71, v71, v73, v75')
        a('v_or_b32 v65, v65, v71')
        a('v_cmp_ne_u32 vcc, 0, v65')
        a('s_cbranch_vccz %s' % d)
        modloads()
        a('s_add_u32 s79, s79, 1')
        a('s_cmp_gt_u32 s79, %d' % SPIN)
        a('s_cbranch_scc0 %s' % l)
        a('s_waitcnt vmcnt(0)')
        a('%s:' % d)
        self.hstamp(12)
        if o['gupf'] == 4:
            a('s_cmp_eq_u32 s%d, 5' % WV)
            a('s_cbranch_scc1 L_nogu4')
            a('s_mov_b32 s75, s69')
            self.gu_prefetch(54, 82)
            a('L_nogu4:')
        if o['hdiag']:
            a('s_mul_i32 s79, s79, 100')
            a('s_add_u32 s94, s84, s79')
        for v in range(7):
            self.unpack(80 + 2 * v, 81 + 2 * v, 64 + 2 * v)
        for r in (82, 83, 88, 89):
            a('v_add_f32 v%d, 1.0, v%d' % (r, r))
            a('v_cvt_pk_bf16_f32 v%d, 0, v%d' % (r, r))
        for k in range(2):
            a('v_mul_f32 v%d, v%d, v%d' % (82 + k, 82 + k, 84 + k))
            a('v_mul_f32 v%d, v%d, v%d' % (80 + k, 80 + k, 84 + k))
            a('v_mul_f32 v%d, v%d, v%d' % (94 + k, 86 + k, 92 + k))
            a('v_mul_f32 v%d, v%d, v%d' % (92 + k, 88 + k, 92 + k))
        a('v_add_f32 v44, v92, v93')
        if o['tC']:
            a('v_mul_f32 v92, 0x44200000, v92')
            a('v_mul_f32 v93, 0x44200000, v93')
        for v, r in enumerate((82, 80, 88, 86, 90, 92)):
            a('ds_write_b64 v42, %s offset:%d' % (vr(r, 2), 2560 * v))
        a('v_add_f32 v46, v94, v95')
        self.row_allreduce16([44, 46])
        a('v_cvt_f64_f32 v[44:45], v44')
        a('v_cvt_f64_f32 v[46:47], v46')
        a('v_mov_b32 v42, %d' % CS)
        a('s_mov_b32 exec_lo, 0x00010001')
        a('s_mov_b32 exec_hi, 0x00010001')
        a('ds_add_f64 v42, v[44:45]')
        a('ds_add_f64 v42, v[46:47] offset:8')
        a('s_mov_b64 exec, -1')
        self.stamp(6)
        a('s_branch %s' % ('L_zjoin2' if o['hoist'] else 'L_zjoin'))

    def row_consts(self):
        a, o = self.a, self.opt
        a('s_lshl_b32 s72, s%d, 7' % WV)
        a('s_add_u32 s76, s72, s73')
        a('s_add_u32 s77, s76, 10240')
        a('s_mul_i32 s73, s%d, 1280' % RW)
        a('s_add_u32 s73, s73, s72')
        a('s_mul_i32 s74, s%d, %d' % (RW, HST))
        a('s_add_u32 s74, s74, s72')
        a('s_add_u32 s74, s74, %d' % H2G)
        a('s_lshl_b32 s73, s73, %d' % (1 if o['tB'] else 2))
        a('s_add_u32 s75, s73, %d' % BASEG)
        a('s_mul_i32 s73, s%d, %d' % (RW, o['kst']))
        a('s_add_u32 s78, s73, %d' % (KEYR if o['krep'] else KEYS))
        a('s_mov_b32 s82, s%d' % TAG)
        a('s_mov_b32 s64, %s' % ('0x44200000' if o['tC'] else '0x3acccccd'))
        a('s_mov_b32 s65, s64')
        a('s_mov_b32 s68, 0xfffff800')
        a('s_mov_b32 s69, %s' % ('0x80000000' if o['tC'] else '0x3727c5ac'))

    def row_vconsts(self):
        a = self.a
        a('v_mul_u32_u24 v%d, %d, v%d' % (vKEY, self.opt['rst'], C16))
        a('v_add_u32 v%d, 1, v%d' % (vIDX1, vIDX))
        a('v_mov_b32 v158, 0x4083126f')
        a('v_lshlrev_b32 v%d, 4, v%d' % (vHW, L8))
        a('v_sub_u32 v%d, v%d, v%d' % (vHW, vH2, vHW))
        if self.opt['h2x4']:
            a('v_lshl_add_u32 v%d, v%d, 1, v%d' % (vHR, vL4, vBASE))
        else:
            a('v_sub_u32 v%d, v%d, v%d' % (vHR, vBASE, vL4))
        a('v_mov_b32 v%d, %d' % (vCS, CS))

    def rows(self):
        a, o = self.a, self.opt
        Q, P, Z = 96, 112, 136
        sel = lambda s: 'op_sel:[0,%d,%d] op_sel_hi:[1,%d,%d]' % (s, s, s, s)

        def zloads():
            a('buffer_load_dwordx4 v[128:131], v%d, %s, s81 offen sc1' % (vZLD, srd(sWS)))
            a('buffer_load_dwordx4 v[132:135], v%d, %s, s80 offen sc1' % (vZLD, srd(sWS)))
        if not o['twob']:
            self.stamp(8)
            zloads()
        a('ds_read_b128 v[32:35], v%d' % vQS)
        a('ds_read_b128 v[36:39], v%d offset:%d' % (vQS, QPITCH))
        a('ds_read_b128 v[40:43], v%d' % vST1)
        par = (136, 144, 44, 52, 60, 68)

        def parload(v):
            a('ds_read_b128 %s, v%d offset:%d' % (vr(par[v], 4), vPAR, 2560 * v))
            a('ds_read_b128 %s, v%d offset:%d' % (vr(par[v] + 4, 4), vPAR, 2560 * v + 16))
        for v in (0, 1):
            parload(v)
        A1, A2, B1, B2, G, W = par
        if not o['t8']:
            self.row_vconsts()
        a('ds_read_b128 v[76:79], v%d' % vCS)
        self.row_consts()
        a('s_waitcnt lgkmcnt(5)')
        for c in range(8):
            for rho in range(2):
                src = 32 + 4 * rho + c // 2
                if c % 2 == 0:
                    a('v_lshlrev_b32 v%d, 16, v%d' % (Q + 2 * c + rho, src))
                else:
                    a('v_and_b32 v%d, v%d, v%d' % (Q + 2 * c + rho, vHI, src))
        for c in range(8):
            a('v_pk_fma_f32 %s, %s, v[40:41], v[42:43]' % (vr(P + 2 * c, 2), vr(Q + 2 * c, 2)))
        a('s_waitcnt lgkmcnt(0)')
        for c in range(8):
            e = c & ~1
            a('v_pk_fma_f32 %s, %s, %s, %s %s' % (vr(P + 2 * c, 2), vr(P + 2 * c, 2), vr(A1 + e, 2), vr(A2 + e, 2), sel(c & 1)))
        a('v_cvt_f32_f64 v76, v[76:77]')
        a('v_cvt_f32_f64 v77, v[78:79]')
        if o['twob']:
            if o['twob'] == 1:
                a('s_waitcnt vmcnt(0)')
                a('s_barrier')
            self.stamp(8)
            zloads()
        for v in (5, 2, 3, 4):
            parload(v)
        if o['t9']:
            l, d = self.spin_head('z')
            a('s_waitcnt vmcnt(0)')
            a('v_cmp_eq_u32 vcc, s82, v131')
            a('v_cmp_eq_u32 s[70:71], s82, v135')
            for c in range(4):
                self.unpack(Z + 2 * c, Z + 2 * c + 1, 128 + c)
            a('s_or_b64 vcc, vcc, s[70:71]')
            a('s_cbranch_scc0 %s' % d)
            a('s_mov_b64 exec, vcc')
            zloads()
            a('s_mov_b64 exec, -1')
            a('s_add_u32 s79, s79, 1')
            a('s_cmp_gt_u32 s79, %d' % SPIN)
            a('s_cbranch_scc0 %s' % l)
            a('s_waitcnt vmcnt(0)')
            a('%s:' % d)
        else:
            self.data_confirm('z', zloads, 131, 135, 10)
        self.stamp(9)
        a('s_waitcnt lgkmcnt(0)')
        S1, S2, S3 = 152, 154, 156
        for h in range(2):
            for c in range(4 * h, 4 * h + 4):
                if h or not o['t9']:
                    self.unpack(Z + 2 * c, Z + 2 * c + 1, 128 + c)
            for c in range(4 * h, 4 * h + 4):
                a('v_pk_fma_f32 %s, %s, %s, %s' % (vr(Q + 2 * c, 2), vr(P + 2 * c, 2), vr(Z + 2 * c, 2), vr(Q + 2 * c, 2)))
            for c in range(4 * h, 4 * h + 4):
                x = vr(Q + 2 * c, 2)
                s, e = c & 1, c & ~1
                if c == 0:
                    a('v_pk_mul_f32 %s, %s, %s' % (vr(S2, 2), x, x))
                    a('v_pk_mul_f32 %s, %s, %s op_sel:[0,0] op_sel_hi:[1,0]' % (vr(S3, 2), x, vr(W, 2)))
                else:
                    a('v_pk_add_f32 %s, %s, %s' % (vr(S1, 2), vr(Q, 2) if c == 1 else vr(S1, 2), x))
                    a('v_pk_fma_f32 %s, %s, %s, %s' % (vr(S2, 2), x, x, vr(S2, 2)))
                    a('v_pk_fma_f32 %s, %s, %s, %s op_sel:[0,%d,0] op_sel_hi:[1,%d,1]' % (vr(S3, 2), x, vr(W + e, 2), vr(S3, 2), s, s))
        for s in (S1, S2, S3):
            a('v_permlane32_swap_b32 v%d, v%d' % (s, s + 1))
        for s in (S1, S2, S3):
            a('v_add_f32 v%d, v%d, v%d' % (s, s, s + 1))
        a('v_permlane16_swap_b32 v%d, v%d' % (S1, S2))
        a('v_add_f32_dpp v%d, v%d, v%d row_ror:8 row_mask:0xf bank_mask:0xc' % (S3, S3, S3))
        a('v_add_f32 v%d, v%d, v%d' % (S1, S1, S2))
        a('v_add_f32_dpp v%d, v%d, v%d row_ror:8 row_mask:0xf bank_mask:0x3' % (S3, S1, S1))
        a('v_cvt_f64_f32 %s, v%d' % (vr(S1, 2), S3))
        a('ds_add_f64 v%d, %s' % (vSADD, vr(S1, 2)))
        if o['keyprio']:
            a('s_cmp_lg_u32 s%d, 2' % WV)
            a('s_cbranch_scc1 L_noprio')
            a('s_setprio 3')
            a('L_noprio:')
        a('s_waitcnt lgkmcnt(0)')
        a('s_barrier')
        a('ds_read_b128 v[128:131], v%d' % vSRD)
        a('ds_read_b128 v[132:135], v%d offset:16' % vSRD)
        a('ds_read_b128 v[152:155], v%d offset:32' % vSRD)
        a('s_waitcnt lgkmcnt(1)')
        for i in range(4):
            a('v_cvt_f32_f64 v%d, %s' % (32 + i, vr(128 + 2 * i, 2)))
        if o['tC']:
            a('v_pk_fma_f32 v[34:35], v[34:35], s[64:65], v[158:159] op_sel_hi:[1,1,0]')
            a('v_pk_fma_f32 v[34:35], v[32:33], v[32:33], v[34:35] neg_lo:[1,0,0] neg_hi:[1,0,0]')
            a('v_max_f32 v34, v158, v34')
            a('v_max_f32 v35, v158, v35')
            a('v_rsq_f32 v34, v34')
            a('v_rsq_f32 v35, v35')
            a('s_waitcnt lgkmcnt(0)')
            a('v_cvt_f32_f64 v36, v[152:153]')
            a('v_cvt_f32_f64 v37, v[154:155]')
            a('v_pk_fma_f32 v[36:37], v[32:33], v[76:77], v[36:37] op_sel_hi:[1,0,1] neg_lo:[1,0,0] neg_hi:[1,0,0]')
            a('v_pk_fma_f32 v[36:37], v[36:37], v[34:35], v[76:77] op_sel:[0,0,1] op_sel_hi:[1,1,1]')
            for r, ix in ((36, vIDX), (37, vIDX1)):
                a('v_and_or_b32 v%d, v%d, s68, v%d' % (r, r, ix))
            a('v_max_f32 v36, v36, v37')
            a('s_cmp_lg_u32 s%d, 2' % WV)
            a('v_max_f32_dpp v36, v36, v36 quad_perm:[1,0,3,2] %s' % DPP)
            a('v_pk_mul_f32 v[32:33], v[32:33], v[34:35] neg_lo:[1,0] neg_hi:[1,0]')
            a('v_max_f32_dpp v36, v36, v36 quad_perm:[2,3,0,1] %s' % DPP)
            a('v_pk_mul_f32 v[34:35], v[34:35], s[64:65]')
            a('v_max_f32_dpp v36, v36, v36 row_half_mirror %s' % DPP)
            a('s_cbranch_scc1 L_nokey')
            a('v_ashrrev_i32 v38, 31, v36')
            a('v_bitop3_b32 v166, v36, v38, s69 bitop3:0x1e')
            a('s_mov_b64 exec, 0xff')
            a('buffer_store_dwordx2 v[166:167], v%d, %s, s78 offen sc1' % (vKEY, srd(sWS)))
            a('s_mov_b64 exec, -1')
            a('L_nokey:')
            self.stamp(11)
            a('v_readfirstlane_b32 s72, v36')
        else:
            a('v_pk_mul_f32 v[32:33], v[32:33], s[64:65]')
            a('v_pk_mul_f32 v[34:35], v[34:35], s[64:65]')
            a('v_pk_fma_f32 v[34:35], v[32:33], v[32:33], v[34:35] neg_lo:[1,0,0] neg_hi:[1,0,0]')
            a('v_max_f32 v34, 0, v34')
            a('v_max_f32 v35, 0, v35')
            a('v_add_f32 v34, s69, v34')
            a('v_add_f32 v35, s69, v35')
            a('v_rsq_f32 v34, v34')
            a('v_rsq_f32 v35, v35')
            a('s_waitcnt lgkmcnt(0)')
            a('v_cvt_f32_f64 v36, v[152:153]')
            a('v_cvt_f32_f64 v37, v[154:155]')
            a('v_pk_fma_f32 v[36:37], v[32:33], v[76:77], v[36:37] op_sel_hi:[1,0,1] neg_lo:[1,0,0] neg_hi:[1,0,0]')
            a('v_pk_fma_f32 v[36:37], v[36:37], v[34:35], v[76:77] op_sel:[0,0,1] op_sel_hi:[1,1,1]')
            for r, t in ((36, 38), (37, 39)):
                a('v_ashrrev_i32 v%d, 31, v%d' % (t, r))
            for r, t in ((36, 38), (37, 39)):
                a('v_or_b32 v%d, 0x80000000, v%d' % (t, t))
            for r, t in ((36, 38), (37, 39)):
                a('v_xor_b32 v%d, v%d, v%d' % (r, r, t))
            for r, ix in ((36, vIDX), (37, 31)):
                a('v_and_or_b32 v%d, v%d, s68, v%d' % (r, r, ix))
            a('v_max_u32 v166, v36, v37')
            a('v_max_u32_dpp v166, v166, v166 quad_perm:[1,0,3,2] %s' % DPP)
            a('v_max_u32_dpp v166, v166, v166 quad_perm:[2,3,0,1] %s' % DPP)
            a('v_max_u32_dpp v166, v166, v166 row_half_mirror %s' % DPP)
            a('s_cmp_lg_u32 s%d, 2' % WV)
            a('s_cbranch_scc1 L_nokey')
            a('s_mov_b64 exec, %d' % (0xff if o['krep'] else 1))
            a('buffer_store_dwordx2 v[166:167], v85, %s, s78 offen sc1' % srd(sWS))
            a('s_mov_b64 exec, -1')
            a('L_nokey:')
            self.stamp(11)
            a('v_readfirstlane_b32 s72, v166')
            a('v_pk_mul_f32 v[32:33], v[32:33], v[34:35] neg_lo:[1,0] neg_hi:[1,0]')
        for c in range(8):
            a('v_pk_fma_f32 %s, %s, v[34:35], v[32:33]' % (vr(Z + 2 * c, 2), vr(Q + 2 * c, 2)))
        for c in range(8):
            e = c & ~1
            a('v_pk_fma_f32 %s, %s, %s, %s %s' % (vr(Z + 2 * c, 2), vr(Z + 2 * c, 2), vr(B1 + e, 2), vr(B2 + e, 2), sel(c & 1)))
        if not o['tC']:
            a('s_not_b32 s72, s72')
        a('s_bfe_u32 s73, s72, 0x30001')
        a('s_mov_b32 s70, 0x01010101')
        a('s_mov_b32 s71, 0x01010101')
        a('s_lshl_b64 s[70:71], s[70:71], s73')
        a('s_bitcmp1_b32 s72, 0')
        a('s_cbranch_scc1 L_h2odd')
        for k in range(4):
            a('v_cvt_pk_bf16_f32 v%d, v%d, v%d' % (80 + k, Z + 4 * k, Z + 4 * k + 2))
        a('s_branch L_h2st')
        a('L_h2odd:')
        for k in range(4):
            a('v_cvt_pk_bf16_f32 v%d, v%d, v%d' % (80 + k, Z + 4 * k + 1, Z + 4 * k + 3))
        a('L_h2st:')
        a('s_mov_b64 exec, s[70:71]')
        a('ds_write_b128 v%d, v[80:83]' % vHW)
        if o['h2x4']:
            a('s_mov_b64 exec, 0xff')
            a('ds_read_b128 v[84:87], v%d' % vHR)
            a('s_waitcnt lgkmcnt(0)')
            a('buffer_store_dwordx4 v[84:87], v%d, %s, s74 offen sc1' % (vL16, srd(sWS)))
        else:
            a('s_mov_b32 exec_lo, -1')
            a('s_mov_b32 exec_hi, 0')
            a('ds_read_b32 v87, v%d' % vHR)
            a('s_waitcnt lgkmcnt(0)')
            a('buffer_store_dword v87, v%d, %s, s74 offen sc1' % (vL4, srd(sWS)))
        a('s_mov_b64 exec, -1')
        self.stamp(12)
        if o['h2bar']:
            a('s_barrier')
        for c in range(8):
            e, s = c & ~1, c & 1
            a('v_pk_fma_f32 %s, %s, %s, %s op_sel:[0,%d,0] op_sel_hi:[1,%d,1]' % (vr(P + 2 * c, 2), vr(Z + 2 * c, 2), vr(G + e, 2), vr(Q + 2 * c, 2), s, s))
        for rho in range(2):
            for k in range(4):
                a('v_cvt_pk_bf16_f32 v%d, v%d, v%d' % (32 + 4 * rho + k, P + 4 * k + rho, P + 4 * k + 2 + rho))
        a('ds_write_b128 v%d, v[32:35]' % vQS)
        a('ds_write_b128 v%d, v[36:39] offset:%d' % (vQS, QPITCH))
        a('ds_read_b128 v[128:131], v%d' % vORD)
        a('ds_read_b128 v[132:135], v%d offset:%d' % (vORD, 8 * QPITCH))
        if o['h2wait']:
            a('s_waitcnt vmcnt(0)')
        a('s_waitcnt lgkmcnt(1)')
        a('buffer_store_dwordx4 v[128:131], v%d, %s, s76 offen sc1' % (vOST, srd(sO)))
        a('s_waitcnt lgkmcnt(0)')
        a('buffer_store_dwordx4 v[132:135], v%d, %s, s77 offen sc1' % (vOST, srd(sO)))
        a('s_mov_b64 exec, s[70:71]')
        a('s_bitcmp1_b32 s72, 0')
        a('s_cbranch_scc1 L_bodd')
        for k in range(4):
            a('ds_write2_b32 v%d, v%d, v%d offset0:%d offset1:%d' % (vH2, P + 4 * k, P + 4 * k + 2, 2 * k, 2 * k + 1))
        a('s_branch L_bst')
        a('L_bodd:')
        for k in range(4):
            a('ds_write2_b32 v%d, v%d, v%d offset0:%d offset1:%d' % (vH2, P + 4 * k + 1, P + 4 * k + 3, 2 * k, 2 * k + 1))
        a('L_bst:')
        if o['tB']:
            a('s_mov_b64 exec, 0xffff')
            a('v_lshl_add_u32 v88, v%d, 1, v%d' % (vL4, vBASE))
            a('ds_read_b128 v[88:91], v88')
        else:
            a('s_mov_b32 exec_lo, -1')
            a('s_mov_b32 exec_hi, 0')
            a('v_mov_b32 v89, v167')
            a('v_mov_b32 v91, v167')
            a('ds_read_b32 v88, v%d' % vBASE)
            a('ds_read_b32 v90, v%d offset:4' % vBASE)
        a('s_waitcnt vmcnt(0) lgkmcnt(0)')
        a('buffer_store_dwordx4 v[88:91], v%d, %s, s75 offen sc1' % (vL16, srd(sWS)))
        a('s_mov_b64 exec, -1')
        self.stamp(13)
        a('s_branch L_end')

    def nonconv(self):
        a = self.a
        MR, MP, GR, DR, GP, DP = 96, 60, 72, 112, 32, 12
        vGUA, vGUR, vXS, vKM, vPT, vRD = 154, 155, 160, 161, 162, 153
        a('L_nonconv:')
        a('s_mov_b32 s64, 0x05040100')
        a('s_mov_b32 s65, 0x07060302')
        a('v_lshlrev_b32 v131, 3, v%d' % C16)
        a('v_lshlrev_b32 v132, 2, v%d' % C16)
        a('v_mov_b32 v157, v167')
        a('v_mov_b32 v159, v167')
        a('v_bfe_u32 v137, v0, 5, 1')
        a('v_and_b32 v130, 31, v0')
        a('v_lshlrev_b32 v130, 2, v130')
        self.mad(134, R4, 40 * 3456, 132)
        self.mad(135, 137, 16 * 1280, 130)
        a('v_lshl_add_u32 v136, v137, 6, v132')
        a('s_sub_u32 s70, s2, %d' % MOD0)
        a('s_max_u32 s68, s2, %d' % MLP0)
        a('s_sub_u32 s68, s68, %d' % MLP0)
        a('s_and_b32 s73, s68, 7')
        a('s_bfe_u32 s74, s68, 0x10003')
        a('s_lshl_b32 s73, s73, 1')
        a('s_add_u32 s73, s73, s74')
        a('s_and_b32 s74, s68, 0x30')
        a('s_add_u32 s73, s73, s74')
        a('s_cmp_lt_u32 s68, 48')
        a('s_cselect_b32 s68, s73, s68')
        a('s_sub_u32 s69, 7, s%d' % WV)
        a('s_bitcmp1_b32 s68, %d' % (0 if self.opt['rev'] else 8))
        a('s_cselect_b32 s69, s69, s%d' % WV)
        a('s_and_b32 s69, s69, 7')
        a('s_bitcmp1_b32 s69, 0')
        a('s_cselect_b64 s[%d:%d], s[%d:%d], s[%d:%d]' % (sWG, sWG + 1, sWU, sWU + 1, sWG, sWG + 1))
        a('s_lshr_b32 s71, s69, 1')
        a('s_mul_i32 s74, s71, %d' % (160 * 3456))
        a('s_lshl_b32 s73, s68, 6')
        a('s_add_u32 s74, s74, s73')
        a('s_mul_i32 s76, s68, %d' % (32 * 1280))
        a('s_lshl_b32 s73, s%d, 7' % WV)
        a('s_add_u32 s76, s76, s73')
        a('s_and_b32 s82, s69, 1')
        a('s_lshl_b32 s82, s82, 3')
        a('s_add_u32 s82, s82, %d' % GU)
        a('v_lshl_add_u32 v129, v%d, 5, s82' % C16)
        a('v_lshl_add_u32 v%d, v137, 4, v129' % vGUA)
        a('v_lshlrev_b32 v129, 2, v136')
        a('v_add_u32 v%d, %d, v129' % (vGUR, GU))
        a('s_mul_i32 s82, s71, 320')
        a('s_add_u32 s82, s82, %d' % H2G)
        if self.opt['xd']:
            a('v_add_u32 v129, s82, v132')
        else:
            a('v_min_u32 v129, 72, v131')
            a('v_add_u32 v129, s82, v129')
        self.mad(vXS, R4, 80, 129)
        a('s_mul_i32 s82, s68, %d' % PST)
        a('s_lshl_b32 s73, s%d, 9' % WV)
        a('s_add_u32 s82, s82, s73')
        a('s_add_u32 s81, s82, %d' % PART)
        a('s_mov_b32 s78, s%d' % TAG)
        if self.opt['wmpf']:
            a('s_cmp_lt_u32 s2, 224')
            a('s_cbranch_scc1 L_nowm')
            a('s_barrier')
            if self.opt['wmpf'] == 3:
                n = self.opt['wmn']
                a('s_cmp_ge_u32 s%d, %d' % (WV, n))
                a('s_cbranch_scc1 L_nowm')
                self.wm_prefetch(None, n)
            else:
                a('s_cmp_lt_u32 s%d, 8' % WV)
                a('s_cbranch_scc1 L_nowm')
                self.wm_prefetch(8)
            a('L_nowm:')
        a('s_cmp_ge_u32 s2, %d' % (MLP0 + N_MLP))
        a('s_cbranch_scc1 L_end')
        def gowait():
            a('s_cmp_lg_u32 s%d, 1' % WV)
            a('s_cbranch_scc1 L_bggo')
            a('s_and_b32 s80, s2, 7')
            a('s_mul_i32 s80, s80, %d' % (2560 + 20480))
            a('s_add_u32 s80, s80, %d' % F2)
            self.poll16('bg', 80, 148, sleep=self.opt['gsleep'])
            a('L_bggo:')
        if self.opt['bg'] == 1:
            gowait()
        if self.opt['modwait']:
            a('s_cmp_ge_u32 s2, %d' % (FREE0 + N_FREE))
            a('s_cbranch_scc1 L_mw')
            a('s_cmp_lg_u32 s%d, 0' % WV)
            a('s_cbranch_scc1 L_mw')
            a('s_mul_i32 s80, s70, %d' % (KVREG + 512))
            a('s_add_u32 s80, s80, %d' % (KVX + 12))
            self.poll16('mw', 80, 148, sleep=2, mask='1')
            a('L_mw:')
        a('s_barrier')
        a('s_cmp_ge_u32 s2, %d' % (MOD0 + N_MOD))
        a('s_cbranch_scc1 L_mlp')
        if self.opt['modearly']:
            a('s_cmp_lt_u32 s2, %d' % (FREE0 + N_FREE))
            a('s_cbranch_scc1 L_modgo')
        self.mod_loads()
        a('L_modgo:')
        a('s_waitcnt vmcnt(32)')
        self.unpack(139, 138, 138)
        self.silu(139, 140)
        self.silu(138, 141)
        a('v_cvt_pk_bf16_f32 v138, v139, v138')
        for i in range(4):
            a('v_mov_b32 v%d, 0' % (140 + i))
        a('v_lshl_add_u32 v129, v130, 2, %d' % 0)
        a('v_lshl_add_u32 v129, v137, 3, v129')
        a('v_add_u32 v129, %d, v129' % MODACC)
        for t in range(16):
            a('s_waitcnt vmcnt(%d)' % (30 - 2 * t))
            self.pair_rows(MP + 2 * t, MR + 2 * t, MR + 1 + 2 * t)
            if t % 2 == 1:
                for u in (t - 1, t):
                    for c in range(2):
                        a('v_dot2c_f32_bf16_dpp v%d, v138, v%d row_newbcast:%d %s' % (140 + 2 * (u & 1) + c, MP + 2 * u + c, u, DPP))
        a('v_pk_add_f32 v[140:141], v[140:141], v[142:143]')
        a('v_permlane32_swap_b32 v140, v141')
        a('v_add_f32 v140, v140, v141')
        a('v_cvt_f64_f32 v[140:141], v140')
        a('ds_add_f64 v129, v[140:141]')
        a('v_lshlrev_b32 v129, 5, v%d' % C16)
        a('v_add_u32 v129, %d, v129' % MODACC)
        a('s_lshl_b32 s72, s70, 8')
        a('s_add_u32 s72, s72, %d' % MODG)
        a('s_cmp_lg_u32 s%d, 0' % WV)
        a('s_waitcnt lgkmcnt(0)')
        a('s_barrier')
        a('s_cbranch_scc1 L_modpub')
        a('s_mov_b64 exec, 0xffff')
        a('ds_read_b128 v[140:143], v129')
        a('ds_read_b128 v[144:147], v129 offset:16')
        a('s_waitcnt lgkmcnt(0)')
        for k in range(4):
            a('v_cvt_f32_f64 v%d, %s' % (140 + 2 * k, vr(140 + 2 * k, 2)))
        a('v_cvt_pk_bf16_f32 v156, v140, v142')
        a('v_cvt_pk_bf16_f32 v158, v144, v146')
        a('buffer_store_dwordx4 v[156:159], v%d, %s, s72 offen sc1' % (vL16, srd(sWS)))
        a('s_mov_b64 exec, -1')
        a('L_modpub:')
        self.stamp(3)
        if self.opt['dnpf']:
            a('s_cmp_ge_u32 s2, %d' % MLP0)
            a('s_cbranch_scc1 L_mlp')
            a('s_barrier')
            a('s_sub_u32 s75, s%d, 6' % WV)
            a('s_cbranch_scc1 L_nodn')
            if self.opt['gupf'] == 6:
                a('s_mov_b32 s78, s70')
                a('s_load_dwordx2 s[%d:%d], s[0:1], %d' % (sWG, sWG + 1, 8 * SLOT[sWG]))
                a('s_waitcnt lgkmcnt(0)')
                self.gu_prefetch(shift=10)
                a('s_mov_b32 s70, s78')
            if self.opt['gupf'] == 7:
                self.mm_dn_prefetch()
            else:
                self.dn_prefetch(75)
            a('L_nodn:')
        a('s_cmp_lt_u32 s2, %d' % (RED0 + N_RED))
        a('s_cbranch_scc1 L_keys')
        a('s_cmp_lt_u32 s2, %d' % MLP0)
        a('s_cbranch_scc1 L_end')
        a('L_mlp:')
        if self.opt['bg'] == 2:
            gowait()
        a('s_barrier')
        a('s_cmp_ge_u32 s%d, 8' % WV)
        a('s_cbranch_scc1 L_nogul')
        for t in range(20):
            a('buffer_load_dword v%d, v134, %s, s74 offen' % (GR + 2 * t, srd(sWG)))
            a('buffer_load_dword v%d, v134, %s, s74 offen offset:3456' % (GR + 1 + 2 * t, srd(sWG)))
            if t < 19:
                a('s_add_u32 s74, s74, 6912')
        a('L_nogul:')
        if self.opt['dnpf']:
            a('s_barrier')
        for i in range(16):
            a('buffer_load_dword v%d, v135, %s, s76 offen offset:%d' % (DR + i, srd(sWD), 1280 * (i % 4)))
            if i % 4 == 3:
                a('s_add_u32 s76, s76, 5120')
        a('s_waitcnt vmcnt(0)')
        for t in range(20):
            self.pair_rows(GP + 2 * t, GR + 2 * t, GR + 1 + 2 * t)
        for t in range(8):
            self.pair_rows(DP + 2 * t, DR + 2 * t, DR + 1 + 2 * t)
        for i in range(8):
            a('v_mov_b32 v%d, 0' % (140 + i))
        self.stamp(4)
        if self.opt['dry']:
            a('s_mov_b64 exec, 0')
            a('s_movk_i32 s73, 128')
            a('s_branch L_expert')
            a('L_dryout:')
            a('s_mov_b64 exec, -1')
        a('L_keys:')
        a('v_mov_b32 v129, %d' % KEYMAX)
        a('s_cmp_lt_u32 s%d, 8' % WV)
        a('s_cbranch_scc1 L_follow')
        a('s_and_b32 s73, s%d, 1' % WV)
        a('s_lshl_b32 s72, s73, 3')
        a('v_add_u32 v%d, s72, v129' % vKM)
        a('s_mul_i32 s72, s73, %d' % (self.opt['kst'] * 64))
        a('s_and_b32 s73, s2, 7')
        a('s_mul_i32 s73, s73, %d' % self.opt['rst'])
        a('s_add_u32 s72, s72, s73')
        a('s_add_u32 s72, s72, %d' % KEYR)
        a('v_mul_u32_u24 v150, %d, v%d' % (self.opt['kst'], LANE))
        if self.opt['pprio']:
            a('s_setprio %d' % self.opt['pprio'])
        D = self.opt['kd']
        kld = lambda k: a('buffer_load_dwordx2 %s, v150, %s, s72 offen sc1' % (vr(72 + 2 * k, 2), srd(sWS)))
        for k in range(D - 1):
            kld(k)
        l, d = self.spin_head('keys')
        a('s_add_u32 s79, s79, 1')
        for k in range(D):
            kld((k + D - 1) % D)
            if self.opt['ks']:
                a('s_sleep %d' % self.opt['ks'])
            if self.opt['rsl']:
                a('s_cmp_ge_u32 s2, %d' % MLP0)
                a('s_cbranch_scc1 L_nosl%d' % k)
                a('s_sleep %d' % self.opt['rsl'])
                a('L_nosl%d:' % k)
            a('s_mov_b64 s[66:67], exec')
            a('s_waitcnt vmcnt(%d)' % (D - 1))
            a('v_cmp_ne_u32 vcc, v167, v%d' % (73 + 2 * k))
            a('s_cmp_gt_u32 s79, %d' % SPIN)
            a('s_cselect_b64 vcc, 0, vcc')
            a('s_andn2_b64 exec, s[66:67], vcc')
            a('s_cbranch_scc0 L_nonew%d' % k)
            a('ds_max_u32 v%d, v%d' % (vKM, 72 + 2 * k))
            a('s_bcnt0_i32_b64 s73, vcc')
            a('v_mov_b32 v151, s73')
            a('ds_write_b32 v%d, v151 offset:4' % vKM)
            a('L_nonew%d:' % k)
            a('s_and_b64 exec, vcc, vcc')
            a('s_cbranch_scc%d %s' % ((1, l) if k == D - 1 else (0, d)))
        a('%s:' % d)
        a('s_mov_b64 exec, -1')
        a('s_cmp_ge_u32 s2, %d' % MLP0)
        a('s_waitcnt lgkmcnt(0)')
        a('s_cbranch_scc1 L_stage2')
        a('L_follow:')
        a('s_cmp_ge_u32 s2, %d' % MLP0)
        a('s_cbranch_scc1 L_spec0')
        if self.opt['tP']:
            a('s_cmp_ge_u32 s%d, 7' % WV)
            a('s_cbranch_scc1 L_notouch')
            self.part_address()
            self.part_loads()
            a('L_notouch:')
        a('s_barrier')
        a('ds_read_b128 v[132:135], v129')
        a('s_waitcnt lgkmcnt(0)')
        a('v_max_u32 v132, v132, v134')
        a('v_readfirstlane_b32 s74, v132')
        if self.opt['tC']:
            a('s_ashr_i32 s75, s74, 31')
            a('s_xnor_b32 s75, s75, s74')
        else:
            a('s_not_b32 s75, s74')
        a('s_bfe_u32 s76, s75, 0x70004')
        self.stamp(5)
        a('s_branch L_red')
        a('L_spec0:')
        a('s_mov_b32 s75, -1')
        a('s_mov_b32 s79, 0')
        a('L_spec:')
        a('ds_read_b128 v[132:135], v129')
        a('s_add_u32 s79, s79, 1')
        a('s_cmp_gt_u32 s79, %d' % (SPIN * 16))
        a('s_cbranch_scc1 L_stage1done')
        a('s_waitcnt lgkmcnt(0)')
        a('v_max_u32 v132, v132, v134')
        a('v_add_u32 v133, v133, v135')
        a('L_have:')
        a('v_readfirstlane_b32 s74, v132')
        a('v_readfirstlane_b32 s73, v133')
        if self.opt['tC']:
            a('s_ashr_i32 s76, s74, 31')
            a('s_xnor_b32 s76, s76, s74')
        else:
            a('s_not_b32 s76, s74')
        a('s_bfe_u32 s76, s76, 0x70004')
        a('s_cmp_eq_u32 s76, s75')
        a('s_cbranch_scc1 L_same')
        a('s_cmp_lt_u32 s73, %d' % self.opt['spec'])
        a('s_cbranch_scc1 L_spec')
        a('s_mul_i32 s77, s76, %d' % HST)
        if self.opt['xd']:
            a('buffer_load_dword v138, v%d, %s, s77 offen sc1' % (vXS, srd(sWS)))
            a('buffer_load_dword v139, v%d, %s, s77 offen offset:16 sc1' % (vXS, srd(sWS)))
        else:
            a('buffer_load_dwordx2 v[138:139], v%d, %s, s77 offen sc1' % (vXS, srd(sWS)))
        for i in range(4):
            a('v_mov_b32 v%d, 0' % (140 + i))
        a('s_mov_b32 s75, -1')
        a('s_waitcnt vmcnt(0)')
        a('v_cmp_eq_u32 vcc, s78, v138')
        a('v_cmp_eq_u32 s[66:67], s78, v139')
        a('s_or_b64 vcc, vcc, s[66:67]')
        a('s_cbranch_scc1 L_spec')
        if self.opt['tE']:
            a('s_cmp_eq_u32 s73, 128')
            a('s_cbranch_scc1 L_final')
            a('ds_read_b128 v[132:135], v129')
            a('s_waitcnt lgkmcnt(0)')
            a('v_max_u32 v132, v132, v134')
            a('v_add_u32 v133, v133, v135')
            a('v_cmp_ne_u32 vcc, s74, v132')
            a('v_readfirstlane_b32 s73, v133')
            a('s_cbranch_vccnz L_have')
            a('L_final:')
        a('s_mov_b32 s75, s76')
        self.stamp(6)
        a('L_expert:')
        for t in range(20):
            for c in range(2):
                a('v_dot2c_f32_bf16_dpp v%d, v%d, v%d row_newbcast:%d %s' % ((140 + 2 * (t & 1) + c, 138 + (t >= 16), GP + 2 * t + c, t if t < 16 else t - 4, DPP) if self.opt['xd'] else
                                                                                 (140 + 2 * (t & 1) + c, 138 + (t & 1), GP + 2 * t + c, t >> 1, DPP)))
        a('v_pk_add_f32 v[140:141], v[140:141], v[142:143]')
        a('v_permlane32_swap_b32 v140, v141')
        a('v_add_f32 v140, v140, v141')
        a('v_cvt_f64_f32 v[140:141], v140')
        a('L_same:')
        a('s_cmp_lt_u32 s73, 128')
        a('s_cbranch_scc1 L_spec')
        a('L_stage1done:')
        self.stamp(5)
        a('ds_add_f64 v%d, v[140:141]' % vGUA)
        a('s_waitcnt lgkmcnt(0)')
        a('L_stage2:')
        self.stamp(9)
        a('s_barrier')
        self.stamp(10)
        a('ds_read_b128 v[132:135], v%d' % vGUR)
        a('s_waitcnt lgkmcnt(0)')
        a('v_cvt_f32_f64 v138, v[132:133]')
        a('v_cvt_f32_f64 v139, v[134:135]')
        a('v_mul_f32 v137, 0xbfb8aa3b, v138')
        a('v_exp_f32 v137, v137')
        a('v_mul_f32 v138, v138, v139')
        a('v_add_f32 v137, 1.0, v137')
        a('v_rcp_f32 v137, v137')
        a('v_mul_f32 v138, v138, v137')
        a('v_mov_b32_dpp v139, v138 quad_perm:[1,0,3,2] %s' % DPP)
        a('v_cvt_pk_bf16_f32 v138, v138, v139')
        for t in range(8):
            for c in range(2):
                a('v_dot2c_f32_bf16_dpp v%d, v138, v%d row_newbcast:%d %s' % (144 + 2 * (t & 1) + c, DP + 2 * t + c, 2 * t, DPP))
        a('v_pk_add_f32 v[144:145], v[144:145], v[146:147]')
        a('v_permlane32_swap_b32 v144, v145')
        a('v_add_f32 v156, v144, v145')
        if self.opt['dry']:
            a('s_cbranch_execz L_dryout')
        a('v_permlane32_swap_b32 v156, v158')
        a('s_mov_b32 exec_hi, 0')
        self.stamp(11)
        a('buffer_store_dwordx4 v[156:159], v%d, %s, s81 offen sc1' % (vL16, srd(sWS)))
        self.stamp(7)
        a('s_branch L_end')
        a('L_red:')
        wide = N_RED == 20
        a('s_cmp_ge_u32 s%d, 7' % WV)
        a('s_cbranch_scc1 L_fin')
        self.part_address()
        a('v_bfe_u32 v15, v0, 5, 1')
        a('v_lshl_add_u32 v14, v15, 3, v14')
        a('v_add_u32 v14, %d, v14' % RED)
        r = 20 if wide else 16
        a('s_waitcnt vmcnt(0)')
        a('v_mov_b32 v%d, 0' % r)
        a('v_mov_b32 v%d, 0' % (r + 2))
        a('v_mov_b32 v%d, v167' % (r + 3))
        l, d = self.spin_head('part')
        self.part_loads()
        self.spin_bound(d)
        a('s_waitcnt vmcnt(0)')
        if wide:
            a('v_cmp_ne_u32 s[68:69], v167, v19')
            a('v_cmp_ne_u32 s[66:67], v167, v23')
            a('v_add_f32 v24, v16, v20')
            a('v_add_f32 v25, v18, v22')
            a('s_or_b64 vcc, s[66:67], s[68:69]')
        else:
            a('v_cmp_ne_u32 s[66:67], v167, v19')
            a('v_add_f32_dpp v24, v16, v16 row_ror:8 %s' % DPP)
            a('v_add_f32_dpp v25, v18, v18 row_ror:8 %s' % DPP)
            a('s_cmp_lg_u64 s[66:67], 0')
        a('s_cbranch_scc1 %s' % l)
        a('%s:' % d)
        self.stamp(6)
        a('v_permlane32_swap_b32 v24, v25')
        a('v_add_f32 v24, v24, v25')
        if not wide:
            a('s_mov_b32 exec_lo, 0x00ff00ff')
            a('s_mov_b32 exec_hi, 0x00ff00ff')
        a('v_cvt_f64_f32 v[24:25], v24')
        a('ds_add_f64 v14, v[24:25]')
        a('s_waitcnt lgkmcnt(0)')
        a('L_redbar:')
        a('s_barrier')
        a('s_branch L_end')
        a('L_fin:')
        a('s_cmp_lg_u32 s%d, 9' % WV)
        a('s_cbranch_scc1 L_redbar')
        tB = self.opt['tB']
        sh = 0 if wide else 1
        a('s_mul_i32 s72, s76, %d' % (2560 if tB else 5120))
        a('s_lshl_b32 s73, s70, %d' % ((7 if tB else 8) - sh))
        a('s_add_u32 s72, s72, s73')
        a('s_add_u32 s80, s72, %d' % BASEG)
        a('s_lshl_b32 s73, s70, %d' % (7 - sh))
        a('s_add_u32 s81, s73, %d' % (MODG + 5 * 2560))
        a('v_add_u32 v14, %d, v%d' % (RED, vL16))
        a('s_and_b32 s75, s75, 0x7ff')
        a('s_mul_i32 s72, s75, 1280')
        a('s_lshl_b32 s73, s70, %d' % (6 - sh))
        a('s_add_u32 s82, s72, s73')
        a('v_lshlrev_b32 v15, 2, v%d' % C16)
        a('s_and_b32 s72, s74, 0xfffff800')
        a('s_or_b32 s72, s72, 0x400')
        a('s_not_b32 s73, s72')
        a('s_xor_b32 s77, s72, 0x80000000')
        a('s_bitcmp1_b32 s72, 31')
        a('s_cselect_b32 s72, s77, s73')
        a('v_mov_b32 v24, s72')
        a('v_mul_f32 v24, 0xbfb8aa3b, v24')
        a('v_exp_f32 v24, v24')
        a('v_add_f32 v24, 1.0, v24')
        a('v_rcp_f32 v24, v24')
        a('s_mov_b64 exec, %s' % ('0xffff' if wide else '0xff'))
        l, d = self.spin_head('base')
        if tB:
            a('buffer_load_dwordx2 v[16:17], v131, %s, s80 offen sc1' % srd(sWS))
        else:
            a('buffer_load_dwordx4 v[16:19], v%d, %s, s80 offen sc1' % (vL16, srd(sWS)))
        a('buffer_load_dwordx2 v[20:21], v131, %s, s81 offen sc1' % srd(sWS))
        self.spin_bound(d)
        a('s_waitcnt vmcnt(0)')
        a('v_cmp_%s_u32 vcc, v167, v17' % ('eq' if tB else 'ne'))
        a('v_cmp_ne_u32 s[66:67], v167, v21')
        a('s_or_b64 vcc, vcc, s[66:67]')
        a('s_cbranch_scc1 %s' % l)
        a('%s:' % d)
        a('s_waitcnt vmcnt(0)')
        self.unpack(22, 23, 20)
        a('v_mul_f32 v22, v22, v24')
        a('v_mul_f32 v23, v23, v24')
        self.stamp(8)
        a('s_barrier')
        a('ds_read_b128 v[32:35], v14')
        a('s_waitcnt lgkmcnt(0)')
        a('v_cvt_f32_f64 v32, v[32:33]')
        a('v_cvt_f32_f64 v33, v[34:35]')
        a('v_fmac_f32 v16, v22, v32')
        a('v_fmac_f32 v%d, v23, v33' % (17 if tB else 18))
        a('v_cvt_pk_bf16_f32 v16, v16, v%d' % (17 if tB else 18))
        a('buffer_store_dword v16, v15, %s, s82 offen%s' % (srd(sO), ' sc1' if self.opt['finsc'] else ''))
        a('s_cmp_lg_u32 s70, 0')
        a('s_cbranch_scc1 L_noepoch')
        a('v_mov_b32 v25, 0')
        a('buffer_store_dword v167, v25, %s, 0 offen%s' % (srd(sWS), ' sc1' if self.opt['finsc'] else ''))
        a('L_noepoch:')
        a('s_mov_b64 exec, -1')
        self.stamp(7)

    def finish(self):
        a = self.a
        a('L_end:')
        if self.amp:
            lo, hi, j = self.amp
            self.stamp(15)
            a('s_cmp_lt_u32 s2, %d' % lo)
            a('s_cbranch_scc1 L_exit')
            a('s_cmp_ge_u32 s2, %d' % hi)
            a('s_cbranch_scc1 L_exit')
            a('s_cmp_eq_u32 s%d, 0' % (84 + j))
            a('s_cbranch_scc1 L_exit')
            a('s_sub_u32 s72, s%d, s84' % (84 + j))
            a('s_min_u32 s72, s72, 3000')
            a('s_mul_i32 s72, s72, 10')
            a('s_add_u32 s72, s72, 3000')
            a('L_amp:')
            a('s_sleep 8')
            a('s_memrealtime s[100:101]')
            a('s_waitcnt lgkmcnt(0)')
            a('s_sub_u32 s73, s100, s84')
            a('s_cmp_lt_u32 s73, s72')
            a('s_cbranch_scc1 L_amp')
        if self.diag:
            self.stamp(15)
            a('L_dwait:')
            a('s_sleep 16')
            a('s_memrealtime s[100:101]')
            a('s_waitcnt lgkmcnt(0)')
            a('s_sub_u32 s73, s100, s84')
            a('s_cmp_lt_u32 s73, 2500')
            a('s_cbranch_scc1 L_dwait')
            a('s_mov_b64 exec, -1')
            a('s_mul_i32 s72, s2, 640')
            a('s_add_u32 s72, s72, s%d' % T64)
            a('s_add_u32 s72, s72, %d' % DIAG)
            a('v_mov_b32 v2, s72')
            for i in range(16):
                a('v_mov_b32 v%d, s%d' % (8 + i, 84 + i))
            a('s_mov_b64 exec, 1')
            for i in range(4):
                a('buffer_store_dwordx4 %s, v2, %s, 0 offen offset:%d' % (vr(8 + 4 * i, 4), srd(sWS), 16 * i))
        a('L_exit:')
        a('s_endpgm')
        a('L_code_end:')

    def text(self):
        self.prologue()
        self.conv()
        self.rows()
        self.helper()
        self.nonconv()
        self.finish()
        body = self.a.body().replace('CODE_LIMIT', 'L_code_end-%s_kernel-8' % NAME)
        code, desc = kernel_text(NAME + '_kernel', body, 168)
        return (HEADER + '; @launch grid=(256,1,1) block=(640,1,1) lds=%d\n' % LDS_BYTES +
                '.amdgcn_target "amdgcn-amd-amdhsa--gfx950"\n' + code + desc)


def parse_args(args):
    kw = {}
    for x in args:
        if x == 'diag':
            kw['diag'] = True
        elif x.startswith('amp='):
            kw['amp'] = tuple(int(y) for y in x[4:].split(','))
        else:
            k, v = x.split('=')
            kw[k] = int(v, 0)
    return kw


if __name__ == '__main__':
    open(sys.argv[1], 'w').write(Gen(**parse_args(sys.argv[2:])).text())
```

```python
import sys
sys.path.insert(0, 'gen')
from asmlib import *

NAME = 'adaLN_cond__ssm_conv_h3__moe_arch_mod__prompt'
HEADER = open('cdna_kernels/%s.s.ref' % NAME).read().split('; Override launch')[0]

MODG, KEYS = 0x1000, 0x8000
H2G, BASEG, PART = 0x10000, 0x60000, 0x100000
F1, F2, GO = 0x150000, 0x1a0000, 0x1d0000
KVX, DIAG, KEYR = 0x200000, 0xf00000, 0x150000
ZREUSE = True
KVREG = 344 * 64
WS_BYTES = 0x1000000
KC, KPITCH = 0, 4160
RV, RPITCH = 66624, 4640
PS = 85248
ZS = 100224
QS, QPITCH = 120704, 1312
PAR = 141696
ACC = 157056
ST2, CS, GU, MODACC, RED, KEYMAX = ACC, ACC + 384, ACC + 512, ACC + 1024, ACC + 1536, ACC + 1792
ZCNT = ACC + 1824
RANK = ACC + 1856
PROBE, INFO = 0x7d8000, 0x7e0000
ST1 = ACC + 2560
LDS_BYTES = ST1 + 128

N_CONV, N_ROW = 160, 128
FREE0, N_FREE = 160, 41
MOD0, N_MOD = 160, 60
MLP0, N_MLP = 200, 54
RED0, N_RED = 160, 20
SPIN = 1 << 16
GROUPS = [('row', slice(0, 128)), ('conv', slice(128, 160)), ('red', slice(160, 180)), ('mod', slice(180, 200)),
          ('mm', slice(200, 220)), ('mlp', slice(220, 254))]

sK, sV, sSH, sWS, sSK, sO, sQ, sWR, sWG, sWU, sWD, sC, sWM, sD = [4 + 4 * i for i in range(14)]
SIZES = {sK: 2621440, sV: 2621440, sSH: 5120, sWS: WS_BYTES, sSK: 2621440, sQ: 2621440, sWR: 1280,
         sWG: 2211840, sWU: 2211840, sWD: 2211840, sC: 1280, sWM: 4915200, sO: 2621440}
SLOT = {sQ: 0, sK: 1, sV: 2, sSH: 3, sSK: 4, sD: 5, sWR: 7, sWG: 8, sWU: 9, sWD: 10, sC: 11, sWM: 12, sO: 13, sWS: 15}
TAG, WV, T64, HI = 60, 61, 62, 63
NEAR = 57
CG, RW = 3, 59
OOB = '0x7ffffff0'
MARK = '0x7f817f81'
DPP = 'row_mask:0xf bank_mask:0xf'

LANE, R4, C16, L8, P8, P16 = 1, 2, 3, 4, 5, 6
vPW, vPR, vKVST, vC128, vL16 = 7, 8, 9, 10, 11
vKI, vKW, vKVL, vZG0, vZG1, vZST = 12, 13, 14, 15, 16, 17
vQS, vST1, vPAR, vZLD, vSADD, vSRD, vIDX, vH2, vBASE, vORD, vOST = 18, 19, 20, 21, 22, 23, 24, 25, 26, 27, 28
vA, vB, vZW, vL4, vHI = 160, 161, 162, 164, 29
vKEY, vIDX1, vHW, vHR, vCS, vHS = 7, 8, 9, 12, 13, 10


def srd(s):
    return 's[%d:%d]' % (s, s + 3)


def vr(a, n):
    return 'v[%d:%d]' % (a, a + n - 1)


class Gen:
    def __init__(self, diag=False, amp=None, **opt):
        self.a = Asm()
        self.diag = diag
        self.amp = amp
        self.opt = dict(prio=1, h2wait=0, pf=2, depth=1, keyprio=0, bg=0, klate=0, kstride=256, full=1,
                        ksleep=0, gsleep=2, fsleep=2, dnpf=1, rev=1, gupf=5, hdiag=0, peel=1, twob=0, krep=1,
                        h2bar=1, kpos=2, modearly=0, wmpf=1, adv=0, wmn=1, wrearly=1, pace=5, modafter=0, zack=1, dry=1, hoist=1, modwait=0, qfirst=0, finsc=1, spec=64, kd=1, ks=0, free0=215, f2wait=0, early=1, skipack=1, look=6, ze=2, ord=4, lsleep=3, pat=170, gat=100, nh=4, tA=1, tC=1, tE=1, tF=1, t4=1, t8=1, t9=1, tP=1, tB=0, nred=20, rsl=0, pprio=3, h2x4=1, xd=0, kst=256, rst=65536, kbase=0x600, kvreg=22016, kvx=0x200, pst=16384, pbase=0x700, hst=4096, hbase=0x680,
                        fbase=0x1a0, mbase=0x150, bbase=0x60, koff=0, p0prio=1, w3=4, nt=0, tc=8, tn=8, rap=1, apre=0, mfirst=0, gu2=0, mrep=16384, side=3, rounds=4, dbg=0, retry=1)
        self.opt.update(opt)
        global FREE0, N_RED, KEYR, KVREG, KVX, PART, H2G, F2, MODG, BASEG, PST, HST
        o = self.opt
        KEYR, KVX, PART, H2G, F2, MODG, BASEG = (o[k] << 12 for k in ('kbase', 'kvx', 'pbase', 'hbase', 'fbase', 'mbase', 'bbase'))
        KEYR += o['koff']
        KVREG, PST, HST = o['kvreg'], o['pst'], o['hst']
        spans = sorted([(0, 128), (KEYR, 8 * o['rst']), (KVX, 160 * KVREG), (PART, 54 * PST), (H2G, 128 * HST),
                        (F2, 163840), (MODG, 15360 + 7 * o['mrep']), (BASEG, 128 * 5120), (DIAG, 0x30000)])
        assert all(a + n <= b for (a, n), (b, _) in zip(spans, spans[1:])), spans
        N_RED = self.opt['nred']
        FREE0 = self.opt['free0']

    def hstamp(self, i):
        if self.opt['hdiag']:
            self.stamp(i, True)

    def stamp(self, i, force=False):
        if self.opt['hdiag'] and 9 <= i <= 13 and not force:
            return
        if isinstance(self.diag, list):
            if i in self.diag:
                k = 84 + 2 * self.diag.index(i)
                self.a('s_memrealtime s[%d:%d]' % (k, k + 1))
            return
        if self.diag is True or (self.diag and (i in (0, 15) or i in self.diag)) or (self.amp and i in (0, self.amp[2])):
            a = self.a
            a('s_memrealtime s[100:101]')
            a('s_waitcnt lgkmcnt(0)')
            a('s_mov_b32 s%d, s100' % (84 + i))

    def srd_tail(self, regs):
        for s in regs:
            self.a('s_mov_b32 s%d, %d' % (s + 2, SIZES[s]))
            self.a('s_mov_b32 s%d, 0x20000' % (s + 3))

    def ptrs(self, regs):
        for s in regs:
            self.a('s_load_dwordx2 s[%d:%d], s[0:1], %d' % (s, s + 1, 8 * SLOT[s]))

    def mad(self, dst, src, const, add):
        self.a('s_mov_b32 s83, %d' % const)
        self.a('v_mad_u32_u24 v%d, v%d, s83, v%d' % (dst, src, add))

    def unpack(self, dst_lo, dst_hi, src):
        self.a('v_lshlrev_b32 v%d, 16, v%d' % (dst_lo, src))
        self.a('v_and_b32 v%d, v%d, v%d' % (dst_hi, vHI, src))

    def spin_head(self, name):
        a = self.a
        l, d = a.label(name), a.label(name + '_done')
        a('s_mov_b32 s79, 0')
        a('%s:' % l)
        return l, d

    def spin_bound(self, d):
        a = self.a
        a('s_add_u32 s79, s79, 1')
        a('s_cmp_gt_u32 s79, %d' % SPIN)
        a('s_cbranch_scc1 %s' % d)

    def poll16(self, name, soff, vtmp, width=1, sleep=0, vaddr=vC128, mask='0xffff'):
        a = self.a
        depth = self.opt['depth']
        op = 'buffer_load_dword' if width == 1 else 'buffer_load_dwordx2'
        reg = lambda k: ('v%d' % (vtmp + k)) if width == 1 else vr(vtmp + 2 * k, 2)
        ld = lambda k: a('%s %s, v%d, %s, s%d offen sc1' % (op, reg(k), vaddr, srd(sWS), soff))
        a('s_mov_b64 exec, %s' % mask)
        for k in range(depth - 1):
            ld(k)
        l, d = self.spin_head(name)
        for k in range(depth):
            ld((k + depth - 1) % depth)
            if sleep:
                a('s_sleep %d' % sleep)
            a('s_waitcnt vmcnt(%d)' % (depth - 1))
            if width == 2:
                a('v_mov_b32 v%d, v%d' % (vtmp + 2 * depth, vtmp + 2 * k))
            a('v_cmp_ne_u32 vcc, s%d, v%d' % (TAG, vtmp + k if width == 1 else vtmp + 2 * k + 1))
            a('s_and_b64 exec, vcc, vcc')
            a('s_cbranch_scc0 %s' % d)
        self.spin_bound(d)
        a('s_branch %s' % l)
        a('%s:' % d)
        a('s_mov_b64 exec, %s' % ('-1' if width == 1 else '0xffff'))

    def barrier_flag(self, soff, wait):
        a = self.a
        l, e = a.label('flagwave'), a.label('flagged')
        a('s_cmp_eq_u32 s%d, 9' % WV)
        a('s_cbranch_scc1 %s' % l)
        a(wait)
        a('s_barrier')
        a('s_branch %s' % e)
        a('%s:' % l)
        a('s_mov_b64 exec, 1')
        a(wait)
        a('s_barrier')
        a('buffer_store_dword v167, v%d, %s, s%d offen sc1' % (vC128, srd(sWS), soff))
        a('s_mov_b64 exec, -1')
        a('%s:' % e)

    def silu(self, x, t):
        a = self.a
        a('v_mul_f32 v%d, 0xbfb8aa3b, v%d' % (t, x))
        a('v_exp_f32 v%d, v%d' % (t, t))
        a('v_add_f32 v%d, 1.0, v%d' % (t, t))
        a('v_rcp_f32 v%d, v%d' % (t, t))
        a('v_mul_f32 v%d, v%d, v%d' % (x, x, t))

    def row_allreduce16(self, regs):
        for sh in (1, 2, 4, 8):
            for r in regs:
                self.a('v_add_f32_dpp v%d, v%d, v%d row_ror:%d %s' % (r, r, r, sh, DPP))

    def reduce4x4(self, r):
        a = self.a
        a('v_permlane32_swap_b32 v%d, v%d' % (r, r + 2))
        a('v_permlane32_swap_b32 v%d, v%d' % (r + 1, r + 3))
        a('v_add_f32 v%d, v%d, v%d' % (r, r, r + 2))
        a('v_add_f32 v%d, v%d, v%d' % (r + 1, r + 1, r + 3))
        a('v_permlane16_swap_b32 v%d, v%d' % (r, r + 1))
        a('v_add_f32 v%d, v%d, v%d' % (r, r, r + 1))

    def pair_rows(self, dst, x, y):
        self.a('v_perm_b32 v%d, v%d, v%d, s64' % (dst, y, x))
        self.a('v_perm_b32 v%d, v%d, v%d, s65' % (dst + 1, y, x))

    def prologue(self):
        a, o = self.a, self.opt
        KR, VR, SR, W, KP, VP, AC, OUT, OUT2 = 96, 105, 112, 116, 124, 124, 142, 96, 104
        a('s_getpc_b64 s[66:67]')
        self.ptrs((sK, sV, sSH, sWS, sSK))
        if (self.diag or self.amp) and not isinstance(self.diag, list):
            for i in range(16):
                a('s_mov_b32 s%d, 0' % (84 + i))
        self.stamp(0)
        a('s_cmp_ge_u32 s2, 256')
        a('s_cbranch_scc1 L_exit')
        if o['pf'] == 2:
            a('s_sub_u32 s72, s2, %d' % ((FREE0 + 7) // 8 * 8))
            a('s_cmp_lt_u32 s72, 40')
            a('s_cbranch_scc0 L_pfdone')
            a('s_lshr_b32 s72, s72, 3')
            a('v_mad_u32_u24 v43, v0, 5, s72')
            a('v_lshlrev_b32 v43, 7, v43')
            a('v_cmp_gt_u32 vcc, CODE_LIMIT, v43')
            a('s_and_saveexec_b64 s[68:69], vcc')
            a('s_cbranch_execz L_nopf')
            a('v_mov_b32 v165, s67')
            a('v_add_co_u32 v164, vcc, s66, v43')
            a('v_addc_co_u32 v165, vcc, 0, v165, vcc')
            a('global_load_dword v163, v[164:165], off')
            a('L_nopf:')
            a('s_mov_b64 exec, -1')
            a('L_pfdone:')
        a('v_readfirstlane_b32 s%d, v0' % T64)
        a('s_lshr_b32 s74, s2, 3')
        if o['pf'] == 1:
            a('v_lshl_add_u32 v43, v0, 5, s74')
            a('v_lshlrev_b32 v43, 7, v43')
            a('v_cmp_gt_u32 vcc, CODE_LIMIT, v43')
            a('s_and_saveexec_b64 s[68:69], vcc')
            a('s_cbranch_execz L_nopf')
            a('v_mov_b32 v165, s67')
            a('v_add_co_u32 v164, vcc, s66, v43')
            a('v_addc_co_u32 v165, vcc, 0, v165, vcc')
            a('global_load_dword v163, v[164:165], off')
            a('L_nopf:')
            a('s_mov_b64 exec, -1')
        a('v_bfe_u32 v%d, v0, 4, 2' % R4)
        a('v_and_b32 v%d, 15, v0' % C16)
        a('s_lshr_b32 s%d, s%d, 6' % (WV, T64))
        tc, tn = o['tc'], o['tn']
        a('s_cmpk_lt_u32 s2, %d' % N_CONV)
        a('s_cselect_b32 s72, %d, %d' % (tc, tn))
        a('s_cselect_b32 s73, 0, %d' % ((N_CONV * (tc - tn)) & 0xffffffff))
        a('s_mul_i32 s71, s2, s72')
        a('s_add_u32 s71, s71, s73')
        a('s_add_u32 s71, s71, s%d' % WV)
        a('s_cmp_lt_u32 s%d, s72' % WV)
        a('s_cselect_b32 s58, s71, -1')
        a('s_mul_i32 s70, s71, 3277')
        a('s_lshr_b32 s70, s70, 16')
        a('s_mul_i32 s72, s70, 20')
        a('s_sub_u32 s71, s71, s72')
        a('s_mul_i32 s72, s70, 30720')
        a('s_lshl_b32 s73, s71, 6')
        a('s_add_u32 s72, s72, s73')
        a('v_mul_u32_u24 v40, 7680, v%d' % R4)
        a('v_lshl_add_u32 v40, v%d, 2, v40' % C16)
        a('v_add_u32 v40, s72, v40')
        a('v_subrev_u32 v41, 3840, v40')
        a('v_add_u32 v43, 3840, v40')
        a('v_lshlrev_b32 v42, 4, v%d' % C16)
        a('s_lshl_b32 s73, s73, 2')
        if o['tF']:
            self.srd_tail((sK,))
            a('s_mov_b64 s[%d:%d], s[%d:%d]' % (sV + 2, sV + 3, sK + 2, sK + 3))
            a('s_movk_i32 s%d, %d' % (sSH + 2, SIZES[sSH]))
            a('s_mov_b32 s%d, s%d' % (sSH + 3, sK + 3))
        else:
            self.srd_tail((sK, sV, sSH))
            a('s_sub_u32 s72, s2, %d' % FREE0)
            a('s_cmp_lt_u32 s72, %d' % N_FREE)
        a('s_cmpk_ge_u32 s58, 1720')
        a('s_waitcnt lgkmcnt(0)')
        a('s_cbranch_scc1 %s' % ('L_free' if o['modearly'] else 'L_shadow'))
        a('buffer_load_dwordx4 %s, v42, %s, s73 offen' % (vr(SR, 4), srd(sSH)))
        for i in range(9):
            a('buffer_load_dword v%d, v%d, %s, 0 offen offset:%d' % (KR + i, (41, 40, 43)[i // 3], srd(sK), 1280 * (i % 3)))
        for i in range(6):
            a('buffer_load_dword v%d, v%d, %s, 0 offen offset:%d' % (VR + i, (40, 43)[i // 3], srd(sV), 1280 * (i % 3)))
        a('L_shadow:')
        if isinstance(self.diag, list):
            for i in range(1, 9):
                a('s_mov_b32 s%d, 0' % (84 + 2 * i))
        a('s_load_dword s%d, s[%d:%d], 0' % (TAG, sWS, sWS + 1))
        self.ptrs((sD, sWM, sC, sQ, sWR))
        a('v_and_b32 v%d, 63, v0' % LANE)
        a('s_and_b32 s75, s2, 7')
        a('s_mul_i32 s%d, s75, 20' % CG)
        a('s_add_u32 s%d, s%d, s74' % (CG, CG))
        a('s_and_b32 s72, s74, 7')
        a('s_lshl3_add_u32 s72, s75, s72')
        a('s_and_b32 s73, s74, 8')
        a('s_lshl3_add_u32 s%d, s73, s72' % RW)
        self.srd_tail((sSK,))
        a('s_cmp_ge_u32 s%d, 5' % WV)
        a('s_cselect_b32 s74, 1, 0')
        a('s_mul_i32 s75, s74, 5')
        a('s_sub_u32 s75, s%d, s75' % WV)
        a('s_mul_i32 s75, s75, 52')
        a('v_add_u32 v%d, s75, v%d' % (vKI, LANE))
        a('s_lshl2_add_u32 s75, s%d, s74' % CG)
        a('s_lshl_b32 s76, s75, 12')
        a('s_sub_u32 s76, s76, 32')
        a('v_lshl_add_u32 v46, v%d, 4, s76' % vKI)
        a('v_subrev_u32 v43, 2, v%d' % vKI)
        a('v_cmp_gt_u32 vcc, 256, v43')
        a('s_and_b32 vcc_hi, vcc_hi, 0x1fffff')
        a('s_cmp_lt_u32 s2, %d' % N_CONV)
        a('s_cselect_b64 vcc, vcc, 0')
        a('v_mov_b32 v47, %s' % OOB)
        a('v_cndmask_b32 v46, v47, v46, vcc')
        a('s_movk_i32 s77, 0x2000')

        def kloads():
            a('buffer_load_dwordx4 v[48:51], v46, %s, 0 offen' % srd(sSK))
            a('buffer_load_dwordx4 v[56:59], v46, %s, s77 offen' % srd(sSK))
        if o['kpos'] == 0:
            kloads()
        self.srd_tail([s for s in SIZES if s not in (sK, sV, sSH, sSK)])
        a('s_mov_b32 s%d, 0xffff0000' % HI)
        a('v_mov_b32 v%d, 0xffff0000' % vHI)
        a('v_bfe_u32 v%d, v0, 3, 3' % L8)
        a('v_and_b32 v%d, 0x70, v42' % P16)
        a('v_and_b32 v%d, 7, v0' % P8)
        a('v_lshlrev_b32 v%d, 7, v%d' % (vC128, C16))
        a('v_lshlrev_b32 v%d, 4, v%d' % (vL16, LANE))
        a('v_lshlrev_b32 v%d, 2, v%d' % (vL4, LANE))
        if o['side'] == 3:
            a('s_lshl4_add_u32 s72, s2, s%d' % WV)
            a('s_cmpk_eq_u32 s72, %d' % (254 * 16))
            a('s_cbranch_scc1 L_locate')
        self.mad(vKVST, R4, KVREG, 42)
        a('s_mul_i32 s72, s71, %d' % (8 * KVREG))
        a('s_lshl_b32 s73, s70, 8')
        a('s_add_u32 s72, s72, s73')
        a('s_add_u32 s80, s72, %d' % KVX)
        a('s_add_u32 s81, s80, %d' % (4 * KVREG))
        a('s_mul_i32 s72, s%d, 2560' % WV)
        a('s_add_u32 s72, s72, %d' % ZS)
        self.mad(vPW, R4, 640, 42)
        a('v_add_u32 v%d, s72, v%d' % (vPW, vPW))
        a('v_lshl_add_u32 v43, v%d, 5, s72' % R4)
        a('v_bfe_u32 v44, v0, 2, 2')
        a('v_mad_u32_u24 v43, v44, s83, v43')
        a('v_bfe_u32 v44, v0, 1, 1')
        a('v_lshl_add_u32 v43, v44, 4, v43')
        a('v_and_b32 v44, 1, v0')
        self.mad(vPR, 44, 320, 43)
        a('v_lshrrev_b32 v44, 1, v%d' % P8)
        a('v_lshlrev_b32 v43, 2, v0')
        a('v_add_u32 v43, %d, v43' % ACC)
        a('v_mov_b32 v45, 0')
        a('ds_write_b32 v43, v45')
        if o['kpos'] == 1:
            kloads()
        self.conv_addresses()
        if o['kpos'] == 2:
            kloads()
        a('s_waitcnt lgkmcnt(0)')
        self.ptrs((sWU, sWD, sO, sWG))
        a('s_min_u32 s72, s%d, %d' % (CG, N_CONV - 1))
        a('s_lshl_b32 s72, s72, 3')
        a('s_load_dwordx2 s[68:69], s[%d:%d], s72' % (sD, sD + 1))
        self.make_tag()
        a('v_mov_b32 v167, s%d' % TAG)
        self.stamp(14)
        a('s_cmpk_ge_u32 s58, 1720')
        a('s_cbranch_scc1 L_notile')
        if o['p0prio']:
            a('s_setprio 1')
        kp_ = o['kpos']
        a('s_waitcnt vmcnt(%d)' % (17 if kp_ <= 2 else 15))
        for j in range(4):
            for dst, src in ((W + 2 * j, SR + j // 2), (W + 1 + 2 * j, SR + 2 + j // 2)):
                if j % 2 == 0:
                    a('v_lshlrev_b32 v%d, 16, v%d' % (dst, src))
                else:
                    a('v_and_b32 v%d, v%d, v%d' % (dst, vHI, src))
        adv = o['adv']
        if adv == 1:
            self.wave_flag(78, 8)
        else:
            a('s_waitcnt vmcnt(%d)' % (8 if kp_ <= 2 else 6))
        if kp_ == 3:
            kloads()
        for i in range(9):
            self.unpack(KP + 2 * i, KP + 1 + 2 * i, KR + i)
        a('v_mov_b32 v%d, v167' % (OUT + 3))
        a('v_mov_b32 v%d, v167' % (OUT + 7))
        for j in range(4):
            for r in range(6):
                kp = KP + 2 * (r + 3 - j)
                if j == 0:
                    a('v_pk_mul_f32 %s, %s, %s' % (vr(AC + 2 * r, 2), vr(W, 2), vr(kp, 2)))
                else:
                    a('v_pk_fma_f32 %s, %s, %s, %s' % (vr(AC + 2 * r, 2), vr(W + 2 * j, 2), vr(kp, 2), vr(AC + 2 * r, 2)))
        if adv == 2:
            self.wave_flag(78, 2)
        else:
            a('s_waitcnt vmcnt(%d)' % (2 if kp_ <= 3 else 0))
        if kp_ == 4:
            kloads()
        for i in range(6):
            self.unpack(VP + 2 * i, VP + 1 + 2 * i, VR + i)
        for r in range(6):
            a('v_pk_mul_f32 %s, %s, %s' % (vr(AC + 2 * r, 2), vr(AC + 2 * r, 2), vr(VP + 2 * r, 2)))
        for c in range(2):
            for k in range(3):
                a('v_cvt_pk_bf16_f32 v%d, v%d, v%d' % (OUT + 4 * c + k, AC + 10 - 4 * k + c, AC + 8 - 4 * k + c))
            a('ds_write_b128 v%d, %s offset:%d' % (vPW, vr(OUT + 4 * c, 4), 320 * c))
        a('ds_read_b128 %s, v%d' % (vr(OUT2, 4), vPR))
        a('ds_read_b128 %s, v%d offset:128' % (vr(OUT2 + 4, 4), vPR))
        a('s_waitcnt lgkmcnt(0)')
        a('buffer_store_dwordx4 %s, v%d, %s, s80 offen sc1' % (vr(OUT2, 4), vKVST, srd(sWS)))
        a('buffer_store_dwordx4 %s, v%d, %s, s81 offen sc1' % (vr(OUT2 + 4, 4), vKVST, srd(sWS)))
        if adv == 3:
            self.wave_flag(78, 4)
        if o['p0prio']:
            a('s_setprio 0')
        self.stamp(1)
        if kp_ < 5:
            a('s_waitcnt vmcnt(2)')
            a('s_branch L_tiled')
        a('L_notile:')
        a('s_cmp_ge_u32 s2, %d' % N_CONV)
        a('s_waitcnt lgkmcnt(0)')
        a('s_cbranch_scc1 L_nonconv')
        if kp_ >= 3:
            kloads()
        a('s_waitcnt vmcnt(0)')
        a('L_tiled:')
        a('s_cmp_ge_u32 s2, %d' % N_CONV)
        a('s_cbranch_scc1 L_nonconv')

    def mod_loads(self):
        a = self.a
        a('v_bfe_u32 v137, v0, 5, 1')
        a('v_and_b32 v130, 31, v0')
        a('v_lshlrev_b32 v130, 2, v130')
        self.mad(133, 137, 32 * 7680, 130)
        a('v_lshlrev_b32 v132, 2, v%d' % C16)
        a('v_lshl_add_u32 v136, v137, 6, v132')
        a('s_sub_u32 s73, s2, %d' % MOD0)
        a('s_lshl_b32 s73, s73, 7')
        a('s_mul_i32 s72, s%d, %d' % (WV, 64 * 7680))
        a('s_add_u32 s72, s72, s73')
        a('s_lshl_b32 s73, s%d, 7' % WV)
        a('buffer_load_dword v138, v136, %s, s73 offen' % srd(sC))
        for i in range(32):
            a('buffer_load_dword v%d, v133, %s, s72 offen' % (96 + i, srd(sWM)))
            if i < 31:
                a('s_add_u32 s72, s72, 7680')

    def wave_flag(self, soff, cnt=0):
        a = self.a
        if self.opt['full']:
            a('s_mov_b32 exec_hi, 0')
        else:
            a('s_mov_b64 exec, 1')
        a('s_waitcnt vmcnt(%d)' % cnt)
        a('buffer_store_dword v167, v%d, %s, s%d offen sc1' % (vL4, srd(sWS), soff))
        a('s_mov_b64 exec, -1')

    def wm_prefetch(self, sub, n=0):
        a = self.a
        a('s_lshr_b32 s82, s2, 3')
        if n:
            a('s_lshl2_add_u32 s82, s%d, s82' % WV)
            a('s_add_u32 s82, s82, %d' % (80 - 4 * n - 28))
        else:
            a('s_lshl1_add_u32 s82, s82, s%d' % WV)
            a('s_add_u32 s82, s82, %d' % (32 - 8 - 2 * sub))
        a('s_mul_i32 s82, s82, %d' % (8 * 7680))
        a('s_and_b32 s83, s2, 7')
        a('s_lshl_b32 s83, s83, 7')
        a('s_add_u32 s82, s82, s83')
        a('v_lshlrev_b32 v165, 10, v%d' % P8)
        self.mad(165, L8, 7680, 165)
        a('buffer_load_dword v163, v165, %s, s82 offen' % srd(sWM))

    def dn_prefetch(self, su):
        a = self.a
        a('s_and_b32 s66, s2, 7')
        a('s_lshr_b32 s67, s2, 3')
        a('s_sub_u32 s67, s67, 16')
        a('s_lshl3_add_u32 s82, s%d, s66' % su)
        a('s_mul_i32 s82, s82, 640')
        a('s_mul_i32 s83, s67, 72')
        a('s_add_u32 s82, s82, s83')
        a('s_add_u32 s66, s66, 48')
        a('s_mul_i32 s66, s66, 320')
        a('s_mul_i32 s83, s67, 36')
        a('s_add_u32 s66, s66, s83')
        a('s_cmp_eq_u32 s%d, 3' % su)
        a('s_cselect_b32 s82, s66, s82')
        a('s_lshl_b32 s82, s82, 7')
        a('v_lshl_add_u32 v165, v%d, 7, s82' % LANE)
        a('buffer_load_dword v163, v165, %s, 0 offen' % srd(sWD))
        a('s_mov_b64 exec, 0xff')
        a('v_add_u32 v165, 8192, v165')
        a('buffer_load_dword v163, v165, %s, 0 offen' % srd(sWD))
        a('s_mov_b64 exec, -1')

    def go_flag(self):
        a = self.a
        a('s_lshl_b32 s82, s%d, 7' % CG)
        a('s_add_u32 s82, s82, %d' % F2)
        for i in range(4):
            a('v_mov_b32 v%d, v167' % (44 + i))
        a('buffer_store_dwordx4 v[44:47], v%d, %s, s82 offen sc1' % (vZST, srd(sWS)))

    def gu_prefetch(self, v=41, st=72, shift=0):
        a = self.a
        a('s_and_b32 s70, s2, 7')
        a('s_lshr_b32 s71, s2, 3')
        if shift:
            a('s_sub_u32 s71, s71, %d' % shift)
        a('v_and_b32 v%d, 3, v0' % v)
        a('v_lshl_add_u32 v%d, v%d, 3, s70' % (v + 1, v))
        a('s_lshr_b32 s%d, s70, 1' % st)
        a('s_add_u32 s%d, s%d, 24' % (st, st))
        a('v_min_u32 v%d, s%d, v%d' % (v + 1, st, v + 1))
        a('v_lshlrev_b32 v%d, 7, v%d' % (v + 1, v + 1))
        a('v_lshrrev_b32 v%d, 2, v%d' % (v, LANE))
        self.mad(v, v, 3456, v + 1)
        a('s_bitcmp1_b32 s75, 0')
        a('s_cselect_b64 s[%d:%d], s[%d:%d], s[%d:%d]' % (sWG, sWG + 1, sWU, sWU + 1, sWG, sWG + 1))
        a('s_lshr_b32 s%d, s75, 1' % st)
        a('s_lshl1_add_u32 s%d, s71, s%d' % (st, st))
        a('s_mul_i32 s%d, s%d, %d' % (st, st, 16 * 3456))
        a('buffer_load_dword v163, v%d, %s, s%d offen' % (v, srd(sWG), st))

    def gu2_prefetch(self):
        a = self.a
        a('s_and_b32 s70, s2, 7')
        a('s_lshr_b32 s71, s2, 3')
        a('v_and_b32 v42, 1, v0')
        a('v_lshlrev_b32 v42, 10, v42')
        a('v_lshrrev_b32 v41, 1, v%d' % LANE)
        self.mad(41, 41, 3456, 42)
        a('s_bitcmp1_b32 s%d, 0' % WV)
        a('s_cselect_b64 s[%d:%d], s[%d:%d], s[%d:%d]' % (sWG, sWG + 1, sWU, sWU + 1, sWG, sWG + 1))
        a('s_mul_i32 s72, s71, %d' % (32 * 3456))
        a('s_lshl_b32 s70, s70, 7')
        a('s_add_u32 s72, s72, s70')
        a('buffer_load_dword v163, v41, %s, s72 offen' % srd(sWG))

    def mm_gu_prefetch(self):
        a = self.a
        l1, l2 = a.label('g1'), a.label('g2')
        a('s_and_b32 s70, s2, 7')
        a('s_lshr_b32 s71, s2, 3')
        a('s_mul_i32 s71, s71, 6')
        a('s_add_u32 s71, s71, s%d' % WV)
        a('s_sub_u32 s71, s71, 100')
        a('s_bitcmp1_b32 s71, 0')
        a('s_cselect_b64 s[%d:%d], s[%d:%d], s[%d:%d]' % (sWG, sWG + 1, sWU, sWU + 1, sWG, sWG + 1))
        a('v_mul_u32_u24 v41, 3456, v%d' % LANE)
        a('s_lshr_b32 s72, s71, 1')
        a('s_mul_i32 s72, s72, %d' % (64 * 3456))
        a('s_lshl_b32 s73, s70, 7')
        a('s_add_u32 s72, s72, s73')
        a('s_cmp_ge_u32 s71, 20')
        a('s_cbranch_scc1 %s' % l1)
        a('buffer_load_dword v163, v41, %s, s72 offen' % srd(sWG))
        a('%s:' % l1)
        a('s_cmp_ge_u32 s70, 4')
        a('s_cbranch_scc1 %s' % l2)
        a('s_cmp_lt_u32 s71, 14')
        a('s_cbranch_scc1 %s' % l2)
        a('s_sub_u32 s72, s72, %d' % (7 * 64 * 3456 - 1024))
        a('buffer_load_dword v163, v41, %s, s72 offen' % srd(sWG))
        a('%s:' % l2)

    def mm_dn_prefetch(self):
        a = self.a
        l = a.label('d')
        a('s_and_b32 s66, s2, 7')
        a('s_lshr_b32 s67, s2, 3')
        a('s_sub_u32 s67, s67, 20')
        a('s_lshl1_add_u32 s82, s67, s75')
        a('s_add_u32 s83, s67, 80')
        a('s_cmp_lt_u32 s75, 2')
        a('s_cselect_b32 s82, s82, s83')
        a('s_mul_i32 s83, s66, 10')
        a('s_add_u32 s82, s82, s83')
        a('s_lshl_b32 s82, s82, 13')
        a('s_lshr_b32 s83, s66, 2')
        a('s_add_u32 s83, s83, s75')
        a('s_cmp_ge_u32 s83, 3')
        a('s_cbranch_scc1 %s' % l)
        a('v_lshlrev_b32 v165, 7, v%d' % LANE)
        a('buffer_load_dword v163, v165, %s, s82 offen' % srd(sWD))
        a('%s:' % l)

    def part_address(self):
        a = self.a
        a('s_lshl_b32 s72, s%d, 3' % WV)
        if N_RED == 20:
            a('v_add_u32 v12, s72, v%d' % R4)
            a('v_add_u32 v13, 4, v12')
            a('v_cmp_gt_u32 s[66:67], %d, v13' % N_MLP)
            a('v_lshlrev_b32 v14, 4, v%d' % C16)
            self.mad(12, 12, PST, 14)
            self.mad(13, 13, PST, 14)
            a('s_mov_b64 s[68:69], -1')
            a('s_lshl_b32 s72, s70, 8')
        else:
            a('v_add_u32 v12, s72, v%d' % L8)
            a('v_cmp_gt_u32 s[66:67], %d, v12' % N_MLP)
            a('v_mov_b32 v14, v%d' % P16)
            self.mad(12, 12, PST, 14)
            a('s_lshl_b32 s72, s70, 7')
        a('s_add_u32 s72, s72, %d' % PART)
        a('s_add_u32 s72, s72, s%d' % NEAR)

    def part_loads(self):
        a = self.a
        if N_RED == 20:
            a('s_mov_b64 exec, s[68:69]')
            a('buffer_load_dwordx4 v[16:19], v12, %s, s72 offen sc1' % srd(sWS))
            a('s_mov_b64 exec, s[66:67]')
            a('buffer_load_dwordx4 v[20:23], v13, %s, s72 offen sc1' % srd(sWS))
        else:
            a('s_mov_b64 exec, s[66:67]')
            a('buffer_load_dwordx4 v[16:19], v12, %s, s72 offen sc1' % srd(sWS))
        a('s_mov_b64 exec, -1')

    def slot(self, dst, src, per, size, tmp):
        a = self.a
        sh = per.bit_length() - 1
        a('s_lshr_b32 s%d, s%d, %d' % (tmp, src, sh))
        a('s_mul_i32 s%d, s%d, %d' % (tmp, tmp, 16384 - per * size))
        a('s_mul_i32 s%d, s%d, %d' % (dst, src, size))
        a('s_add_u32 s%d, s%d, s%d' % (dst, dst, tmp))

    def make_tag(self):
        a = self.a
        a('s_mul_i32 s%d, s%d, 0x9e3779b1' % (TAG, TAG))
        a('s_add_u32 s%d, s%d, 0x7f4a7c15' % (TAG, TAG))
        a('s_and_b32 s%d, s%d, 0x1fffff' % (TAG, TAG))
        a('s_or_b32 s%d, s%d, 0x7fa00000' % (TAG, TAG))

    def flag_probe(self, soff, v):
        self.a('s_mov_b64 exec, 0xffff')
        self.a('buffer_load_dword v%d, v%d, %s, s%d offen sc1' % (v, vC128, srd(sWS), soff))
        self.a('s_mov_b64 exec, -1')

    def flag_confirm(self, name, soff, v):
        a = self.a
        a('s_mov_b64 exec, 0xffff')
        l, d = self.spin_head(name)
        a('v_cmp_ne_u32 vcc, s%d, v%d' % (TAG, v))
        a('s_and_b64 exec, vcc, vcc')
        a('s_cbranch_scc0 %s' % d)
        a('buffer_load_dword v%d, v%d, %s, s%d offen sc1' % (v, vC128, srd(sWS), soff))
        a('s_add_u32 s79, s79, 1')
        a('s_cmp_gt_u32 s79, %d' % SPIN)
        a('s_waitcnt vmcnt(0)')
        a('s_cbranch_scc0 %s' % l)
        a('%s:' % d)
        a('s_mov_b64 exec, -1')

    def data_confirm(self, name, loads, r0, r1, count_stamp):
        a = self.a
        l, d = self.spin_head(name)
        a('s_waitcnt vmcnt(0)')
        a('v_cmp_eq_u32 vcc, s82, v%d' % r0)
        a('v_cmp_eq_u32 s[70:71], s82, v%d' % r1)
        a('s_or_b64 exec, vcc, s[70:71]')
        a('s_cbranch_scc0 %s' % d)
        loads()
        a('s_add_u32 s79, s79, 1')
        a('s_cmp_gt_u32 s79, %d' % SPIN)
        a('s_cbranch_scc0 %s' % l)
        a('s_waitcnt vmcnt(0)')
        a('%s:' % d)
        a('s_mov_b64 exec, -1')
        if self.diag is True and count_stamp is not None and not self.opt['hdiag']:
            a('s_mul_i32 s79, s79, 100')
            a('s_add_u32 s%d, s84, s79' % (84 + count_stamp))

    def conv_addresses(self):
        a = self.a
        a('s_mul_i32 s72, s74, %d' % (4 * KPITCH))
        a('v_lshl_add_u32 v%d, v%d, 4, s72' % (vKW, vKI))
        if self.opt['w3']:
            a('s_sub_u32 s78, s%d, %d' % (WV, self.opt['w3']))
            a('s_cselect_b32 s72, 10, 0')
            a('s_add_u32 s78, s78, s72')
        else:
            a('s_sub_u32 s78, 9, s%d' % WV)
        a('s_mul_i32 s72, s78, 192')
        a('s_sub_u32 s72, %d, s72' % (RV + 4084 - 3840))
        a('v_lshrrev_b32 v43, 2, v%d' % LANE)
        a('v_mul_u32_u24 v43, 12, v43')
        a('v_sub_u32 v43, s72, v43')
        a('v_and_b32 v45, 3, v0')
        self.mad(vKVL, 45, RPITCH, 43)
        a('v_and_b32 v45, 1, v0')
        a('s_and_b32 s72, s%d, 3' % WV)
        a('s_mul_i32 s72, s72, 640')
        a('s_add_u32 s72, s72, %d' % ZS)
        a('v_lshl_add_u32 v43, v45, 2, s72')
        a('v_lshl_add_u32 v43, v%d, 3, v43' % L8)
        self.mad(vZG0, 44, 160, 43)
        a('v_add_u32 v%d, 64, v%d' % (vZG1, vZG0))
        self.mad(vZST, L8, 20480, P16)
        a('s_cmp_ge_u32 s%d, 4' % WV)
        a('s_cbranch_scc1 L_nomf')
        for i in range(32):
            a('v_mov_b32 v%d, 0' % (64 + i))
        a('s_mul_i32 s72, s%d, %d' % (WV, RPITCH))
        a('s_add_u32 s76, s72, %d' % (RV + 4096))
        a('v_min_u32 v43, 59, v%d' % LANE)
        a('v_lshl_add_u32 v43, v43, 3, s76')
        a('ds_write_b64 v43, v[64:65]')
        a('s_add_u32 s72, s72, %d' % (RV + 480))
        a('v_lshl_add_u32 v%d, v%d, 4, s72' % (vB, R4))
        a('v_lshlrev_b32 v43, 5, v%d' % C16)
        a('v_sub_u32 v%d, v%d, v43' % (vB, vB))
        a('v_lshl_add_u32 v43, v%d, 3, v%d' % (R4, C16))
        a('v_add_u32 v43, 1, v43')
        a('v_and_b32 v45, 3, v43')
        a('s_mul_i32 s72, s%d, %d' % (WV, 4 * KPITCH))
        a('v_lshl_add_u32 v43, v43, 1, s72')
        self.mad(vA, 45, KPITCH - 2, 43)
        a('s_mul_i32 s72, s%d, 5120' % WV)
        a('s_add_u32 s72, s72, %d' % ZS)
        a('v_lshl_add_u32 v43, v%d, 3, s72' % C16)
        self.mad(vZW, R4, 160, 43)
        a('L_nomf:')
        self.mad(vOST, L8, 1280, P16)

    def row_addresses(self):
        a = self.a
        a('s_lshl_b32 s72, s%d, 7' % WV)
        a('s_add_u32 s72, s72, %d' % QS)
        a('v_lshl_add_u32 v43, v%d, 4, s72' % L8)
        self.mad(vQS, P8, 2 * QPITCH, 43)
        a('v_add_u32 v43, s72, v%d' % P16)
        self.mad(vORD, L8, QPITCH, 43)
        a('v_add_u32 v%d, %d, v%d' % (vST1, ST1, P16))
        a('s_lshl_b32 s72, s%d, 8' % WV)
        a('s_add_u32 s73, s72, %d' % PAR)
        a('v_lshl_add_u32 v%d, v%d, 5, s73' % (vPAR, L8))
        a('s_add_u32 s73, s72, %d' % PS)
        a('v_lshl_add_u32 v%d, v%d, 5, s73' % (vH2, L8))
        a('v_lshl_add_u32 v%d, v%d, 3, s73' % (vBASE, LANE))
        self.mad(vZLD, L8, 2 * KVREG, P16)
        a('v_mul_u32_u24 v43, 48, v%d' % P8)
        a('v_add_u32 v%d, %d, v43' % (vSRD, ST2))
        a('v_bfe_u32 v43, v0, 4, 1')
        a('v_bfe_u32 v45, v0, 3, 1')
        a('v_lshl_add_u32 v43, v45, 1, v43')
        a('v_min_u32 v43, 2, v43')
        a('v_lshl_add_u32 v43, v43, 4, v%d' % vSRD)
        a('v_bfe_u32 v45, v0, 5, 1')
        a('v_lshl_add_u32 v%d, v45, 3, v43' % vSADD)
        a('s_lshl_b32 s72, s%d, 4' % RW)
        if self.opt['tC']:
            a('v_lshl_add_u32 v%d, v%d, 1, s72' % (vIDX, P8))
            if self.opt['t8']:
                self.row_vconsts()
        else:
            a('s_sub_u32 s72, 2047, s72')
            a('v_lshlrev_b32 v43, 1, v%d' % P8)
            a('v_sub_u32 v%d, s72, v43' % vIDX)

    def kprep(self, rho):
        a = self.a
        d, t = (48, 120) if rho == 0 else (56, 132)
        if self.opt['t4']:
            a('s_cmp_eq_u64 s[64:65], 0')
            a('s_cbranch_scc1 L_nofold%d' % rho)
        a('s_lshl_b32 s72, s%d, 16' % (68 + rho))
        a('s_and_b32 s73, s%d, s%d' % (68 + rho, HI))
        a('s_cmp_ge_u32 s%d, 5' % WV)
        a('s_cselect_b32 s72, s73, s72')
        a('v_lshlrev_b32 v40, 16, v%d' % d)
        a('v_add_f32 v40, s72, v40')
        a('v_cvt_pk_bf16_f32 v40, v40, v40')
        a('v_bfi_b32 v40, s%d, v%d, v40' % (HI, d))
        a('v_cndmask_b32 v%d, v%d, v40, s[64:65]' % (d, d))
        a('L_nofold%d:' % rho)
        a('v_mov_b32_dpp v%d, v%d wave_shl:1 %s' % (d + 5, d + 1, DPP))
        a('v_mov_b32_dpp v%d, v%d wave_shl:1 %s' % (d + 4, d, DPP))
        for i in range(4):
            a('v_alignbit_b32 v%d, v%d, v%d, 16' % (t + i, d + i + 1, d + i))
            a('v_mov_b32 v%d, v%d' % (t + 4 + i, d + i + 1))
            a('v_alignbit_b32 v%d, v%d, v%d, 16' % (t + 8 + i, d + i + 2, d + i + 1))
        a('s_mov_b32 exec_hi, 0xfffff')
        for s, r in enumerate((d, t, t + 4, t + 8)):
            a('ds_write_b128 v%d, %s offset:%d' % (vKW, vr(r, 4), KC + (8 * rho + s) * KPITCH))
        a('s_mov_b32 exec_hi, -1')

    def mfma_plan(self):
        X = [(7, 0), (6, 0), (5, 0), (4, 0), (6, 1), (5, 1), (4, 1), (5, 2), (4, 2), (4, 3)]
        Y = [(i, j) for i in (3, 2, 1, 0) for j in range(4)]
        Zs = [(0, 4), (1, 4), (0, 5), (2, 4), (1, 5), (0, 6), (3, 4), (2, 5), (1, 6), (0, 7)]
        nh = self.opt['nh']
        if self.opt['early'] and nh:
            low = [(0, 0), (1, 0), (0, 1), (2, 0), (1, 1), (0, 2), (3, 0), (2, 1), (1, 2), (0, 3)]
            mid = [(i, j) for i, j in Y if i + j > 3]
            seq = [(1, r, i, j) for r in range(8 - nh) for i, j in X + Y + Zs]
            seq += [(2, r, i, j) for r in range(7, 8 - nh, -1) for i, j in low]
            seq += [(1, 8 - nh, i, j) for i, j in low + mid + X + Zs]
            seq += [(1, r, i, j) for r in range(9 - nh, 8) for i, j in X + mid + Zs]
        elif self.opt['early']:
            seq = [(1, r, i, j) for r in range(8) for i, j in X + Y] + [(2, r, i, j) for r in range(8) for i, j in Zs]
        else:
            seq = [(1, r, i, j) for r in range(8) for i, j in X + Y + Zs]
        first, last = {}, {}
        for n, (st, r, i, j) in enumerate(seq):
            for key in (('A', st, r, i), ('B', st, r, j)):
                first.setdefault(key, n)
                last[key] = n
        return seq, first, last

    def ld_operand(self, key, reg):
        kind, st, r, x = key
        if kind == 'A':
            off = 512 * x + 64 * r
            return ['ds_read_b64 %s, v%d offset:%d' % (vr(reg, 2), vA, off),
                    'ds_read_b64 %s, v%d offset:%d' % (vr(reg + 2, 2), vA, off + 8)]
        return ['ds_read_b128 %s, v%d offset:%d' % (vr(reg, 4), vB, 512 * (7 - x) + 64 * r)]

    def mfma_preload(self):
        seq, first, last = self.mfma_plan()
        self.pre = {('A', 1, 0, i): 96 + 4 * k for k, i in enumerate((7, 6, 5, 4, 3, 2, 1))}
        for key, reg in self.pre.items():
            for l in self.ld_operand(key, reg):
                self.a(l)

    def emit_lines(self, g):
        r = 64 + 4 * g
        return ['v_cvt_pk_bf16_f32 v%d, v%d, v%d' % (44 + 2 * g, r, r + 1),
                'v_cvt_pk_bf16_f32 v%d, v%d, v%d' % (45 + 2 * g, r + 2, r + 3),
                'ds_write_b64 v%d, %s offset:%d' % (vZW, vr(44 + 2 * g, 2), 640 * g)]

    def mfma_body(self, gate=None):
        a, o = self.a, self.opt
        seq, first, last = self.mfma_plan()
        where = dict(self.pre)
        free = [r for r in range(96, 160, 4) if r not in where.values()]
        todo = sorted((k for k in first if k not in where), key=lambda k: (first[k], k[0] == 'A'))
        issued, stamp_of, done, hist = 0, {k: 0 for k in where}, 0, []
        pending = []
        fin = {}
        for n, (st, r, i, j) in enumerate(seq):
            fin[i + j] = n
        extra = {}
        if o['early']:
            e0 = fin[3] + (4 if not o['nh'] else -2)
            for g in range(4):
                extra.setdefault(e0 + 3 * g, []).extend(self.emit_lines(g))
            extra[e0 + 9] += ['s_mov_b64 exec, 1', 'ds_add_u32 v30, v31 offset:4', 's_mov_b64 exec, -1']
            for g, n in ((4, 283), (5, 285)):
                extra.setdefault(n, []).extend(self.emit_lines(g))
        else:
            for g, n in zip(range(6), (281, 282, 283, 284, 285, 286)):
                extra.setdefault(n, []).extend(self.emit_lines(g))
        if o['ord'] >= 6:
            extra.setdefault(o['pat'], []).extend(['s_mov_b64 exec, 1', 'ds_add_u32 v30, v31 offset:12', 's_mov_b64 exec, -1'])
            extra.setdefault(o['gat'], []).extend(['s_mov_b64 exec, 1', 'ds_add_u32 v30, v31 offset:16', 's_mov_b64 exec, -1'])
        gate_at = None
        if gate:
            gate_at = 192
            extra.setdefault(gate_at - 8, []).append('ds_read_b32 v61, v30 offset:8')

        def issue(line):
            nonlocal issued
            a(line)
            if line.startswith('ds_'):
                issued += 1
                hist[-1] += 1

        def refill(n, budget):
            while budget > 0:
                if not pending:
                    if not todo or not free:
                        return
                    key = todo[0]
                    if gate_at is not None and key[0] == 'B' and key[1] == 2 and n < gate_at:
                        return
                    todo.pop(0)
                    where[key] = free.pop(0)
                    pending.extend((key, l) for l in self.ld_operand(key, where[key]))
                key, l = pending.pop(0)
                issue(l)
                stamp_of[key] = issued
                budget -= 1
        hist.append(0)
        refill(-1, 4)
        gate_stamp = None
        for n, (st, r, i, j) in enumerate(seq):
            ka, kb = ('A', st, r, i), ('B', st, r, j)
            assert ka in where and kb in where and not any(k in (ka, kb) for k, _ in pending), n
            needed = max(stamp_of[ka], stamp_of[kb])
            if gate_at is not None and n == gate_at - 2:
                needed = max(needed, gate_stamp)
            if needed > done:
                w = min(issued - needed, sum(hist[-o['look']:]), 14)
                done = issued - w
                a('s_waitcnt lgkmcnt(%d)' % w)
            g = 64 + 4 * (i + j)
            a('v_mfma_f32_16x16x32_bf16 %s, %s, %s, %s' % (vr(g, 4), vr(where[ka], 4), vr(where[kb], 4), vr(g, 4)))
            hist.append(0)
            for key in (ka, kb):
                if last[key] == n:
                    free.append(where[key])
            if gate_at is not None and n == gate_at - 2:
                a('v_readfirstlane_b32 s72, v61')
            if gate_at is not None and n == gate_at:
                gate()
            ex = extra.get(n, [])
            for l in ex:
                issue(l)
            if gate_at is not None and n == gate_at - 8:
                gate_stamp = issued
            nxt = pending[0][0] if pending else (todo[0] if todo else None)
            urgent = nxt is not None and first[nxt] - n <= 11
            refill(n, (2 if urgent else 1) if len(ex) < 2 else (1 if urgent else 0))
        assert not todo and not pending
        self.stamp(6)
        for g in (6, 7):
            for l in self.emit_lines(g):
                a(l)

    def lds_wait(self, name, off, first, full):
        a = self.a
        a('s_mov_b32 s72, %d' % first)
        l, d = self.spin_head(name)
        a('s_waitcnt lgkmcnt(0)')
        a('v_cmp_eq_u32 vcc, s72, v60')
        a('s_cbranch_vccnz %s' % d)
        if first == full:
            a('s_sleep %d' % self.opt['lsleep'])
        a('ds_read_b32 v60, v30 offset:%d' % off)
        a('s_mov_b32 s72, %d' % full)
        a('s_add_u32 s79, s79, 1')
        a('s_cmp_gt_u32 s79, %d' % (SPIN * 16))
        a('s_cbranch_scc0 %s' % l)
        a('%s:' % d)
        a('s_mov_b64 exec, -1')

    def z_out(self, parts, base=80):
        a = self.a
        for k, (off, sreg) in enumerate(parts):
            for h, va in enumerate((vZG0, vZG1)):
                r = base + 8 * k + 4 * h
                a('ds_read2st64_b32 %s, v%d offset0:%d offset1:%d' % (vr(r, 2), va, off, off + 20))
                a('ds_read2st64_b32 %s, v%d offset0:%d offset1:%d' % (vr(r + 2, 2), va, off + 40, off + 60))
        n = 2 * len(parts)
        for k in range(n):
            a('s_waitcnt lgkmcnt(%d)' % (2 * (n - 1 - k)))
            a('buffer_store_dwordx4 %s, v%d, %s, s%d offen offset:%d sc1' % (vr(base + 4 * k, 4), vL16, srd(sWS), parts[k // 2][1], 1024 * (k % 2)))

    def z_early(self, name, both=False):
        a = self.a
        a('s_add_u32 s81, s80, 4096')
        a('s_mov_b64 exec, 1')
        a('ds_read_b32 v60, v30 offset:4')
        self.lds_wait(name, 4, 4, 4)
        if self.opt['ze'] == 2:
            self.z_out(((0, 80),))
            return
        self.z_out(((0, 80), (5, 81)))
        if both:
            a('v_add_u32 v%d, 640, v%d' % (vZG0, vZG0))
            a('v_add_u32 v%d, 640, v%d' % (vZG1, vZG1))
            a('s_add_u32 s80, s80, 2048')
            a('s_add_u32 s81, s81, 2048')
            self.z_out(((0, 80), (5, 81)), 96)

    def conv(self):
        a, o = self.a, self.opt
        a('s_mul_i32 s72, s%d, %d' % (CG, KVREG))
        a('s_lshl_b32 s73, s78, 10')
        a('s_add_u32 s72, s72, s73')
        a('s_add_u32 s80, s72, %d' % KVX)
        a('s_add_u32 s81, s80, 10240')
        a('s_add_u32 s82, s80, 20480')
        a('s_mov_b64 s[70:71], -1')
        a('s_mov_b64 s[76:77], -1')
        a('s_cmp_eq_u32 s78, 1')
        a('s_cselect_b32 s74, 0xffffff, 0')
        a('s_mov_b32 s75, 0')
        a('s_cmp_eq_u32 s78, 0')
        a('s_cselect_b64 s[74:75], -1, s[74:75]')
        a('s_mov_b64 s[66:67], s[74:75]')
        a('v_mov_b32 v47, v167')
        a('v_cmp_eq_u32 s[64:65], 2, v%d' % vKI)

        def kvloads():
            l = a.label('no3')
            a('s_mov_b64 exec, s[70:71]')
            a('buffer_load_dwordx4 v[32:35], v%d, %s, s80 offen sc1' % (vL16, srd(sWS)))
            a('s_mov_b64 exec, s[76:77]')
            a('buffer_load_dwordx4 v[36:39], v%d, %s, s81 offen sc1' % (vL16, srd(sWS)))
            a('s_and_b64 exec, s[66:67], s[66:67]')
            a('s_cbranch_scc0 %s' % l)
            a('buffer_load_dwordx4 v[44:47], v%d, %s, s82 offen sc1' % (vL16, srd(sWS)))
            a('%s:' % l)
            a('s_mov_b64 exec, -1')
        if o['pace'] == 6:
            a('s_barrier')
            kvloads()
        self.kprep(0)
        if o['pace'] != 2:
            self.kprep(1)
        if o['rap']:
            self.row_addresses()
        if o['pace'] == 3:
            a('s_waitcnt vmcnt(0)')
        self.hstamp(13)
        a('s_waitcnt lgkmcnt(0)')
        a('s_barrier')
        self.stamp(2)
        if o['pace'] != 6 and not o['apre']:
            kvloads()
        if o['pace'] == 2:
            self.kprep(1)
            a('s_waitcnt lgkmcnt(0)')
            a('s_barrier')
        a('s_cmp_ge_u32 s%d, 4' % WV)
        a('s_cbranch_scc1 L_noA')
        self.mfma_preload()
        a('L_noA:')
        if o['apre']:
            a('s_waitcnt lgkmcnt(0)')
            a('s_barrier')
            kvloads()
        if o['tA']:
            a('v_mov_b32 v30, %d' % ZCNT)
            a('v_mov_b32 v31, 1')
            a('v_add_u32 v41, 1920, v%d' % vKVL)
            a('v_add_u32 v42, 3840, v%d' % vKVL)
        l, d = self.spin_head('kv')
        a('s_waitcnt vmcnt(0)')
        a('v_cmp_ne_u32 s[70:71], v167, v35')
        a('v_cmp_ne_u32 s[76:77], v167, v39')
        a('v_cmp_ne_u32 s[66:67], v167, v47')
        a('s_or_b64 vcc, s[70:71], s[76:77]')
        a('s_or_b64 vcc, vcc, s[66:67]')
        a('s_cbranch_scc0 %s' % d)
        kvloads()
        a('s_add_u32 s79, s79, 1')
        a('s_cmp_gt_u32 s79, %d' % SPIN)
        a('s_cbranch_scc0 %s' % l)
        a('s_waitcnt vmcnt(0)')
        a('%s:' % d)
        if self.diag is True:
            a('s_mul_i32 s79, s79, 100')
            a('s_add_u32 s98, s84, s79')
        self.stamp(4)

        def zoff():
            a('s_and_b32 s75, s%d, 3' % WV)
            a('s_mul_i32 s72, s%d, %d' % (CG, KVREG))
            a('s_lshl_b32 s73, s75, 11')
            a('s_add_u32 s72, s72, s73')
            a('s_add_u32 s80, s72, %d' % KVX)
            a('s_add_u32 s81, s80, 8192')
        if o['tA']:
            for r, va in ((32, 42), (36, 41), (44, vKVL)):
                if r == 44:
                    a('s_and_b64 exec, s[74:75], s[74:75]')
                    a('s_cbranch_scc0 L_now3')
                a('ds_write2_b32 v%d, v%d, v%d offset0:0 offset1:1' % (va, r, r + 1))
                a('ds_write_b32 v%d, v%d offset:8' % (va, r + 2))
            a('L_now3:')
            a('s_mov_b64 exec, -1')
            zoff()
        else:
            for r, off in ((32, 3840), (36, 1920)):
                for k in range(3):
                    a('ds_write_b32 v%d, v%d offset:%d' % (vKVL, r + k, off + 4 * k))
            a('s_and_b64 exec, s[74:75], s[74:75]')
            a('s_cbranch_scc0 L_now3')
            for k in range(3):
                a('ds_write_b32 v%d, v%d offset:%d' % (vKVL, 44 + k, 4 * k))
            a('s_mov_b64 exec, -1')
            self.wm_prefetch(0)
            a('L_now3:')
            a('s_mov_b64 exec, -1')
            zoff()
            a('v_mov_b32 v30, %d' % ZCNT)
            a('v_mov_b32 v31, 1')
        a('s_cmp_ge_u32 s%d, 4' % WV)
        a('s_waitcnt lgkmcnt(0)')
        a('s_barrier')
        if self.diag or self.amp:
            self.stamp(5)
            a('s_cmp_ge_u32 s%d, 4' % WV)
        a('s_cbranch_scc1 L_helper')
        if o['prio']:
            a('s_setprio 3')
        self.mfma_body()
        a('s_mov_b64 exec, 1')
        a('ds_add_rtn_u32 v60, v30, v31')
        self.lds_wait('zs', 0, 3, 4)
        self.stamp(7)
        self.z_out(((10, 81),) if o['early'] else ((0, 80), (10, 81)))
        if o['prio']:
            a('s_setprio 0')
        a('L_zjoin:')
        a('s_cmp_ge_u32 s2, %d' % N_ROW)
        a('s_cbranch_scc1 L_end')
        if not o['rap']:
            self.row_addresses()
        a('L_zjoin2:')
        if o['rap']:
            a('v_mov_b32 v158, 0x4083126f')
        a('s_mul_i32 s72, s%d, %d' % (WV, 16 * KVREG))
        a('s_lshl_b32 s73, s%d, 7' % RW)
        a('s_add_u32 s72, s72, s73')
        a('s_add_u32 s81, s72, %d' % KVX)
        a('s_add_u32 s80, s81, %d' % KVREG)
        a('s_mul_i32 s73, s%d, 20480' % RW)
        self.stamp(3)
        if o['early'] and o['skipack']:
            a('s_cmp_lt_u32 s%d, 64' % RW)
            a('s_cbranch_scc1 L_noack')
        a('s_waitcnt vmcnt(0)')
        a('L_noack:')
        a('s_waitcnt lgkmcnt(0)')
        a('s_barrier')

    def helper(self):
        a = self.a
        o = self.opt
        a('L_helper:')
        a('s_cmp_lg_u32 s%d, 4' % WV)
        a('s_cbranch_scc1 L_hq')
        self.go_flag()
        a('L_hq:')
        if o['tA']:
            a('s_cmp_ge_u32 s%d, 6' % WV)
            a('s_cbranch_scc1 L_hq1')
            self.wm_prefetch(-2)
        a('L_hq1:')
        if o['wrearly']:
            a('v_subrev_u32 v40, 320, v0')
            a('v_lshlrev_b32 v41, 2, v40')
            a('buffer_load_dword v76, v41, %s, 0 offen' % srd(sWR))
        a('v_lshlrev_b32 v48, 4, v%d' % C16)
        self.mad(49, R4, 1280, 48)
        a('v_mov_b32 v50, %s' % OOB)
        a('s_cmp_lt_u32 s2, %d' % N_ROW)
        a('s_cselect_b64 vcc, -1, 0')
        a('s_sub_u32 s74, s%d, 6' % WV)
        a('s_cselect_b64 vcc, 0, vcc')
        a('s_and_b32 s74, s74, 3')
        a('s_lshl2_add_u32 s72, s%d, s74' % RW)
        a('s_mul_i32 s72, s72, 5120')
        a('s_cbranch_vccz L_hq2')
        for i in range(5):
            a('buffer_load_dwordx4 %s, v49, %s, s72 offen offset:%d' % (vr(120 + 4 * i, 4), srd(sQ), 256 * i))
        if o['ord'] >= 6:
            a('s_branch L_hmod')
        elif o['ord'] >= 4:
            a('s_cmp_lt_u32 s%d, 8' % WV)
            a('s_cbranch_scc1 L_hmod')
            if o['gu2']:
                self.gu2_prefetch()
            else:
                self.gu_prefetch()
                a('s_add_u32 s72, s72, %d' % (16 * 3456))
                a('buffer_load_dword v163, v41, %s, s72 offen' % srd(sWG))
            a('s_branch L_hmod')
        elif o['ord']:
            self.gu_prefetch()
            a('s_branch L_hmod')
        else:
            a('s_cmp_ge_u32 s%d, 8' % WV)
            a('s_cbranch_scc1 L_hmod')
            if o['gupf'] == 5:
                self.gu_prefetch()
            a('s_branch L_hq3')
        a('L_hq2:')
        if o['ord']:
            a('s_cmp_lt_u32 s2, %d' % N_ROW)
            a('s_cbranch_scc1 L_hrow')
        a('s_cmp_ge_u32 s%d, 8' % WV)
        a('s_cbranch_scc1 %s' % ('L_hpf' if o['gupf'] == 7 else 'L_end'))
        if o['ord'] >= 6:
            a('s_mov_b64 exec, 1')
            a('ds_read_b32 v60, v30 offset:16')
            self.lds_wait('gp0', 16, 4, 4)
        if o['gupf'] == 5:
            self.gu_prefetch()
        a('L_hq3:')
        self.hstamp(9)
        if o['gupf'] == 1:
            self.gu_prefetch()
        if o['gupf'] == 2:
            a('s_cmp_ge_u32 s%d, 6' % WV)
            a('s_cbranch_scc1 L_nogu')
            self.gu_prefetch()
            a('s_add_u32 s72, s72, %d' % (16 * 3456))
            a('buffer_load_dword v163, v41, %s, s72 offen' % srd(sWG))
            a('L_nogu:')
        a('s_cmp_lt_u32 s2, %d' % N_ROW)
        a('s_cbranch_scc1 L_hrow')
        if o['gupf'] in (3, 4):
            self.gu_prefetch()
        if o['gupf'] == 6:
            self.gu_prefetch(shift=10)
        if o['gupf'] == 7:
            a('L_hpf:')
            self.mm_gu_prefetch()
        elif o['dnpf']:
            self.dn_prefetch(75)
        if o['early']:
            if o['ze'] != 2:
                a('s_cmp_ge_u32 s%d, 6' % WV)
                a('s_cbranch_scc1 L_end')
            self.z_early('ze0')
        a('s_branch L_end')
        a('L_hrow:')
        a('s_cmp_lg_u32 s%d, 4' % WV)
        a('s_cbranch_scc1 L_hmod')
        self.slot(72, RW, 4, 2048, 73)
        a('s_add_u32 s72, s72, %d' % H2G)
        a('s_add_u32 s73, s72, 8192')
        for sr in (72, 73):
            a('buffer_store_dwordx4 v[44:47], v%d, %s, s%d offen sc1' % (vL16, srd(sWS), sr))
            a('buffer_store_dword v44, v%d, %s, s%d offen offset:1024 sc1' % (vL4, srd(sWS), sr))
        if o['tB']:
            a('s_mul_i32 s72, s%d, 2560' % RW)
            a('s_add_u32 s72, s72, %d' % BASEG)
            for off in (0, 1024, 1536):
                a('buffer_store_dwordx4 v[44:47], v%d, %s, s72 offen offset:%d sc1' % (vL16, srd(sWS), off))
        if o['hoist'] and not o['rap']:
            self.row_addresses()
        a('s_and_b32 s72, s2, 7')
        a('s_mul_i32 s72, s72, 20480')
        a('s_add_u32 s72, s72, %d' % F2)
        a('s_add_u32 s73, s72, 8192')
        a('s_add_u32 s74, s72, 12288')
        a('v_lshlrev_b32 v40, 7, v%d' % LANE)
        if o['early'] and o['ze'] == 0:
            a('s_mov_b32 s78, s72')
            self.z_early('ze1')
            a('s_mov_b32 s72, s78')
        if o['f2wait']:
            a('s_waitcnt vmcnt(0)')
        l, d = self.spin_head('clr')
        a('s_sleep %d' % o['fsleep'])
        for k in range(3):
            a('buffer_load_dword v%d, v40, %s, s%d offen sc1' % (41 + k, srd(sWS), 72 + k))
        self.spin_bound(d)
        a('s_waitcnt vmcnt(0)')
        a('v_cmp_ne_u32 vcc, s%d, v41' % TAG)
        a('v_cmp_ne_u32 s[70:71], s%d, v42' % TAG)
        a('s_or_b64 s[70:71], s[70:71], vcc')
        a('v_cmp_ne_u32 vcc, s%d, v43' % TAG)
        a('s_or_b64 exec, s[70:71], vcc')
        a('s_cbranch_scc1 %s' % l)
        a('%s:' % d)
        a('s_mov_b64 exec, -1')
        if o['early'] and o['ze'] >= 1:
            self.z_early('ze1', True)
        self.stamp(7)
        a('s_branch %s' % ('L_zjoin2' if o['hoist'] else 'L_zjoin'))
        a('L_hmod:')
        self.hstamp(11)
        a('s_mov_b32 s69, s74')
        if o['hoist'] and not o['rap']:
            self.row_addresses()
        if o['early'] and o['ze'] == 0:
            a('s_cmp_lg_u32 s%d, 5' % WV)
            a('s_cbranch_scc1 L_noze')
            self.z_early('ze2')
            a('L_noze:')
        a('v_subrev_u32 v40, 320, v0')
        a('v_lshlrev_b32 v41, 2, v40')
        if not o['wrearly']:
            a('buffer_load_dword v76, v41, %s, 0 offen' % srd(sWR))
        a('v_lshlrev_b32 v41, 3, v40')
        a('v_add_u32 v42, %d, v41' % PAR)
        if o['mrep']:
            a('s_and_b32 s72, s2, 7')
            a('s_mul_i32 s72, s72, %d' % o['mrep'])
            a('v_add_u32 v41, s72, v41')
        a('s_mov_b32 s72, %d' % MODG)
        a('s_mov_b32 s73, %d' % (MODG + 5120))
        a('s_mov_b32 s74, %d' % (MODG + 10240))

        def modloads():
            for v in range(6):
                a('buffer_load_dwordx2 %s, v41, %s, s%d offen offset:%d sc1' % (vr(64 + 2 * v, 2), srd(sWS), 72 + v // 2, 2560 * (v % 2)))
        if o['ord']:
            a('s_cmp_eq_u32 s%d, 5' % WV)
            a('s_cbranch_scc1 %s' % ('L_gu5' if o['ord'] >= 6 else 'L_noqs'))
            if o['ord'] >= 6:
                a('s_waitcnt vmcnt(0)')
            elif o['ord'] >= 4:
                a('s_cmp_ge_u32 s%d, 8' % WV)
                a('s_waitcnt vmcnt(%d)' % (1 if o['gu2'] else 2))
                a('s_cbranch_scc1 L_qgo')
                a('s_waitcnt vmcnt(0)')
                a('L_qgo:')
            else:
                a('s_waitcnt vmcnt(1)')
        else:
            if o['early'] and o['ze'] == 0:
                a('s_cmp_eq_u32 s%d, 5' % WV)
                a('s_cbranch_scc1 L_qhere')
            a('s_waitcnt vmcnt(0)')
            a('L_qhere:')
            modloads()
            a('s_cmp_eq_u32 s%d, 5' % WV)
            a('s_cbranch_scc1 L_noqs')
        if o['gupf'] == 3:
            a('s_mov_b32 s75, s69')
            self.gu_prefetch(54, 82)
        a('s_mul_i32 s70, s69, %d' % (4 * QPITCH))
        a('s_add_u32 s70, s70, %d' % QS)
        self.mad(52, R4, QPITCH, 48)
        a('v_add_u32 v52, s70, v52')
        a('s_lshl_b32 s70, s69, 5')
        a('s_add_u32 s70, s70, %d' % ST1)
        a('v_bfe_u32 v43, v0, 5, 1')
        a('v_lshl_add_u32 v43, v43, 4, s70')
        a('v_bfe_u32 v44, v0, 4, 1')
        a('v_lshl_add_u32 v43, v44, 2, v43')
        for i in range(5):
            a('ds_write_b128 v52, %s offset:%d' % (vr(120 + 4 * i, 4), 256 * i))
        for i in range(20):
            self.unpack(50, 51, 120 + i)
            if i == 0:
                a('v_add_f32 v44, v50, v51')
                a('v_mul_f32 v46, v50, v50')
            else:
                a('v_add_f32 v44, v44, v50')
                a('v_fmac_f32 v46, v50, v50')
                a('v_add_f32 v44, v44, v51')
            a('v_fmac_f32 v46, v51, v51')
        self.row_allreduce16([44, 46])
        a('v_mul_f32 v44, 0xbacccccd, v44')
        a('v_mul_f32 v46, 0x3acccccd, v46')
        a('v_fma_f32 v46, -v44, v44, v46')
        a('v_max_f32 v46, 0, v46')
        a('v_add_f32 v46, 0x3727c5ac, v46')
        a('v_rsq_f32 v46, v46')
        a('v_mul_f32 v44, v44, v46')
        a('ds_write2_b32 v43, v46, v44 offset0:0 offset1:2')
        self.stamp(7)
        if o['ord'] >= 6:
            a('s_branch L_noqs')
            a('L_gu5:')
            a('s_mov_b64 exec, 1')
            a('ds_read_b32 v60, v30 offset:16')
            self.lds_wait('gp1', 16, 4, 4)
            a('s_mov_b32 s75, 0')
            self.gu_prefetch(54, 82)
            a('buffer_load_dword v163, v54, %s, s82 offen' % srd(sWU))
            a('s_add_u32 s82, s82, %d' % (16 * 3456))
            a('buffer_load_dword v163, v54, %s, s82 offen' % srd(sWG))
            a('buffer_load_dword v163, v54, %s, s82 offen' % srd(sWU))
        a('L_noqs:')
        if o['ord']:
            if o['ord'] == 1:
                a('s_cmp_lg_u32 s%d, 5' % WV)
                a('s_cbranch_scc1 L_nopace')
            if o['ord'] == 4:
                a('s_cmp_ge_u32 s%d, 8' % WV)
                a('s_cbranch_scc1 L_nopace')
            if o['ord'] != 3:
                a('s_mov_b64 exec, 1')
                off = 12 if o['ord'] >= 6 else 4
                a('ds_read_b32 v60, v30 offset:%d' % off)
                self.lds_wait('mp', off, 4, 4)
                a('s_mov_b32 s72, %d' % MODG)
                if o['ze'] == 2:
                    assert o['ord'] == 4
                    if o['mfirst']:
                        modloads()
                        self.z_out(((0, 80),), 96)
                        a('s_mov_b32 s79, 0')
                        a('s_waitcnt vmcnt(2)')
                        a('s_branch L_modchk')
                    else:
                        self.z_out(((0, 80),))
                        a('s_branch L_modld')
            a('L_nopace:')
            if o['gu2'] == 2:
                a('s_mov_b64 exec, 1')
                a('ds_read_b32 v60, v30 offset:4')
                self.lds_wait('mp2', 4, 4, 4)
                a('s_mov_b32 s72, %d' % MODG)
            elif o['ord'] in (1, 4):
                a('s_waitcnt vmcnt(0)')
            a('L_modld:')
            modloads()
        l, d = self.spin_head('mod')
        a('s_waitcnt vmcnt(0)')
        a('L_modchk:')
        for v in range(6):
            a('v_xor_b32 v%d, s%d, v%d' % (65 + 2 * v, TAG, 65 + 2 * v))
        a('v_or3_b32 v65, v65, v67, v69')
        a('v_or3_b32 v71, v71, v73, v75')
        a('v_or_b32 v65, v65, v71')
        a('v_cmp_ne_u32 vcc, 0, v65')
        a('s_cbranch_vccz %s' % d)
        modloads()
        a('s_add_u32 s79, s79, 1')
        a('s_cmp_gt_u32 s79, %d' % SPIN)
        a('s_cbranch_scc0 %s' % l)
        a('s_waitcnt vmcnt(0)')
        a('%s:' % d)
        self.hstamp(12)
        if o['gupf'] == 4:
            a('s_cmp_eq_u32 s%d, 5' % WV)
            a('s_cbranch_scc1 L_nogu4')
            a('s_mov_b32 s75, s69')
            self.gu_prefetch(54, 82)
            a('L_nogu4:')
        if o['hdiag']:
            a('s_mul_i32 s79, s79, 100')
            a('s_add_u32 s94, s84, s79')
        for v in range(7):
            self.unpack(80 + 2 * v, 81 + 2 * v, 64 + 2 * v)
        for r in (82, 83, 88, 89):
            a('v_add_f32 v%d, 1.0, v%d' % (r, r))
            a('v_cvt_pk_bf16_f32 v%d, 0, v%d' % (r, r))
        for k in range(2):
            a('v_mul_f32 v%d, v%d, v%d' % (82 + k, 82 + k, 84 + k))
            a('v_mul_f32 v%d, v%d, v%d' % (80 + k, 80 + k, 84 + k))
            a('v_mul_f32 v%d, v%d, v%d' % (94 + k, 86 + k, 92 + k))
            a('v_mul_f32 v%d, v%d, v%d' % (92 + k, 88 + k, 92 + k))
        a('v_add_f32 v44, v92, v93')
        if o['tC']:
            a('v_mul_f32 v92, 0x44200000, v92')
            a('v_mul_f32 v93, 0x44200000, v93')
        for v, r in enumerate((82, 80, 88, 86, 90, 92)):
            a('ds_write_b64 v42, %s offset:%d' % (vr(r, 2), 2560 * v))
        a('v_add_f32 v46, v94, v95')
        self.row_allreduce16([44, 46])
        a('v_cvt_f64_f32 v[44:45], v44')
        a('v_cvt_f64_f32 v[46:47], v46')
        a('v_mov_b32 v42, %d' % CS)
        a('s_mov_b32 exec_lo, 0x00010001')
        a('s_mov_b32 exec_hi, 0x00010001')
        a('ds_add_f64 v42, v[44:45]')
        a('ds_add_f64 v42, v[46:47] offset:8')
        a('s_mov_b64 exec, -1')
        self.stamp(6)
        a('s_branch %s' % ('L_zjoin2' if o['hoist'] else 'L_zjoin'))

    def row_consts(self):
        a, o = self.a, self.opt
        a('s_lshl_b32 s72, s%d, 7' % WV)
        a('s_add_u32 s76, s72, s73')
        a('s_add_u32 s77, s76, 10240')
        a('s_mul_i32 s73, s%d, 1280' % RW)
        a('s_add_u32 s73, s73, s72')
        self.slot(74, RW, 4, 2048, 75)
        a('s_add_u32 s74, s74, s72')
        a('s_add_u32 s74, s74, %d' % H2G)
        a('s_lshl_b32 s73, s73, %d' % (1 if o['tB'] else 2))
        a('s_add_u32 s75, s73, %d' % BASEG)
        self.slot(73, RW, 32, 256, 78)
        a('s_add_u32 s78, s73, %d' % (KEYR if o['krep'] else KEYS))
        a('s_mov_b32 s82, s%d' % TAG)
        a('s_mov_b32 s64, %s' % ('0x44200000' if o['tC'] else '0x3acccccd'))
        a('s_mov_b32 s65, s64')
        a('s_mov_b32 s68, 0xfffff800')
        a('s_mov_b32 s69, %s' % ('0x80000000' if o['tC'] else '0x3727c5ac'))

    def row_vconsts(self):
        a = self.a
        a('v_bfe_u32 v43, v0, 3, 1')
        a('v_lshlrev_b32 v43, 13, v43')
        a('v_lshl_add_u32 v%d, v%d, 16, v43' % (vKEY, P8))
        a('v_add_u32 v%d, v%d, v43' % (vHS, P16))
        a('v_add_u32 v%d, 1, v%d' % (vIDX1, vIDX))
        a('v_mov_b32 v158, 0x4083126f')
        a('v_lshlrev_b32 v%d, 4, v%d' % (vHW, L8))
        a('v_sub_u32 v%d, v%d, v%d' % (vHW, vH2, vHW))
        if self.opt['h2x4']:
            a('s_lshl_b32 s72, s%d, 8' % WV)
            a('s_add_u32 s72, s72, %d' % PS)
            a('v_add_u32 v%d, s72, v%d' % (vHR, P16))
        else:
            a('v_sub_u32 v%d, v%d, v%d' % (vHR, vBASE, vL4))
        a('v_mov_b32 v%d, %d' % (vCS, CS))

    def rows(self):
        a, o = self.a, self.opt
        Q, P, Z = 96, 112, 136
        sel = lambda s: 'op_sel:[0,%d,%d] op_sel_hi:[1,%d,%d]' % (s, s, s, s)

        def zloads():
            a('buffer_load_dwordx4 v[128:131], v%d, %s, s81 offen sc1' % (vZLD, srd(sWS)))
            a('buffer_load_dwordx4 v[132:135], v%d, %s, s80 offen sc1' % (vZLD, srd(sWS)))
        if not o['twob']:
            self.stamp(8)
            zloads()
        a('ds_read_b128 v[32:35], v%d' % vQS)
        a('ds_read_b128 v[36:39], v%d offset:%d' % (vQS, QPITCH))
        a('ds_read_b128 v[40:43], v%d' % vST1)
        par = (136, 144, 44, 52, 60, 68)

        def parload(v):
            a('ds_read_b128 %s, v%d offset:%d' % (vr(par[v], 4), vPAR, 2560 * v))
            a('ds_read_b128 %s, v%d offset:%d' % (vr(par[v] + 4, 4), vPAR, 2560 * v + 16))
        for v in (0, 1):
            parload(v)
        A1, A2, B1, B2, G, W = par
        if not o['t8']:
            self.row_vconsts()
        a('ds_read_b128 v[76:79], v%d' % vCS)
        self.row_consts()
        a('s_waitcnt lgkmcnt(5)')
        for c in range(8):
            for rho in range(2):
                src = 32 + 4 * rho + c // 2
                if c % 2 == 0:
                    a('v_lshlrev_b32 v%d, 16, v%d' % (Q + 2 * c + rho, src))
                else:
                    a('v_and_b32 v%d, v%d, v%d' % (Q + 2 * c + rho, vHI, src))
        for c in range(8):
            a('v_pk_fma_f32 %s, %s, v[40:41], v[42:43]' % (vr(P + 2 * c, 2), vr(Q + 2 * c, 2)))
        a('s_waitcnt lgkmcnt(0)')
        for c in range(8):
            e = c & ~1
            a('v_pk_fma_f32 %s, %s, %s, %s %s' % (vr(P + 2 * c, 2), vr(P + 2 * c, 2), vr(A1 + e, 2), vr(A2 + e, 2), sel(c & 1)))
        a('v_cvt_f32_f64 v76, v[76:77]')
        a('v_cvt_f32_f64 v77, v[78:79]')
        if o['twob']:
            if o['twob'] == 1:
                a('s_waitcnt vmcnt(0)')
                a('s_barrier')
            self.stamp(8)
            zloads()
        for v in (5, 2, 3, 4):
            parload(v)
        if o['t9']:
            l, d = self.spin_head('z')
            a('s_waitcnt vmcnt(0)')
            a('v_cmp_eq_u32 vcc, s82, v131')
            a('v_cmp_eq_u32 s[70:71], s82, v135')
            for c in range(4):
                self.unpack(Z + 2 * c, Z + 2 * c + 1, 128 + c)
            a('s_or_b64 vcc, vcc, s[70:71]')
            a('s_cbranch_scc0 %s' % d)
            a('s_mov_b64 exec, vcc')
            zloads()
            a('s_mov_b64 exec, -1')
            a('s_add_u32 s79, s79, 1')
            a('s_cmp_gt_u32 s79, %d' % SPIN)
            a('s_cbranch_scc0 %s' % l)
            a('s_waitcnt vmcnt(0)')
            a('%s:' % d)
        else:
            self.data_confirm('z', zloads, 131, 135, 10)
        self.stamp(9)
        a('s_waitcnt lgkmcnt(0)')
        S1, S2, S3 = 152, 154, 156
        for h in range(2):
            for c in range(4 * h, 4 * h + 4):
                if h or not o['t9']:
                    self.unpack(Z + 2 * c, Z + 2 * c + 1, 128 + c)
            for c in range(4 * h, 4 * h + 4):
                a('v_pk_fma_f32 %s, %s, %s, %s' % (vr(Q + 2 * c, 2), vr(P + 2 * c, 2), vr(Z + 2 * c, 2), vr(Q + 2 * c, 2)))
            for c in range(4 * h, 4 * h + 4):
                x = vr(Q + 2 * c, 2)
                s, e = c & 1, c & ~1
                if c == 0:
                    a('v_pk_mul_f32 %s, %s, %s' % (vr(S2, 2), x, x))
                    a('v_pk_mul_f32 %s, %s, %s op_sel:[0,0] op_sel_hi:[1,0]' % (vr(S3, 2), x, vr(W, 2)))
                else:
                    a('v_pk_add_f32 %s, %s, %s' % (vr(S1, 2), vr(Q, 2) if c == 1 else vr(S1, 2), x))
                    a('v_pk_fma_f32 %s, %s, %s, %s' % (vr(S2, 2), x, x, vr(S2, 2)))
                    a('v_pk_fma_f32 %s, %s, %s, %s op_sel:[0,%d,0] op_sel_hi:[1,%d,1]' % (vr(S3, 2), x, vr(W + e, 2), vr(S3, 2), s, s))
        for s in (S1, S2, S3):
            a('v_permlane32_swap_b32 v%d, v%d' % (s, s + 1))
        for s in (S1, S2, S3):
            a('v_add_f32 v%d, v%d, v%d' % (s, s, s + 1))
        a('v_permlane16_swap_b32 v%d, v%d' % (S1, S2))
        a('v_add_f32_dpp v%d, v%d, v%d row_ror:8 row_mask:0xf bank_mask:0xc' % (S3, S3, S3))
        a('v_add_f32 v%d, v%d, v%d' % (S1, S1, S2))
        a('v_add_f32_dpp v%d, v%d, v%d row_ror:8 row_mask:0xf bank_mask:0x3' % (S3, S1, S1))
        a('v_cvt_f64_f32 %s, v%d' % (vr(S1, 2), S3))
        a('ds_add_f64 v%d, %s' % (vSADD, vr(S1, 2)))
        if o['keyprio']:
            a('s_cmp_lg_u32 s%d, 2' % WV)
            a('s_cbranch_scc1 L_noprio')
            a('s_setprio 3')
            a('L_noprio:')
        a('s_waitcnt lgkmcnt(0)')
        a('s_barrier')
        a('ds_read_b128 v[128:131], v%d' % vSRD)
        a('ds_read_b128 v[132:135], v%d offset:16' % vSRD)
        a('ds_read_b128 v[152:155], v%d offset:32' % vSRD)
        a('s_waitcnt lgkmcnt(1)')
        for i in range(4):
            a('v_cvt_f32_f64 v%d, %s' % (32 + i, vr(128 + 2 * i, 2)))
        if o['tC']:
            a('v_pk_fma_f32 v[34:35], v[34:35], s[64:65], v[158:159] op_sel_hi:[1,1,0]')
            a('v_pk_fma_f32 v[34:35], v[32:33], v[32:33], v[34:35] neg_lo:[1,0,0] neg_hi:[1,0,0]')
            a('v_max_f32 v34, v158, v34')
            a('v_max_f32 v35, v158, v35')
            a('v_rsq_f32 v34, v34')
            a('v_rsq_f32 v35, v35')
            a('s_waitcnt lgkmcnt(0)')
            a('v_cvt_f32_f64 v36, v[152:153]')
            a('v_cvt_f32_f64 v37, v[154:155]')
            a('v_pk_fma_f32 v[36:37], v[32:33], v[76:77], v[36:37] op_sel_hi:[1,0,1] neg_lo:[1,0,0] neg_hi:[1,0,0]')
            a('v_pk_fma_f32 v[36:37], v[36:37], v[34:35], v[76:77] op_sel:[0,0,1] op_sel_hi:[1,1,1]')
            for r, ix in ((36, vIDX), (37, vIDX1)):
                a('v_and_or_b32 v%d, v%d, s68, v%d' % (r, r, ix))
            a('v_max_f32 v36, v36, v37')
            a('s_cmp_lg_u32 s%d, 2' % WV)
            a('v_max_f32_dpp v36, v36, v36 quad_perm:[1,0,3,2] %s' % DPP)
            a('v_pk_mul_f32 v[32:33], v[32:33], v[34:35] neg_lo:[1,0] neg_hi:[1,0]')
            a('v_max_f32_dpp v36, v36, v36 quad_perm:[2,3,0,1] %s' % DPP)
            a('v_pk_mul_f32 v[34:35], v[34:35], s[64:65]')
            a('v_max_f32_dpp v36, v36, v36 row_half_mirror %s' % DPP)
            a('s_cbranch_scc1 L_nokey')
            a('v_ashrrev_i32 v38, 31, v36')
            a('v_bitop3_b32 v166, v36, v38, s69 bitop3:0x1e')
            a('s_mov_b64 exec, 0xffff')
            a('buffer_store_dwordx2 v[166:167], v%d, %s, s78 offen sc1' % (vKEY, srd(sWS)))
            a('s_mov_b64 exec, -1')
            a('L_nokey:')
            self.stamp(11)
            a('v_readfirstlane_b32 s72, v36')
        else:
            a('v_pk_mul_f32 v[32:33], v[32:33], s[64:65]')
            a('v_pk_mul_f32 v[34:35], v[34:35], s[64:65]')
            a('v_pk_fma_f32 v[34:35], v[32:33], v[32:33], v[34:35] neg_lo:[1,0,0] neg_hi:[1,0,0]')
            a('v_max_f32 v34, 0, v34')
            a('v_max_f32 v35, 0, v35')
            a('v_add_f32 v34, s69, v34')
            a('v_add_f32 v35, s69, v35')
            a('v_rsq_f32 v34, v34')
            a('v_rsq_f32 v35, v35')
            a('s_waitcnt lgkmcnt(0)')
            a('v_cvt_f32_f64 v36, v[152:153]')
            a('v_cvt_f32_f64 v37, v[154:155]')
            a('v_pk_fma_f32 v[36:37], v[32:33], v[76:77], v[36:37] op_sel_hi:[1,0,1] neg_lo:[1,0,0] neg_hi:[1,0,0]')
            a('v_pk_fma_f32 v[36:37], v[36:37], v[34:35], v[76:77] op_sel:[0,0,1] op_sel_hi:[1,1,1]')
            for r, t in ((36, 38), (37, 39)):
                a('v_ashrrev_i32 v%d, 31, v%d' % (t, r))
            for r, t in ((36, 38), (37, 39)):
                a('v_or_b32 v%d, 0x80000000, v%d' % (t, t))
            for r, t in ((36, 38), (37, 39)):
                a('v_xor_b32 v%d, v%d, v%d' % (r, r, t))
            for r, ix in ((36, vIDX), (37, 31)):
                a('v_and_or_b32 v%d, v%d, s68, v%d' % (r, r, ix))
            a('v_max_u32 v166, v36, v37')
            a('v_max_u32_dpp v166, v166, v166 quad_perm:[1,0,3,2] %s' % DPP)
            a('v_max_u32_dpp v166, v166, v166 quad_perm:[2,3,0,1] %s' % DPP)
            a('v_max_u32_dpp v166, v166, v166 row_half_mirror %s' % DPP)
            a('s_cmp_lg_u32 s%d, 2' % WV)
            a('s_cbranch_scc1 L_nokey')
            a('s_mov_b64 exec, %d' % (0xff if o['krep'] else 1))
            a('buffer_store_dwordx2 v[166:167], v85, %s, s78 offen sc1' % srd(sWS))
            a('s_mov_b64 exec, -1')
            a('L_nokey:')
            self.stamp(11)
            a('v_readfirstlane_b32 s72, v166')
            a('v_pk_mul_f32 v[32:33], v[32:33], v[34:35] neg_lo:[1,0] neg_hi:[1,0]')
        for c in range(8):
            a('v_pk_fma_f32 %s, %s, v[34:35], v[32:33]' % (vr(Z + 2 * c, 2), vr(Q + 2 * c, 2)))
        for c in range(8):
            e = c & ~1
            a('v_pk_fma_f32 %s, %s, %s, %s %s' % (vr(Z + 2 * c, 2), vr(Z + 2 * c, 2), vr(B1 + e, 2), vr(B2 + e, 2), sel(c & 1)))
        if not o['tC']:
            a('s_not_b32 s72, s72')
        a('s_bfe_u32 s73, s72, 0x30001')
        a('s_mov_b32 s70, 0x01010101')
        a('s_mov_b32 s71, 0x01010101')
        a('s_lshl_b64 s[70:71], s[70:71], s73')
        a('s_bitcmp1_b32 s72, 0')
        a('s_cbranch_scc1 L_h2odd')
        for k in range(4):
            a('v_cvt_pk_bf16_f32 v%d, v%d, v%d' % (80 + k, Z + 4 * k, Z + 4 * k + 2))
        a('s_branch L_h2st')
        a('L_h2odd:')
        for k in range(4):
            a('v_cvt_pk_bf16_f32 v%d, v%d, v%d' % (80 + k, Z + 4 * k + 1, Z + 4 * k + 3))
        a('L_h2st:')
        a('s_mov_b64 exec, s[70:71]')
        a('ds_write_b128 v%d, v[80:83]' % vHW)
        if o['h2x4']:
            a('s_mov_b64 exec, 0xffff')
            a('ds_read_b128 v[84:87], v%d' % vHR)
            a('s_waitcnt lgkmcnt(0)')
            a('buffer_store_dwordx4 v[84:87], v%d, %s, s74 offen sc1' % (vHS, srd(sWS)))
        else:
            a('s_mov_b32 exec_lo, -1')
            a('s_mov_b32 exec_hi, 0')
            a('ds_read_b32 v87, v%d' % vHR)
            a('s_waitcnt lgkmcnt(0)')
            a('buffer_store_dword v87, v%d, %s, s74 offen sc1' % (vL4, srd(sWS)))
        a('s_mov_b64 exec, -1')
        self.stamp(12)
        if o['h2bar']:
            a('s_barrier')
        for c in range(8):
            e, s = c & ~1, c & 1
            a('v_pk_fma_f32 %s, %s, %s, %s op_sel:[0,%d,0] op_sel_hi:[1,%d,1]' % (vr(P + 2 * c, 2), vr(Z + 2 * c, 2), vr(G + e, 2), vr(Q + 2 * c, 2), s, s))
        for rho in range(2):
            for k in range(4):
                a('v_cvt_pk_bf16_f32 v%d, v%d, v%d' % (32 + 4 * rho + k, P + 4 * k + rho, P + 4 * k + 2 + rho))
        a('ds_write_b128 v%d, v[32:35]' % vQS)
        a('ds_write_b128 v%d, v[36:39] offset:%d' % (vQS, QPITCH))
        a('ds_read_b128 v[128:131], v%d' % vORD)
        a('ds_read_b128 v[132:135], v%d offset:%d' % (vORD, 8 * QPITCH))
        if o['h2wait']:
            a('s_waitcnt vmcnt(0)')
        a('s_waitcnt lgkmcnt(1)')
        a('buffer_store_dwordx4 v[128:131], v%d, %s, s76 offen sc1' % (vOST, srd(sO)))
        a('s_waitcnt lgkmcnt(0)')
        a('buffer_store_dwordx4 v[132:135], v%d, %s, s77 offen sc1' % (vOST, srd(sO)))
        a('s_mov_b64 exec, s[70:71]')
        a('s_bitcmp1_b32 s72, 0')
        a('s_cbranch_scc1 L_bodd')
        for k in range(4):
            a('ds_write2_b32 v%d, v%d, v%d offset0:%d offset1:%d' % (vH2, P + 4 * k, P + 4 * k + 2, 2 * k, 2 * k + 1))
        a('s_branch L_bst')
        a('L_bodd:')
        for k in range(4):
            a('ds_write2_b32 v%d, v%d, v%d offset0:%d offset1:%d' % (vH2, P + 4 * k + 1, P + 4 * k + 3, 2 * k, 2 * k + 1))
        a('L_bst:')
        if o['tB']:
            a('s_mov_b64 exec, 0xffff')
            a('v_lshl_add_u32 v88, v%d, 1, v%d' % (vL4, vBASE))
            a('ds_read_b128 v[88:91], v88')
        else:
            a('s_mov_b32 exec_lo, -1')
            a('s_mov_b32 exec_hi, 0')
            a('v_mov_b32 v89, v167')
            a('v_mov_b32 v91, v167')
            a('ds_read_b32 v88, v%d' % vBASE)
            a('ds_read_b32 v90, v%d offset:4' % vBASE)
        a('s_waitcnt vmcnt(0) lgkmcnt(0)')
        a('buffer_store_dwordx4 v[88:91], v%d, %s, s75 offen sc1' % (vL16, srd(sWS)))
        a('s_mov_b64 exec, -1')
        self.stamp(13)
        a('s_branch L_end')

    def nonconv(self):
        a = self.a
        MR, MP, GR, DR, GP, DP = 96, 60, 72, 112, 32, 12
        vGUA, vGUR, vXS, vKM, vPT, vRD = 154, 155, 160, 161, 162, 153
        a('L_nonconv:')
        a('s_mov_b32 s64, 0x05040100')
        a('s_mov_b32 s65, 0x07060302')
        a('v_lshlrev_b32 v131, 3, v%d' % C16)
        a('v_lshlrev_b32 v132, 2, v%d' % C16)
        a('v_mov_b32 v157, v167')
        a('v_mov_b32 v159, v167')
        a('v_bfe_u32 v137, v0, 5, 1')
        a('v_and_b32 v130, 31, v0')
        a('v_lshlrev_b32 v130, 2, v130')
        self.mad(134, R4, 40 * 3456, 132)
        self.mad(135, 137, 16 * 1280, 130)
        a('v_lshl_add_u32 v136, v137, 6, v132')
        a('s_sub_u32 s70, s2, %d' % MOD0)
        a('s_max_u32 s68, s2, %d' % MLP0)
        a('s_sub_u32 s68, s68, %d' % MLP0)
        a('s_and_b32 s73, s68, 7')
        a('s_bfe_u32 s74, s68, 0x10003')
        a('s_lshl_b32 s73, s73, 1')
        a('s_add_u32 s73, s73, s74')
        a('s_and_b32 s74, s68, 0x30')
        a('s_add_u32 s73, s73, s74')
        a('s_cmp_lt_u32 s68, 48')
        a('s_cselect_b32 s68, s73, s68')
        a('s_sub_u32 s69, 7, s%d' % WV)
        a('s_bitcmp1_b32 s68, %d' % (0 if self.opt['rev'] else 8))
        a('s_cselect_b32 s69, s69, s%d' % WV)
        a('s_and_b32 s69, s69, 7')
        a('s_bitcmp1_b32 s69, 0')
        a('s_cselect_b64 s[%d:%d], s[%d:%d], s[%d:%d]' % (sWG, sWG + 1, sWU, sWU + 1, sWG, sWG + 1))
        a('s_lshr_b32 s71, s69, 1')
        a('s_mul_i32 s74, s71, %d' % (160 * 3456))
        a('s_lshl_b32 s73, s68, 6')
        a('s_add_u32 s74, s74, s73')
        a('s_mul_i32 s76, s68, %d' % (32 * 1280))
        a('s_lshl_b32 s73, s%d, 7' % WV)
        a('s_add_u32 s76, s76, s73')
        a('s_and_b32 s82, s69, 1')
        a('s_lshl_b32 s82, s82, 3')
        a('s_add_u32 s82, s82, %d' % GU)
        a('v_lshl_add_u32 v129, v%d, 5, s82' % C16)
        a('v_lshl_add_u32 v%d, v137, 4, v129' % vGUA)
        a('v_lshlrev_b32 v129, 2, v136')
        a('v_add_u32 v%d, %d, v129' % (vGUR, GU))
        a('s_mul_i32 s82, s71, 320')
        a('s_add_u32 s82, s82, %d' % H2G)
        if self.opt['xd']:
            a('v_add_u32 v129, s82, v132')
        else:
            a('v_min_u32 v129, 72, v131')
            a('v_add_u32 v129, s82, v129')
        self.mad(vXS, R4, 80, 129)
        a('s_mul_i32 s82, s68, %d' % PST)
        a('s_lshl_b32 s73, s%d, 9' % WV)
        a('s_add_u32 s82, s82, s73')
        a('s_add_u32 s81, s82, %d' % PART)
        self.mad(vPT, 137, 8192 - 512, vL16)
        a('s_mov_b32 s78, s%d' % TAG)
        if self.opt['wmpf']:
            a('s_cmp_lt_u32 s2, 224')
            a('s_cbranch_scc1 L_nowm')
            if self.opt['wmpf'] == 3:
                n = self.opt['wmn']
                a('s_cmp_ge_u32 s%d, %d' % (WV, n))
                a('s_cbranch_scc1 L_nowm')
                self.wm_prefetch(None, n)
            else:
                a('s_cmp_lt_u32 s%d, 8' % WV)
                a('s_cbranch_scc1 L_nowm')
                self.wm_prefetch(8)
            a('L_nowm:')
        a('s_cmp_ge_u32 s2, %d' % (MLP0 + N_MLP))
        a('s_cbranch_scc1 L_end')
        def gowait():
            a('s_cmp_lg_u32 s%d, 1' % WV)
            a('s_cbranch_scc1 L_bggo')
            a('s_and_b32 s80, s2, 7')
            a('s_mul_i32 s80, s80, %d' % (2560 + 20480))
            a('s_add_u32 s80, s80, %d' % F2)
            self.poll16('bg', 80, 148, sleep=self.opt['gsleep'])
            a('L_bggo:')
        if self.opt['bg'] == 1:
            gowait()
        if self.opt['modwait']:
            a('s_cmp_ge_u32 s2, %d' % (FREE0 + N_FREE))
            a('s_cbranch_scc1 L_mw')
            a('s_cmp_lg_u32 s%d, 0' % WV)
            a('s_cbranch_scc1 L_mw')
            a('s_mul_i32 s80, s70, %d' % (KVREG + 512))
            a('s_add_u32 s80, s80, %d' % (KVX + 12))
            self.poll16('mw', 80, 148, sleep=2, mask='1')
            a('L_mw:')
        a('s_barrier')
        a('s_cmp_ge_u32 s2, %d' % (MOD0 + N_MOD))
        a('s_cbranch_scc1 L_mlp')
        if self.opt['modearly']:
            a('s_cmp_lt_u32 s2, %d' % (FREE0 + N_FREE))
            a('s_cbranch_scc1 L_modgo')
        self.mod_loads()
        a('L_modgo:')
        a('s_waitcnt vmcnt(32)')
        self.unpack(139, 138, 138)
        self.silu(139, 140)
        self.silu(138, 141)
        a('v_cvt_pk_bf16_f32 v138, v139, v138')
        for i in range(4):
            a('v_mov_b32 v%d, 0' % (140 + i))
        a('v_lshl_add_u32 v129, v130, 2, %d' % 0)
        a('v_lshl_add_u32 v129, v137, 3, v129')
        a('v_add_u32 v129, %d, v129' % MODACC)
        for t in range(16):
            a('s_waitcnt vmcnt(%d)' % (30 - 2 * t))
            self.pair_rows(MP + 2 * t, MR + 2 * t, MR + 1 + 2 * t)
            if t % 2 == 1:
                for u in (t - 1, t):
                    for c in range(2):
                        a('v_dot2c_f32_bf16_dpp v%d, v138, v%d row_newbcast:%d %s' % (140 + 2 * (u & 1) + c, MP + 2 * u + c, u, DPP))
        a('v_pk_add_f32 v[140:141], v[140:141], v[142:143]')
        a('v_permlane32_swap_b32 v140, v141')
        a('v_add_f32 v140, v140, v141')
        a('v_cvt_f64_f32 v[140:141], v140')
        a('ds_add_f64 v129, v[140:141]')
        a('v_lshlrev_b32 v129, 5, v%d' % C16)
        a('v_add_u32 v129, %d, v129' % MODACC)
        a('s_lshl_b32 s72, s70, 8')
        a('s_add_u32 s72, s72, %d' % MODG)
        a('s_cmp_lg_u32 s%d, 0' % WV)
        a('s_waitcnt lgkmcnt(0)')
        a('s_barrier')
        a('s_cbranch_scc1 L_modpub')
        mrep = self.opt['mrep']
        if not mrep:
            a('s_mov_b64 exec, 0xffff')
        a('ds_read_b128 v[140:143], v129')
        a('ds_read_b128 v[144:147], v129 offset:16')
        if mrep:
            a('v_lshlrev_b32 v139, 4, v%d' % C16)
            self.mad(139, R4, mrep, 139)
            a('s_add_u32 s73, s72, %d' % (4 * mrep))
        a('s_waitcnt lgkmcnt(0)')
        for k in range(4):
            a('v_cvt_f32_f64 v%d, %s' % (140 + 2 * k, vr(140 + 2 * k, 2)))
        a('v_cvt_pk_bf16_f32 v156, v140, v142')
        a('v_cvt_pk_bf16_f32 v158, v144, v146')
        if mrep:
            a('buffer_store_dwordx4 v[156:159], v139, %s, s72 offen sc1' % srd(sWS))
            a('buffer_store_dwordx4 v[156:159], v139, %s, s73 offen sc1' % srd(sWS))
        else:
            a('buffer_store_dwordx4 v[156:159], v%d, %s, s72 offen sc1' % (vL16, srd(sWS)))
        a('s_mov_b64 exec, -1')
        a('L_modpub:')
        self.stamp(3)
        if self.opt['dnpf']:
            a('s_cmp_ge_u32 s2, %d' % MLP0)
            a('s_cbranch_scc1 L_mlp')
            a('s_barrier')
            a('s_sub_u32 s75, s%d, 6' % WV)
            a('s_cbranch_scc1 L_nodn')
            if self.opt['gupf'] == 6:
                a('s_mov_b32 s78, s70')
                a('s_load_dwordx2 s[%d:%d], s[0:1], %d' % (sWG, sWG + 1, 8 * SLOT[sWG]))
                a('s_waitcnt lgkmcnt(0)')
                self.gu_prefetch(shift=10)
                a('s_mov_b32 s70, s78')
            if self.opt['gupf'] == 7:
                self.mm_dn_prefetch()
            else:
                self.dn_prefetch(75)
            a('L_nodn:')
        a('s_cmp_lt_u32 s2, %d' % (RED0 + N_RED))
        a('s_cbranch_scc1 L_keys')
        a('s_cmp_lt_u32 s2, %d' % MLP0)
        a('s_cbranch_scc1 L_end')
        a('L_mlp:')
        if self.opt['bg'] == 2:
            gowait()
        a('s_barrier')
        a('s_cmp_ge_u32 s%d, 8' % WV)
        a('s_cbranch_scc1 L_nogul')
        for t in range(20):
            a('buffer_load_dword v%d, v134, %s, s74 offen' % (GR + 2 * t, srd(sWG)))
            a('buffer_load_dword v%d, v134, %s, s74 offen offset:3456' % (GR + 1 + 2 * t, srd(sWG)))
            if t < 19:
                a('s_add_u32 s74, s74, 6912')
        a('L_nogul:')
        if self.opt['dnpf']:
            a('s_barrier')
        for i in range(16):
            a('buffer_load_dword v%d, v135, %s, s76 offen offset:%d' % (DR + i, srd(sWD), 1280 * (i % 4)))
            if i % 4 == 3:
                a('s_add_u32 s76, s76, 5120')
        a('s_waitcnt vmcnt(0)')
        for t in range(20):
            self.pair_rows(GP + 2 * t, GR + 2 * t, GR + 1 + 2 * t)
        for t in range(8):
            self.pair_rows(DP + 2 * t, DR + 2 * t, DR + 1 + 2 * t)
        for i in range(8):
            a('v_mov_b32 v%d, 0' % (140 + i))
        self.stamp(4)
        if self.opt['dry']:
            a('s_mov_b64 exec, 0')
            a('s_movk_i32 s73, 128')
            a('s_branch L_expert')
            a('L_dryout:')
            a('s_mov_b64 exec, -1')
        a('L_keys:')
        if self.opt['side'] < 2:
            a('s_getreg_b32 s%d, hwreg(HW_REG_XCC_ID, 2, 1)' % NEAR)
            a('s_xor_b32 s%d, s%d, %d' % (NEAR, NEAR, self.opt['side']))
            a('s_lshl_b32 s%d, s%d, 13' % (NEAR, NEAR))
        elif self.opt['side'] == 2:
            a('s_mov_b32 s%d, 0' % NEAR)
        else:
            a('s_mov_b32 s74, %d' % INFO)
            a('s_getreg_b32 s%d, hwreg(HW_REG_XCC_ID, 2, 1)' % NEAR)
            a('s_mov_b64 exec, 1')
            l, d = self.spin_head('info')
            a('buffer_load_dwordx2 v[148:149], v%d, %s, s74 offen sc1' % (vL16, srd(sWS)))
            a('s_add_u32 s79, s79, 1')
            a('s_waitcnt vmcnt(0)')
            a('v_readfirstlane_b32 s73, v149')
            a('v_readfirstlane_b32 s72, v148')
            a('s_cmp_eq_u32 s73, s%d' % TAG)
            a('s_cbranch_scc1 %s' % d)
            a('s_mov_b32 s72, 0')
            a('s_cmp_lt_u32 s79, %d' % (SPIN if self.opt['retry'] else 1))
            a('s_cbranch_scc1 %s' % l)
            a('%s:' % d)
            a('s_mov_b64 exec, -1')
            a('s_xor_b32 s%d, s%d, s72' % (NEAR, NEAR))
            a('s_and_b32 s%d, s%d, 1' % (NEAR, NEAR))
            a('s_lshl_b32 s%d, s%d, 13' % (NEAR, NEAR))
        a('v_mov_b32 v129, %d' % KEYMAX)
        a('s_cmp_lt_u32 s%d, 8' % WV)
        a('s_cbranch_scc1 L_follow')
        a('s_and_b32 s73, s%d, 1' % WV)
        a('s_lshl_b32 s72, s73, 3')
        a('v_add_u32 v%d, s72, v129' % vKM)
        a('s_lshl_b32 s72, s73, 15')
        a('s_add_u32 s72, s72, s%d' % NEAR)
        a('s_and_b32 s73, s2, 7')
        a('s_mul_i32 s73, s73, %d' % self.opt['rst'])
        a('s_add_u32 s72, s72, s73')
        a('s_add_u32 s72, s72, %d' % KEYR)
        a('v_lshlrev_b32 v150, 8, v%d' % LANE)
        a('v_lshl_add_u32 v150, v137, 13, v150')
        if self.opt['pprio']:
            a('s_setprio %d' % self.opt['pprio'])
        D = self.opt['kd']
        kld = lambda k: a('buffer_load_dwordx2 %s, v150, %s, s72 offen sc1' % (vr(72 + 2 * k, 2), srd(sWS)))
        for k in range(D - 1):
            kld(k)
        l, d = self.spin_head('keys')
        a('s_add_u32 s79, s79, 1')
        for k in range(D):
            kld((k + D - 1) % D)
            if self.opt['ks']:
                a('s_sleep %d' % self.opt['ks'])
            if self.opt['rsl']:
                a('s_cmp_ge_u32 s2, %d' % MLP0)
                a('s_cbranch_scc1 L_nosl%d' % k)
                a('s_sleep %d' % self.opt['rsl'])
                a('L_nosl%d:' % k)
            a('s_mov_b64 s[66:67], exec')
            a('s_waitcnt vmcnt(%d)' % (D - 1))
            a('v_cmp_ne_u32 vcc, v167, v%d' % (73 + 2 * k))
            a('s_cmp_gt_u32 s79, %d' % SPIN)
            a('s_cselect_b64 vcc, 0, vcc')
            a('s_andn2_b64 exec, s[66:67], vcc')
            a('s_cbranch_scc0 L_nonew%d' % k)
            a('ds_max_u32 v%d, v%d' % (vKM, 72 + 2 * k))
            a('s_bcnt0_i32_b64 s73, vcc')
            a('v_mov_b32 v151, s73')
            a('ds_write_b32 v%d, v151 offset:4' % vKM)
            a('L_nonew%d:' % k)
            a('s_and_b64 exec, vcc, vcc')
            a('s_cbranch_scc%d %s' % ((1, l) if k == D - 1 else (0, d)))
        a('%s:' % d)
        a('s_mov_b64 exec, -1')
        a('s_cmp_ge_u32 s2, %d' % MLP0)
        a('s_waitcnt lgkmcnt(0)')
        a('s_cbranch_scc1 L_stage2')
        a('L_follow:')
        a('s_cmp_ge_u32 s2, %d' % MLP0)
        a('s_cbranch_scc1 L_spec0')
        if self.opt['tP']:
            a('s_cmp_ge_u32 s%d, 7' % WV)
            a('s_cbranch_scc1 L_notouch')
            self.part_address()
            self.part_loads()
            a('L_notouch:')
        a('s_barrier')
        a('ds_read_b128 v[132:135], v129')
        a('s_waitcnt lgkmcnt(0)')
        a('v_max_u32 v132, v132, v134')
        a('v_readfirstlane_b32 s74, v132')
        if self.opt['tC']:
            a('s_ashr_i32 s75, s74, 31')
            a('s_xnor_b32 s75, s75, s74')
        else:
            a('s_not_b32 s75, s74')
        a('s_bfe_u32 s76, s75, 0x70004')
        self.stamp(5)
        a('s_branch L_red')
        a('L_spec0:')
        a('v_add_u32 v%d, s%d, v%d' % (vXS, NEAR, vXS))
        a('s_mov_b32 s75, -1')
        a('s_mov_b32 s79, 0')
        a('L_spec:')
        a('ds_read_b128 v[132:135], v129')
        a('s_add_u32 s79, s79, 1')
        a('s_cmp_gt_u32 s79, %d' % (SPIN * 16))
        a('s_cbranch_scc1 L_stage1done')
        a('s_waitcnt lgkmcnt(0)')
        a('v_max_u32 v132, v132, v134')
        a('v_add_u32 v133, v133, v135')
        a('L_have:')
        a('v_readfirstlane_b32 s74, v132')
        a('v_readfirstlane_b32 s73, v133')
        if self.opt['tC']:
            a('s_ashr_i32 s76, s74, 31')
            a('s_xnor_b32 s76, s76, s74')
        else:
            a('s_not_b32 s76, s74')
        a('s_bfe_u32 s76, s76, 0x70004')
        a('s_cmp_eq_u32 s76, s75')
        a('s_cbranch_scc1 L_same')
        a('s_cmp_lt_u32 s73, %d' % self.opt['spec'])
        a('s_cbranch_scc1 L_spec')
        a('s_and_b32 s77, s76, 0x7c')
        a('s_add_u32 s77, s77, s76')
        a('s_lshl_b32 s77, s77, 11')
        if self.opt['xd']:
            a('buffer_load_dword v138, v%d, %s, s77 offen sc1' % (vXS, srd(sWS)))
            a('buffer_load_dword v139, v%d, %s, s77 offen offset:16 sc1' % (vXS, srd(sWS)))
        else:
            a('buffer_load_dwordx2 v[138:139], v%d, %s, s77 offen sc1' % (vXS, srd(sWS)))
        for i in range(4):
            a('v_mov_b32 v%d, 0' % (140 + i))
        a('s_mov_b32 s75, -1')
        a('s_waitcnt vmcnt(0)')
        a('v_cmp_eq_u32 vcc, s78, v138')
        a('v_cmp_eq_u32 s[66:67], s78, v139')
        a('s_or_b64 vcc, vcc, s[66:67]')
        a('s_cbranch_scc1 L_spec')
        if self.opt['tE']:
            a('s_cmp_eq_u32 s73, 128')
            a('s_cbranch_scc1 L_final')
            a('ds_read_b128 v[132:135], v129')
            a('s_waitcnt lgkmcnt(0)')
            a('v_max_u32 v132, v132, v134')
            a('v_add_u32 v133, v133, v135')
            a('v_cmp_ne_u32 vcc, s74, v132')
            a('v_readfirstlane_b32 s73, v133')
            a('s_cbranch_vccnz L_have')
            a('L_final:')
        a('s_mov_b32 s75, s76')
        self.stamp(6)
        a('L_expert:')
        for t in range(20):
            for c in range(2):
                a('v_dot2c_f32_bf16_dpp v%d, v%d, v%d row_newbcast:%d %s' % ((140 + 2 * (t & 1) + c, 138 + (t >= 16), GP + 2 * t + c, t if t < 16 else t - 4, DPP) if self.opt['xd'] else
                                                                                 (140 + 2 * (t & 1) + c, 138 + (t & 1), GP + 2 * t + c, t >> 1, DPP)))
        a('v_pk_add_f32 v[140:141], v[140:141], v[142:143]')
        a('v_permlane32_swap_b32 v140, v141')
        a('v_add_f32 v140, v140, v141')
        a('v_cvt_f64_f32 v[140:141], v140')
        a('L_same:')
        a('s_cmp_lt_u32 s73, 128')
        a('s_cbranch_scc1 L_spec')
        a('L_stage1done:')
        self.stamp(5)
        a('ds_add_f64 v%d, v[140:141]' % vGUA)
        a('s_waitcnt lgkmcnt(0)')
        a('L_stage2:')
        self.stamp(9)
        a('s_barrier')
        self.stamp(10)
        a('ds_read_b128 v[132:135], v%d' % vGUR)
        a('s_waitcnt lgkmcnt(0)')
        a('v_cvt_f32_f64 v138, v[132:133]')
        a('v_cvt_f32_f64 v139, v[134:135]')
        a('v_mul_f32 v137, 0xbfb8aa3b, v138')
        a('v_exp_f32 v137, v137')
        a('v_mul_f32 v138, v138, v139')
        a('v_add_f32 v137, 1.0, v137')
        a('v_rcp_f32 v137, v137')
        a('v_mul_f32 v138, v138, v137')
        a('v_mov_b32_dpp v139, v138 quad_perm:[1,0,3,2] %s' % DPP)
        a('v_cvt_pk_bf16_f32 v138, v138, v139')
        for t in range(8):
            for c in range(2):
                a('v_dot2c_f32_bf16_dpp v%d, v138, v%d row_newbcast:%d %s' % (144 + 2 * (t & 1) + c, DP + 2 * t + c, 2 * t, DPP))
        a('v_pk_add_f32 v[144:145], v[144:145], v[146:147]')
        a('v_permlane32_swap_b32 v144, v145')
        a('v_add_f32 v156, v144, v145')
        a('v_add_f32 v158, v144, v145')
        if self.opt['dry']:
            a('s_cbranch_execz L_dryout')
        a('v_permlane32_swap_b32 v156, v158')
        self.stamp(11)
        a('buffer_store_dwordx4 v[156:159], v%d, %s, s81 offen sc1' % (vPT, srd(sWS)))
        self.stamp(7)
        a('s_branch L_end')
        a('L_red:')
        wide = N_RED == 20
        a('s_cmp_ge_u32 s%d, 7' % WV)
        a('s_cbranch_scc1 L_fin')
        self.part_address()
        a('v_bfe_u32 v15, v0, 5, 1')
        a('v_lshl_add_u32 v14, v15, 3, v14')
        a('v_add_u32 v14, %d, v14' % RED)
        r = 20 if wide else 16
        a('s_waitcnt vmcnt(0)')
        a('v_mov_b32 v%d, 0' % r)
        a('v_mov_b32 v%d, 0' % (r + 2))
        a('v_mov_b32 v%d, v167' % (r + 3))
        l, d = self.spin_head('part')
        self.part_loads()
        self.spin_bound(d)
        a('s_waitcnt vmcnt(0)')
        if wide:
            a('v_cmp_ne_u32 s[68:69], v167, v19')
            a('v_cmp_ne_u32 s[66:67], v167, v23')
            a('v_add_f32 v24, v16, v20')
            a('v_add_f32 v25, v18, v22')
            a('s_or_b64 vcc, s[66:67], s[68:69]')
        else:
            a('v_cmp_ne_u32 s[66:67], v167, v19')
            a('v_add_f32_dpp v24, v16, v16 row_ror:8 %s' % DPP)
            a('v_add_f32_dpp v25, v18, v18 row_ror:8 %s' % DPP)
            a('s_cmp_lg_u64 s[66:67], 0')
        a('s_cbranch_scc1 %s' % l)
        a('%s:' % d)
        self.stamp(6)
        a('v_permlane32_swap_b32 v24, v25')
        a('v_add_f32 v24, v24, v25')
        if not wide:
            a('s_mov_b32 exec_lo, 0x00ff00ff')
            a('s_mov_b32 exec_hi, 0x00ff00ff')
        a('v_cvt_f64_f32 v[24:25], v24')
        a('ds_add_f64 v14, v[24:25]')
        a('s_waitcnt lgkmcnt(0)')
        a('L_redbar:')
        a('s_barrier')
        a('s_branch L_end')
        a('L_fin:')
        a('s_cmp_lg_u32 s%d, 9' % WV)
        a('s_cbranch_scc1 L_redbar')
        tB = self.opt['tB']
        sh = 0 if wide else 1
        a('s_mul_i32 s72, s76, %d' % (2560 if tB else 5120))
        a('s_lshl_b32 s73, s70, %d' % ((7 if tB else 8) - sh))
        a('s_add_u32 s72, s72, s73')
        a('s_add_u32 s80, s72, %d' % BASEG)
        a('s_lshl_b32 s73, s70, %d' % (7 - sh))
        a('s_add_u32 s81, s73, %d' % (MODG + 5 * 2560))
        a('v_add_u32 v14, %d, v%d' % (RED, vL16))
        a('s_and_b32 s75, s75, 0x7ff')
        a('s_mul_i32 s72, s75, 1280')
        a('s_lshl_b32 s73, s70, %d' % (6 - sh))
        a('s_add_u32 s82, s72, s73')
        a('v_lshlrev_b32 v15, 2, v%d' % C16)
        a('s_and_b32 s72, s74, 0xfffff800')
        a('s_or_b32 s72, s72, 0x400')
        a('s_not_b32 s73, s72')
        a('s_xor_b32 s77, s72, 0x80000000')
        a('s_bitcmp1_b32 s72, 31')
        a('s_cselect_b32 s72, s77, s73')
        a('v_mov_b32 v24, s72')
        a('v_mul_f32 v24, 0xbfb8aa3b, v24')
        a('v_exp_f32 v24, v24')
        a('v_add_f32 v24, 1.0, v24')
        a('v_rcp_f32 v24, v24')
        a('s_mov_b64 exec, %s' % ('0xffff' if wide else '0xff'))
        l, d = self.spin_head('base')
        if tB:
            a('buffer_load_dwordx2 v[16:17], v131, %s, s80 offen sc1' % srd(sWS))
        else:
            a('buffer_load_dwordx4 v[16:19], v%d, %s, s80 offen sc1' % (vL16, srd(sWS)))
        a('buffer_load_dwordx2 v[20:21], v131, %s, s81 offen sc1' % srd(sWS))
        self.spin_bound(d)
        a('s_waitcnt vmcnt(0)')
        a('v_cmp_%s_u32 vcc, v167, v17' % ('eq' if tB else 'ne'))
        a('v_cmp_ne_u32 s[66:67], v167, v21')
        a('s_or_b64 vcc, vcc, s[66:67]')
        a('s_cbranch_scc1 %s' % l)
        a('%s:' % d)
        a('s_waitcnt vmcnt(0)')
        self.unpack(22, 23, 20)
        a('v_mul_f32 v22, v22, v24')
        a('v_mul_f32 v23, v23, v24')
        self.stamp(8)
        a('s_barrier')
        a('ds_read_b128 v[32:35], v14')
        a('s_waitcnt lgkmcnt(0)')
        a('v_cvt_f32_f64 v32, v[32:33]')
        a('v_cvt_f32_f64 v33, v[34:35]')
        a('v_fmac_f32 v16, v22, v32')
        a('v_fmac_f32 v%d, v23, v33' % (17 if tB else 18))
        a('v_cvt_pk_bf16_f32 v16, v16, v%d' % (17 if tB else 18))
        a('buffer_store_dword v16, v15, %s, s82 offen%s' % (srd(sO), ' sc1' if self.opt['finsc'] else ''))
        a('s_cmp_lg_u32 s70, 0')
        a('s_cbranch_scc1 L_noepoch')
        a('v_mov_b32 v25, 0')
        a('buffer_store_dword v167, v25, %s, 0 offen%s' % (srd(sWS), ' sc1' if self.opt['finsc'] else ''))
        a('L_noepoch:')
        a('s_mov_b64 exec, -1')
        self.stamp(7)

    def locate(self):
        a, o = self.a, self.opt
        R = o['rounds']
        a('L_locate:')
        a('s_mov_b32 s70, %d' % PROBE)
        a('s_mov_b32 s71, %d' % (PROBE + 8192))
        a('s_mov_b32 s78, %d' % INFO)
        self.mad(12, L8, 1024, P16)
        for i in range(4):
            a('v_mov_b32 v%d, 1' % (16 + i))
        a('buffer_store_dwordx4 v[16:19], v12, %s, s70 offen sc1' % srd(sWS))
        a('buffer_store_dwordx4 v[16:19], v12, %s, s71 offen sc1' % srd(sWS))
        a('s_waitcnt lgkmcnt(0)')
        self.make_tag()
        a('s_add_u32 s70, s70, 4')
        a('s_mov_b32 s74, 0')
        a('s_movk_i32 s76, 0x1000')
        a('s_movk_i32 s77, 0x1000')
        a('s_waitcnt vmcnt(0)')
        a('L_round:')
        for side in range(2):
            a('s_mov_b32 s75, 0')
            a('s_movk_i32 s72, -4096')
            a('s_load_dword s75, s[%d:%d], s70 glc' % (sWS, sWS + 1))
            a('L_count%d:' % side)
            a('s_add_u32 s72, s72, 1')
            a('s_addc_u32 s73, s75, 0')
            a('s_cmp_eq_u32 s73, 0')
            a('s_cbranch_scc1 L_count%d' % side)
            a('s_and_b32 s72, s72, 0xfff')
            a('s_waitcnt lgkmcnt(0)')
            if o['dbg']:
                a('s_lshl1_add_u32 s73, s74, %d' % side)
                a('s_mov_b32 m0, s73')
                a('v_writelane_b32 v20, s72, m0')
            a('s_min_u32 s%d, s%d, s72' % (76 + side, 76 + side))
            a('s_xor_b32 s70, s70, 8192')
        a('s_add_u32 s70, s70, 1024')
        a('s_add_u32 s74, s74, 1')
        a('s_cmp_lt_u32 s74, %d' % R)
        a('s_cbranch_scc1 L_round')
        a('s_getreg_b32 s72, hwreg(HW_REG_XCC_ID, 2, 1)')
        a('s_cmp_lt_u32 s77, s76')
        a('s_addc_u32 s72, s72, 0')
        if o['dbg']:
            a('buffer_store_dword v20, v%d, %s, s78 offen offset:128 sc1' % (vL4, srd(sWS)))
        a('v_mov_b32 v16, s72')
        a('v_mov_b32 v17, s%d' % TAG)
        a('s_mov_b64 exec, 0xff')
        a('buffer_store_dwordx4 v[16:19], v%d, %s, s78 offen sc1' % (vL16, srd(sWS)))
        self.stamp(3)
        a('s_branch L_end')

    def finish(self):
        a = self.a
        a('L_end:')
        if self.amp:
            lo, hi, j = self.amp
            self.stamp(15)
            a('s_cmp_lt_u32 s2, %d' % lo)
            a('s_cbranch_scc1 L_exit')
            a('s_cmp_ge_u32 s2, %d' % hi)
            a('s_cbranch_scc1 L_exit')
            a('s_cmp_eq_u32 s%d, 0' % (84 + j))
            a('s_cbranch_scc1 L_exit')
            a('s_sub_u32 s72, s%d, s84' % (84 + j))
            a('s_min_u32 s72, s72, 3000')
            a('s_mul_i32 s72, s72, 10')
            a('s_add_u32 s72, s72, 3000')
            a('L_amp:')
            a('s_sleep 8')
            a('s_memrealtime s[100:101]')
            a('s_waitcnt lgkmcnt(0)')
            a('s_sub_u32 s73, s100, s84')
            a('s_cmp_lt_u32 s73, s72')
            a('s_cbranch_scc1 L_amp')
        if isinstance(self.diag, list):
            self.stamp(15)
            for _ in range(4):
                a('s_sleep 127')
            a('s_waitcnt lgkmcnt(0)')
            a('s_mov_b64 exec, -1')
            a('s_mul_i32 s72, s2, 640')
            a('s_add_u32 s72, s72, s%d' % T64)
            a('s_add_u32 s72, s72, %d' % DIAG)
            a('v_mov_b32 v2, s72')
            for i in range(16):
                a('v_mov_b32 v%d, %s' % (8 + i, 's%d' % (84 + 2 * self.diag.index(i)) if i in self.diag else '0'))
            a('s_mov_b64 exec, 1')
            for i in range(4):
                a('buffer_store_dwordx4 %s, v2, %s, 0 offen offset:%d' % (vr(8 + 4 * i, 4), srd(sWS), 16 * i))
        elif self.diag:
            self.stamp(15)
            a('L_dwait:')
            a('s_sleep 16')
            a('s_memrealtime s[100:101]')
            a('s_waitcnt lgkmcnt(0)')
            a('s_sub_u32 s73, s100, s84')
            a('s_cmp_lt_u32 s73, 2500')
            a('s_cbranch_scc1 L_dwait')
            a('s_mov_b64 exec, -1')
            a('s_mul_i32 s72, s2, 640')
            a('s_add_u32 s72, s72, s%d' % T64)
            a('s_add_u32 s72, s72, %d' % DIAG)
            a('v_mov_b32 v2, s72')
            for i in range(16):
                a('v_mov_b32 v%d, s%d' % (8 + i, 84 + i))
            a('s_mov_b64 exec, 1')
            for i in range(4):
                a('buffer_store_dwordx4 %s, v2, %s, 0 offen offset:%d' % (vr(8 + 4 * i, 4), srd(sWS), 16 * i))
        a('L_exit:')
        a('s_endpgm')
        a('L_code_end:')

    def text(self):
        self.prologue()
        self.conv()
        self.rows()
        self.helper()
        if self.opt['side'] == 3:
            self.locate()
        self.nonconv()
        self.finish()
        nt = self.opt['nt']
        for n, l in enumerate(self.a.lines):
            hit = False
            if 'buffer_load' in l:
                hit |= bool(nt & 1) and srd(sSK) in l
                hit |= bool(nt & 2) and srd(sQ) in l
                hit |= bool(nt & 4) and srd(sV) in l
                hit |= bool(nt & 8) and srd(sK) in l
                hit |= bool(nt & 16) and 'dwordx4' in l and srd(sWS) in l and ('s80' in l or 's81' in l or 's82' in l) and ', v%d,' % vL16 in l
                hit |= bool(nt & 32) and ', v%d,' % vZLD in l
                hit |= bool(nt & 64) and 'v163' not in l and any(srd(x) in l for x in (sWG, sWD, sWM))
                ws = srd(sWS) in l
                hit |= bool(nt & 256) and ws and ', v150,' in l
                hit |= bool(nt & 512) and ws and (', v12,' in l or ', v13,' in l)
                hit |= bool(nt & 1024) and ws and ', v160,' in l
                hit |= bool(nt & 2048) and ws and ', v41,' in l
                hit |= bool(nt & 4096) and ws and ', v40,' in l
            if 'buffer_store' in l:
                hit |= bool(nt & 128) and srd(sO) in l and 'dwordx4' in l
                hit |= bool(nt & 8192) and ', v%d,' % vKVST in l
                hit |= bool(nt & 16384) and ('v[80:83], v11' in l or 'v[84:87], v11' in l) and 's74' not in l
                hit |= bool(nt & 32768) and 'v[166:167]' in l
                hit |= bool(nt & 65536) and 'v[156:159]' in l and 's81' in l
                hit |= bool(nt & 131072) and 's74 offen' in l
            if hit:
                self.a.lines[n] = l + ' nt'
        body = self.a.body().replace('CODE_LIMIT', 'L_code_end-%s_kernel-8' % NAME)
        code, desc = kernel_text(NAME + '_kernel', body, 168)
        return (HEADER + '; @launch grid=(256,1,1) block=(640,1,1) lds=%d\n' % LDS_BYTES +
                '.amdgcn_target "amdgcn-amd-amdhsa--gfx950"\n' + code + desc)


def parse_args(args):
    kw = {}
    for x in args:
        if x == 'diag':
            kw['diag'] = True
        elif x.startswith('amp='):
            kw['amp'] = tuple(int(y) for y in x[4:].split(','))
        else:
            k, v = x.split('=')
            kw[k] = int(v, 0)
    return kw


if __name__ == '__main__':
    open(sys.argv[1], 'w').write(Gen(**parse_args(sys.argv[2:])).text())
```

```python
import sys
sys.path.insert(0, 'gen')
import asmlib
from asmlib import Ins
import importlib

NOTES = {
    'L_pfdone': 'kv tile addresses: task = 24 rows x 32 channels per wave, 6 rows x 2 channels per lane',
    'L_shadow': 'address set-up and filter loads in the shadow of the tile loads; the tag of this launch comes from ws[0]',
    'L_notile': 'waves without a kv tile',
    'L_tiled': 'convolution workgroups (0..159, four channels each): shifted filter copies, kv receive, MFMA stream',
    'L_noA': 'kv granules {3 data dwords, tag}: reload until every tag matches, scatter reversed into LDS',
    'L_zjoin': 'row workgroups (0..127, 16 rows each): modulation, LayerNorm 2, router score, output',
    'L_nokey': 'normalised row, candidate row hand-off, output stores',
    'L_helper': 'waves 4..9 during the MFMA stream: announcements, prefetch, q statistics, modulation parameters, early z',
    'L_hrow': 'wave 4: clear the candidate slots, publish early z, check the announcements of all channel groups',
    'L_hmod': 'waves 5..9: LayerNorm 1 statistics (6..9) and per-channel parameters',
    'L_locate': 'one wave finds which of two 8 KiB stripes answers this die first; readers use it to pick one of two equal copies',
    'L_nonconv': 'workgroups 160..255: modulation GEMV (160..219), expert MLP (200..253), final reduction (160..179)',
    'L_modgo': 'modulation GEMV: silu(c) times a 64-column slice of w_mod',
    'L_mlp': 'expert weights: 32 hidden columns per workgroup, held in registers',
    'L_keys': 'arg-max over the 128 row-tile keys; waves 8 and 9 watch, waves 0..7 start on the best row so far',
    'L_stage2': 'silu(g) * u and the partial down projection',
    'L_red': 'sum of the 54 partial rows and update of the selected output row',
}

HEAD = """; One launch, 256 co-resident workgroups of 10 waves.  Hand-offs go through d_ws with write-through stores and are
"""


def prune(lines):
    ins = [Ins(l) for l in lines]
    labels = {x.label: i for i, x in enumerate(ins) if x.label}
    seen, stack = set(), [0]
    while stack:
        i = stack.pop()
        while i < len(ins) and i not in seen:
            seen.add(i)
            x = ins[i]
            if x.is_ins and x.branch:
                stack.append(labels[x.ops[0]])
                if x.op == 's_branch':
                    break
            if x.is_ins and x.op == 's_endpgm':
                break
            i += 1
    out = [l for i, l in enumerate(lines) if i in seen or ins[i].label == 'L_code_end']
    ins = [Ins(l) for l in out]
    keep = []
    for i, x in enumerate(ins):
        if x.is_ins and x.branch:
            j = i + 1
            names = set()
            while j < len(ins) and not ins[j].is_ins:
                names.add(ins[j].label)
                j += 1
            if x.ops[0] in names:
                continue
        keep.append(out[i])
    used = {Ins(l).ops[0] for l in keep if Ins(l).is_ins and Ins(l).branch}
    return [l for l in keep if not Ins(l).label or Ins(l).label in used or Ins(l).label in NOTES or Ins(l).label == 'L_code_end']


def build(module='gen38', spin=1 << 19, **opt):
    G = importlib.import_module(module)
    G.SPIN = spin
    body = asmlib.Asm.body

    def pruned(self):
        self.lines = prune(self.lines)
        return body(self)
    asmlib.Asm.body = pruned
    try:
        text = G.Gen(**opt).text()
    finally:
        asmlib.Asm.body = body
    out = []
    for l in text.split('\n'):
        if l.startswith('; @launch'):
            out.append(HEAD.rstrip('\n'))
        if l.endswith(':') and l[:-1] in NOTES:
            out.append('; ---- ' + NOTES[l[:-1]])
        out.append(l)
    return '\n'.join(out)


if __name__ == '__main__':
    mod = sys.argv[2] if len(sys.argv) > 2 else 'gen38'
    G = importlib.import_module(mod)
    open(sys.argv[1], 'w').write(build(mod, **G.parse_args(sys.argv[3:])))
```

```python
import sys
sys.path.insert(0, 'gen')
import asmlib
from asmlib import Ins
import importlib
import align

NOTES = {
    'L_pfdone': 'kv tile addresses: task = 24 rows x 32 channels per wave, 6 rows x 2 channels per lane',
    'L_shadow': 'address set-up and filter loads in the shadow of the tile loads; the tag of this launch comes from ws[0]',
    'L_notile': 'waves without a kv tile',
    'L_tiled': 'convolution workgroups (0..159, four channels each): shifted filter copies, kv receive, MFMA stream',
    'L_noA': 'kv granules {3 data dwords, tag}: reload until every tag matches, scatter reversed into LDS',
    'L_zjoin': 'row workgroups (0..127, 16 rows each): modulation, LayerNorm 2, router score, output',
    'L_nokey': 'normalised row, candidate row hand-off, output stores',
    'L_helper': 'waves 4..9 during the MFMA stream: announcements, prefetch, q statistics, modulation parameters, early z',
    'L_hrow': 'wave 4: clear the candidate slots, publish early z, check the announcements of all channel groups',
    'L_hmod': 'waves 5..9: LayerNorm 1 statistics (6..9) and per-channel parameters',
    'L_locate': 'one wave finds which of two 8 KiB stripes answers this die first; readers use it to pick one of two equal copies',
    'L_nonconv': 'workgroups 160..255: modulation GEMV (160..219), expert MLP (200..253), final reduction (160..179)',
    'L_modgo': 'modulation GEMV: silu(c) times a 64-column slice of w_mod',
    'L_mlp': 'expert weights: 32 hidden columns per workgroup, held in registers',
    'L_keys': 'arg-max over the 128 row-tile keys; waves 8 and 9 watch, waves 0..7 start on the best row so far',
    'L_stage2': 'silu(g) * u and the partial down projection',
    'L_red': 'sum of the 54 partial rows and update of the selected output row',
}

HEAD = """; One launch, 256 co-resident workgroups of 10 waves.  Hand-offs go through d_ws with write-through stores and are
"""


def prune(lines):
    ins = [Ins(l) for l in lines]
    labels = {x.label: i for i, x in enumerate(ins) if x.label}
    seen, stack = set(), [0]
    while stack:
        i = stack.pop()
        while i < len(ins) and i not in seen:
            seen.add(i)
            x = ins[i]
            if x.is_ins and x.branch:
                stack.append(labels[x.ops[0]])
                if x.op == 's_branch':
                    break
            if x.is_ins and x.op == 's_endpgm':
                break
            i += 1
    out = [l for i, l in enumerate(lines) if i in seen or ins[i].label == 'L_code_end']
    ins = [Ins(l) for l in out]
    keep = []
    for i, x in enumerate(ins):
        if x.is_ins and x.branch:
            j = i + 1
            names = set()
            while j < len(ins) and not ins[j].is_ins:
                names.add(ins[j].label)
                j += 1
            if x.ops[0] in names:
                continue
        keep.append(out[i])
    used = {Ins(l).ops[0] for l in keep if Ins(l).is_ins and Ins(l).branch}
    return [l for l in keep if not Ins(l).label or Ins(l).label in used or Ins(l).label in NOTES or Ins(l).label == 'L_code_end']


def build(module='gen38', spin=1 << 19, al=0, **opt):
    G = importlib.import_module(module)
    G.SPIN = spin
    body = asmlib.Asm.body

    def pruned(self):
        self.lines = prune(self.lines)
        text = body(self)
        if al:
            text = '\n'.join(align.align(text.rstrip('\n').split('\n'), al)) + '\n'
        return text
    asmlib.Asm.body = pruned
    try:
        text = G.Gen(**opt).text()
    finally:
        asmlib.Asm.body = body
    out = []
    for l in text.split('\n'):
        if l.startswith('; @launch'):
            out.append(HEAD.rstrip('\n'))
        if l.endswith(':') and l[:-1] in NOTES:
            out.append('; ---- ' + NOTES[l[:-1]])
        out.append(l)
    return '\n'.join(out)


if __name__ == '__main__':
    mod = sys.argv[2] if len(sys.argv) > 2 else 'gen38'
    G = importlib.import_module(mod)
    open(sys.argv[1], 'w').write(build(mod, **G.parse_args(sys.argv[3:])))


class Gen:
    def __init__(self, **kw):
        self.kw = kw

    def text(self):
        kw = dict(self.kw)
        return build('gen%d' % kw.pop('g', 38), **kw)


def parse_args(args):
    return {k: int(v, 0) for k, v in (x.split('=') for x in args)}


DIAG = 0xf00000
```
